```python
import torch

def _softmax(x, axis=-1):
    return torch.softmax(x, dim=axis)
def _gelu(x):
    return torch.nn.functional.gelu(x, approximate="tanh")
def _silu(x):
    return torch.nn.functional.silu(x)
def _sigmoid(x):
    return torch.sigmoid(x)
def _layernorm(x, axis=-1, eps=1e-5):
    m = x.mean(dim=axis, keepdim=True)
    v = x.var(dim=axis, keepdim=True, unbiased=False)
    return (x - m) / torch.sqrt(v + eps)
def _scatter_add(tgt, idx, src, axis=0):
    return tgt.clone().index_add_(axis, idx, src)
def _segment_sum(src, seg, n):
    out = torch.zeros((n,) + src.shape[1:], dtype=src.dtype)
    return out.index_add_(0, seg, src)
def _pad(x, pw):
    flat = tuple(v for pair in reversed(pw) for v in pair)
    return torch.nn.functional.pad(x, flat)

kernel_name = 'gated_mix__grouped_kv_mqa__glu_gated_glu__prompt'

def setup_inputs():

    _w = (lambda a: (lambda t: t.to(torch.bfloat16) if t.is_floating_point() else t)(torch.as_tensor(a)))
    def _A_setup():
        B, S, D, H = 1, 2048, 512, 32
        Dh = D // H
        return {
            "x": _w((lambda *s: torch.randn(*s, dtype=torch.bfloat16) * 0.05)(B, S, D)),
            "wq": _w((lambda *s: torch.randn(*s, dtype=torch.bfloat16) * 0.8)(D, H * Dh)),
            "wk": _w((lambda *s: torch.randn(*s, dtype=torch.bfloat16) * 0.8)(D, Dh)),
            "wv": _w((lambda *s: torch.randn(*s, dtype=torch.bfloat16) * 0.2)(D, Dh)),
            "wo": _w((lambda *s: torch.randn(*s, dtype=torch.bfloat16) * 0.2)(H * Dh, D)),
        }
    _A_in = _A_setup()

    def _B_setup():
        B, S, D, F = 1, 2048, 512, 1792
        return {
            "x": _w((lambda *s: torch.randn(*s, dtype=torch.bfloat16) * 0.05)(B, S, D)),
            "w_gate": _w((lambda *s: torch.randn(*s, dtype=torch.bfloat16) * 0.4)(D, F)),
            "w_up": _w((lambda *s: torch.randn(*s, dtype=torch.bfloat16) * 0.05)(D, F)),
            "w_down": _w((lambda *s: torch.randn(*s, dtype=torch.bfloat16) * 0.05)(F, D)),
        }
    _B_in = _B_setup()

    return {
        "A_x": _A_in["x"],
        "A_wq": _A_in["wq"],
        "A_wk": _A_in["wk"],
        "A_wv": _A_in["wv"],
        "A_wo": _A_in["wo"],
        "B_x": _B_in["x"],
        "B_w_gate": _B_in["w_gate"],
        "B_w_up": _B_in["w_up"],
        "B_w_down": _B_in["w_down"],
        "gate_w": _w((lambda *s: torch.randn(*s, dtype=torch.bfloat16) * 0.05)(512) * 16.0),
    }

def reference(A_x, A_wq, A_wk, A_wv, A_wo, B_x, B_w_gate, B_w_up, B_w_down, gate_w):
    def _A_ref(x, wq, wk, wv, wo):
        B, S, D = x.shape
        H = 32
        Dh = D // H
        q = (lambda x, *d: x.permute(*d))((x @ wq).reshape(B, S, H, Dh), 0, 2, 1, 3)
        k = x @ wk
        v = x @ wv
        scores = torch.einsum("bhqd,bkd->bhqk", q, k) * (Dh ** -0.5)
        p = _softmax(scores, axis=-1)
        o = torch.einsum("bhqk,bkd->bhqd", p, v)
        return (lambda x, *d: x.permute(*d))(o, 0, 2, 1, 3).reshape(B, S, H * Dh) @ wo

    def _B_ref(x, w_gate, w_up, w_down):
        g = torch.einsum("bsd,df->bsf", x, w_gate)
        u = torch.einsum("bsd,df->bsf", x, w_up)
        h = _sigmoid(g) * u
        return torch.einsum("bsf,fd->bsd", h, w_down)

    x = A_x
    g = _sigmoid((x * gate_w).sum(-1, keepdims=True))
    a = _A_ref(x, A_wq, A_wk, A_wv, A_wo)
    b = _B_ref(x, B_w_gate, B_w_up, B_w_down)
    return g * a + (1 - g) * b
```

```python
import sys

NAME = "gated_mix__grouped_kv_mqa__glu_gated_glu__prompt"

WS_QF = 0
WS_OF = 2 << 20
WS_KF = 4 << 20
WS_VF = WS_KF + 65536
WS_KN = WS_VF + 65536
WS_G = WS_KN + 4096
WS_WF = 5 << 20
WS_HF = 8 << 20
WS_SIZE = 16 << 20

LOG2E = 1.4426950408889634
import struct
def fbits(x):
    return "0x%08x" % struct.unpack("<I", struct.pack("<f", x))[0]


class Asm:
    def __init__(self):
        self.lines = []
    def __call__(self, s):
        for l in s.strip("\n").split("\n"):
            self.lines.append("    " + l.strip() if not l.strip().endswith(":") else l.strip())
    def label(self, s):
        self.lines.append(s + ":")
    def raw(self, s):
        self.lines.append(s)
    def text(self):
        return "\n".join(self.lines) + "\n"


def vr(a, n=1):
    return f"v{a}" if n == 1 else f"v[{a}:{a+n-1}]"


def srd(e, d, base, size):
    e(f"s_mov_b32 s{d}, s{base}")
    e(f"s_mov_b32 s{d+1}, s{base+1}")
    e(f"s_mov_b32 s{d+2}, {size}")
    e(f"s_mov_b32 s{d+3}, 0x00020000")


def kernarg_loads(e):
    e("s_load_dwordx16 s[4:19], s[0:1], 0")
    e("s_load_dwordx8 s[20:27], s[0:1], 64")
    e("s_load_dwordx2 s[28:29], s[0:1], 96")


def allreduce(e, op, x, t, lo=0, hi=6):
    dpp = ["quad_perm:[1,0,3,2]", "quad_perm:[2,3,0,1]", "row_half_mirror", "row_mirror"]
    for b in range(lo, min(hi, 4)):
        e("s_nop 1")
        e(f"{op}_dpp v{x}, v{x}, v{x} {dpp[b]} row_mask:0xf bank_mask:0xf")
    for b, ins in ((4, "v_permlane16_swap_b32"), (5, "v_permlane32_swap_b32")):
        if lo <= b < hi:
            e(f"v_mov_b32 v{t}, v{x}")
            e("s_nop 1")
            e(f"{ins} v{x}, v{t}")
            e("s_nop 1")
            e(f"{op} v{x}, v{x}, v{t}")


X_ST = 16384
W_BASE = 3 * X_ST
KV_BASE = W_BASE + 3 * 32768
KV_ST = 4096 + 128
LDS1 = KV_BASE + 3 * KV_ST


def gen_k1(e):
    n = "k1_kernel"
    e.raw(f".globl {n}\n.p2align 8\n.type {n},@function\n{n}:")
    e("s_cmp_ge_u32 s2, 256")
    e("s_cbranch_scc1 K1_END")
    kernarg_loads(e)
    e("v_lshrrev_b32 v2, 6, v0")
    e("v_and_b32 v1, 63, v0")
    e("v_readfirstlane_b32 s30, v2")
    e("s_and_b32 s57, s2, 7")
    e("s_lshr_b32 s58, s2, 3")
    e("s_and_b32 s31, s57, 1")
    e("s_lshl_b32 s31, s31, 3")
    e("s_and_b32 s59, s58, 7")
    e("s_add_u32 s31, s31, s59")
    e("s_lshr_b32 s56, s57, 1")
    e("s_lshl_b32 s56, s56, 2")
    e("s_lshr_b32 s59, s58, 3")
    e("s_add_u32 s56, s56, s59")
    e("s_waitcnt lgkmcnt(0)")
    srd(e, 32, 4, 2048 * 1024)
    srd(e, 48, 28, WS_SIZE)
    srd(e, 52, 22, 1024)
    e("v_lshlrev_b32 v2, 4, v1")
    e("s_lshl_b32 s59, s2, 3")
    e("s_add_u32 s59, s59, s30")
    e("s_lshl_b32 s60, s59, 10")
    e("buffer_load_dwordx4 v[200:203], v2, s[32:35], s60 offen")
    e("buffer_load_dwordx4 v[204:207], v2, s[52:55], 0 offen")
    e("s_mov_b32 s46, %d" % (512 * 1024))
    e("s_cmp_lt_u32 s2, 112")
    e("s_cselect_b32 s44, s20, s12")
    e("s_cselect_b32 s45, s21, s13")
    e("s_cselect_b32 s46, %d, s46" % (1792 * 1024))
    e("s_cselect_b32 s60, 0, 112")
    e("s_mov_b32 s47, 0x00020000")
    e("s_sub_u32 s60, s2, s60")
    e("s_lshl_b32 s60, s60, 14")
    e("s_lshl_b32 s61, s30, 7")
    e("s_add_u32 s60, s60, s61")
    e("v_and_b32 v3, 31, v1")
    e("v_lshlrev_b32 v3, 2, v3")
    e("v_lshrrev_b32 v4, 5, v1")
    e("v_lshl_add_u32 v3, v4, 12, v3")
    e("v_add_u32 v4, 0x2000, v3")
    for j in range(8):
        src = 3 if j < 4 else 4
        e(f"buffer_load_dword v{208+j}, v{src}, s[44:47], s60 offen offset:{(j&3)*1024}")
    e("s_mov_b32 s38, %d" % (512 * 3584))
    e("s_mov_b32 s62, 3584")
    e("s_cmp_ge_u32 s56, 14")
    e("s_cselect_b32 s36, s6, s16")
    e("s_cselect_b32 s37, s7, s17")
    e("s_cselect_b32 s40, s6, s18")
    e("s_cselect_b32 s41, s7, s19")
    e("s_cselect_b32 s38, %d, s38" % (512 * 1024))
    e("s_mov_b32 s42, s38")
    e("s_mov_b32 s39, 0x00020000")
    e("s_mov_b32 s43, 0x00020000")
    e("s_cselect_b32 s62, 1024, s62")
    e("s_lshl_b32 s63, s56, 8")
    e("s_sub_u32 s60, s56, 14")
    e("s_lshl_b32 s60, s60, 9")
    e("s_cmp_ge_u32 s56, 14")
    e("s_cselect_b32 s63, s60, s63")
    e("s_cselect_b32 s64, 256, 0")
    e("s_add_u32 s64, s64, s63")
    e("v_lshrrev_b32 v6, 4, v1")
    e("s_and_b32 s60, s30, 1")
    e("s_lshl_b32 s60, s60, 2")
    e("v_add_u32 v7, s60, v6")
    e("v_and_b32 v8, 7, v1")
    e("v_xor_b32 v7, v7, v8")
    e("v_lshlrev_b32 v7, 4, v7")
    e("v_lshrrev_b32 v8, 3, v1")
    e("s_lshl_b32 s60, s31, 7")
    e("s_lshl_b32 s61, s30, 3")
    e("s_add_u32 s60, s60, s61")
    e("v_add_u32 v8, s60, v8")
    e("v_lshl_add_u32 v5, v8, 10, v7")
    e("s_lshl_b32 s60, s30, 2")
    e("v_add_u32 v8, s60, v6")
    e("v_mul_lo_u32 v8, v8, s62")
    e("v_lshlrev_b32 v7, 2, v6")
    e("v_and_b32 v10, 15, v1")
    e("v_xor_b32 v7, v7, v10")
    e("v_lshl_add_u32 v9, v7, 4, v8")
    e("s_lshl_b32 s65, s62, 5")
    e("s_lshl_b32 s66, s62, 6")
    e("v_and_b32 v14, 31, v1")
    e("v_lshrrev_b32 v15, 5, v1")
    e("v_lshrrev_b32 v16, 1, v14")
    e("v_and_b32 v16, 7, v16")
    e("v_xor_b32 v16, v16, v15")
    e("s_lshr_b32 s60, s30, 2")
    e("s_lshl_b32 s60, s60, 13")
    e("v_lshlrev_b32 v17, 7, v14")
    e("v_add_u32 v17, s60, v17")
    for s in range(4):
        e(f"v_xor_b32 v18, {2*s}, v16")
        e(f"v_lshl_add_u32 v{10+s}, v18, 4, v17")
    e("v_bfe_u32 v16, v1, 2, 2")
    e("v_lshl_add_u32 v17, v15, 3, v16")
    e("v_bfe_u32 v18, v1, 4, 1")
    e("v_bfe_u32 v19, v1, 1, 1")
    e("v_lshl_add_u32 v18, v18, 1, v19")
    e("s_and_b32 s60, s30, 3")
    e("s_lshl_b32 s60, s60, 2")
    e("v_add_u32 v18, s60, v18")
    e("v_lshlrev_b32 v19, 2, v16")
    e("v_xor_b32 v18, v18, v19")
    e("v_lshlrev_b32 v18, 4, v18")
    e("v_lshl_add_u32 v14, v17, 8, v18")
    e("v_and_b32 v19, 1, v1")
    e("v_lshl_add_u32 v14, v19, 3, v14")
    e(f"v_add_u32 v14, {W_BASE}, v14")
    e("v_add_u32 v15, 0x10000, v14")
    e("v_bfe_u32 v18, v1, 4, 1")
    e("v_mul_u32_u24 v18, %d, v18" % (2048 + 128))
    e("v_lshl_add_u32 v16, v17, 5, v18")
    e("v_and_b32 v19, 3, v1")
    e("v_lshl_add_u32 v16, v19, 3, v16")
    e(f"v_add_u32 v16, {KV_BASE}, v16")
    e("s_lshl_b32 s67, s30, 10")
    e("s_cmp_ge_u32 s56, 14")
    e("s_cbranch_scc1 K1_Q")
    gen_k1_main(e, False)
    e("s_branch K1_TAIL")
    e.label("K1_Q")
    gen_k1_main(e, True)
    e.label("K1_TAIL")
    e("s_lshl_b32 s59, s2, 3")
    e("s_add_u32 s59, s59, s30")
    e("s_lshl_b32 s59, s59, 2")
    e(f"s_add_u32 s59, s59, {WS_G}")
    e("v_mov_b32 v3, 0")
    e("s_mov_b64 exec, 1")
    e("buffer_store_dword v200, v3, s[48:51], s59 offen")
    e("s_mov_b64 exec, -1")
    e("s_cmp_ge_u32 s2, 144")
    e("s_cbranch_scc1 K1_END")
    e("s_mul_i32 s59, s30, 144")
    e("s_add_u32 s59, s59, s2")
    e("s_lshl_b32 s59, s59, 11")
    e(f"s_add_u32 s59, s59, {WS_WF}")
    e("buffer_store_dwordx4 v[216:219], v2, s[48:51], s59 offen")
    e("buffer_store_dwordx4 v[220:223], v2, s[48:51], s59 offen offset:1024")
    e.label("K1_END")
    e("s_endpgm")


def gen_k1_main(e, isq):
    ND = 7 if isq else 6
    ACC = 64
    KACC = 128
    FR = [24, 44]
    tag = "Q" if isq else "F"
    if isq:
        e("s_and_b32 s60, s30, 2")
        e("s_cmp_eq_u32 s60, 0")
        e("s_cselect_b32 s68, s10, s8")
        e("s_cselect_b32 s69, s11, s9")
        e("s_mov_b32 s70, 16384")
        e("s_mov_b32 s71, 0x00020000")
        e("s_cselect_b32 s72, 0, %d" % (2048 + 128))
        e("s_and_b32 s60, s30, 1")
        e("s_lshl_b32 s73, s60, 10")
        e("s_add_u32 s72, s72, s73")
        e(f"s_add_u32 s72, s72, {KV_BASE}")

    def dma(kc):
        st = kc % 3
        e(f"s_add_u32 m0, s67, {st * X_ST}")
        e(f"s_mov_b32 s60, {kc * 128}")
        e("buffer_load_dwordx4 v5, s[32:35], s60 offen lds")
        e(f"s_add_u32 m0, s67, {st * X_ST + 8192}")
        e(f"s_mov_b32 s60, {kc * 128 + 65536}")
        e("buffer_load_dwordx4 v5, s[32:35], s60 offen lds")
        e(f"s_mul_i32 s61, s66, {kc}")
        for m, (sr, cb) in enumerate(((36, 63), (40, 64))):
            e(f"s_add_u32 m0, s67, {W_BASE + st * 32768 + m * 16384}")
            e(f"s_add_u32 s60, s61, s{cb}")
            e(f"buffer_load_dwordx4 v9, s[{sr}:{sr+3}], s60 offen lds")
            e(f"s_add_u32 m0, s67, {W_BASE + st * 32768 + m * 16384 + 8192}")
            e("s_add_u32 s60, s60, s65")
            e(f"buffer_load_dwordx4 v9, s[{sr}:{sr+3}], s60 offen lds")
        if isq:
            e(f"s_add_u32 m0, s72, {st * KV_ST}")
            e(f"s_add_u32 s60, s73, {kc * 2048}")
            e("buffer_load_dwordx4 v2, s[68:71], s60 offen lds")

    def reads(kc, s, fb):
        st = kc % 3
        f = FR[fb]
        for m in range(2):
            for rho in range(2):
                off = st * 32768 + m * 16384 + (16 * s + 4 * rho) * 256
                a = 14
                if off >= 65536:
                    off -= 65536
                    a = 15
                e(f"ds_read_b64_tr_b16 {vr(f + 4*m + 2*rho, 2)}, v{a} offset:{off}")
        for t in range(2):
            e(f"ds_read_b128 {vr(f + 8 + 4*t, 4)}, v{10+s} offset:{st * X_ST + t * 4096}")
        if isq:
            for rho in range(2):
                e(f"ds_read_b64_tr_b16 {vr(f + 16 + 2*rho, 2)}, v16 offset:{st * KV_ST + (16 * s + 4 * rho) * 32}")
    NR = 8 if isq else 6

    def mfmas(fb, first):
        f = FR[fb]
        for m in range(2):
            for t in range(2):
                d = ACC + 32 * m + 16 * t
                c = "0" if first else vr(d, 16)
                e(f"v_mfma_f32_32x32x16_bf16 {vr(d,16)}, {vr(f+4*m,4)}, {vr(f+8+4*t,4)}, {c}")

    def kvmfma(fb, first, uid):
        f = FR[fb]
        c = "0" if first else vr(KACC, 16)
        e("s_cmp_eq_u32 s74, 4")
        e(f"s_cbranch_scc1 KVD{uid}")
        e("s_cmp_lt_u32 s74, 2")
        e(f"s_cbranch_scc1 KVA{uid}")
        e("s_cmp_eq_u32 s74, 2")
        e(f"s_cbranch_scc1 KVB{uid}")
        e(f"v_mfma_f32_32x32x16_bf16 {vr(KACC,16)}, {vr(f+12,4)}, {vr(f+16,4)}, {c}")
        e(f"s_branch KVD{uid}")
        e.label(f"KVB{uid}")
        e(f"v_mfma_f32_32x32x16_bf16 {vr(KACC,16)}, {vr(f+8,4)}, {vr(f+16,4)}, {c}")
        e(f"s_branch KVD{uid}")
        e.label(f"KVA{uid}")
        e("s_cmp_eq_u32 s74, 0")
        e(f"s_cbranch_scc1 KVC{uid}")
        e(f"v_mfma_f32_32x32x16_bf16 {vr(KACC,16)}, {vr(f+16,4)}, {vr(f+12,4)}, {c}")
        e(f"s_branch KVD{uid}")
        e.label(f"KVC{uid}")
        e(f"v_mfma_f32_32x32x16_bf16 {vr(KACC,16)}, {vr(f+16,4)}, {vr(f+8,4)}, {c}")
        e.label(f"KVD{uid}")

    if isq:
        e("s_lshr_b32 s60, s30, 2")
        e("s_sub_u32 s61, s56, 14")
        e("s_and_b32 s74, s30, 3")
        e("s_cmp_eq_u32 s60, s61")
        e("s_cselect_b32 s74, s74, 4")
    for kc in range(3):
        dma(kc)
    e(f"s_waitcnt vmcnt({3*ND})")
    e("v_mov_b32 v224, 0")
    for i in range(4):
        e(f"v_dot2c_f32_bf16 v224, v{200+i}, v{204+i}")
    e("s_mov_b32 s60, 0x05040100")
    e("s_mov_b32 s61, 0x07060302")
    for i in range(4):
        e(f"v_perm_b32 v{216+i}, v{209+2*i}, v{208+2*i}, s60")
        e(f"v_perm_b32 v{220+i}, v{209+2*i}, v{208+2*i}, s61")
    allreduce(e, "v_add_f32", 224, 225)
    e(f"v_mul_f32 v224, {fbits(-LOG2E)}, v224")
    e("v_exp_f32 v224, v224")
    e("s_nop 0")
    e("v_add_f32 v224, 1.0, v224")
    e("v_rcp_f32 v200, v224")
    e(f"s_waitcnt vmcnt({2*ND})")
    e("s_barrier")
    reads(0, 0, 0)
    uid = 0
    for kc in range(8):
        for s in range(4):
            fb = s & 1
            if s < 3:
                reads(kc, s + 1, fb ^ 1)
                e(f"s_waitcnt lgkmcnt({NR})")
            else:
                if kc < 7:
                    e("s_waitcnt lgkmcnt(0)")
                    e(f"s_waitcnt vmcnt({ND if kc < 6 else 0})")
                    e("s_barrier")
                    reads(kc + 1, 0, fb ^ 1)
                    if kc + 3 < 8:
                        dma(kc + 3)
                else:
                    e("s_waitcnt lgkmcnt(0)")
            first = (kc == 0 and s == 0)
            mfmas(fb, first)
            if isq:
                kvmfma(fb, first, f"{tag}{uid}")
                uid += 1
    e("s_nop 15")
    e("s_lshl_b32 s60, s31, 2")
    e("s_lshr_b32 s61, s30, 2")
    e("s_lshl_b32 s61, s61, 1")
    e("s_add_u32 s60, s60, s61")
    e("s_and_b32 s61, s30, 3")
    if not isq:
        e("s_mul_i32 s59, s60, 112")
        e("s_lshl_b32 s75, s56, 2")
        e("s_add_u32 s75, s75, s61")
        e("s_lshl_b32 s75, s75, 1")
        e("s_add_u32 s59, s59, s75")
        e("s_lshl_b32 s59, s59, 10")
        e(f"s_add_u32 s59, s59, {WS_HF}")
        e(f"s_add_u32 s75, s59, {112*1024}")
        e(f"s_mov_b32 s76, {fbits(-LOG2E)}")
        for t in range(2):
            G = ACC + 16 * t
            U = ACC + 32 + 16 * t
            for r in range(16):
                e(f"v_mul_f32 v{G+r}, s76, v{G+r}")
            for r in range(16):
                e(f"v_exp_f32 v{G+r}, v{G+r}")
            for r in range(16):
                e(f"v_add_f32 v{G+r}, 1.0, v{G+r}")
            for r in range(16):
                e(f"v_rcp_f32 v{G+r}, v{G+r}")
            for r in range(16):
                e(f"v_mul_f32 v{G+r}, v{G+r}, v{U+r}")
            for r in range(8):
                e(f"v_cvt_pk_bf16_f32 v{U+r}, v{G+2*r}, v{G+2*r+1}")
            so = "s59" if t == 0 else "s75"
            e(f"buffer_store_dwordx4 {vr(U,4)}, v2, s[48:51], {so} offen")
            e(f"buffer_store_dwordx4 {vr(U+4,4)}, v2, s[48:51], {so} offen offset:1024")
    else:
        e("s_lshl_b32 s59, s60, 5")
        e("s_sub_u32 s75, s56, 14")
        e("s_lshl_b32 s75, s75, 4")
        e("s_add_u32 s59, s59, s75")
        e("s_lshl_b32 s75, s61, 1")
        e("s_add_u32 s59, s59, s75")
        e("s_lshl_b32 s59, s59, 10")
        e(f"s_add_u32 s59, s59, {WS_QF}")
        e(f"s_mov_b32 s76, {fbits(0.25 * LOG2E)}")
        for m in range(2):
            for t in range(2):
                A = ACC + 32 * m + 16 * t
                for r in range(16):
                    e(f"v_mul_f32 v{A+r}, s76, v{A+r}")
                for r in range(8):
                    e(f"v_cvt_pk_bf16_f32 v{A+r}, v{A+2*r}, v{A+2*r+1}")
                e(f"s_add_u32 s75, s59, {(t * 32 + m * 8) * 1024}")
                e(f"buffer_store_dwordx4 {vr(A,4)}, v2, s[48:51], s75 offen")
                e(f"buffer_store_dwordx4 {vr(A+4,4)}, v2, s[48:51], s75 offen offset:1024")
        e("s_cmp_eq_u32 s74, 4")
        e("s_cbranch_scc1 K1_KVDONE")
        e("s_and_b32 s75, s74, 1")
        e("s_add_u32 s60, s60, s75")
        e("s_cmp_ge_u32 s74, 2")
        e("s_cbranch_scc1 K1_VEP")
        K = KACC + 8
        e(f"v_mul_f32 v224, v{K}, v{K}")
        for r in range(1, 8):
            e(f"v_fmac_f32 v224, v{K+r}, v{K+r}")
        for r in range(4):
            e(f"v_cvt_pk_bf16_f32 v{KACC+r}, v{K+2*r}, v{K+2*r+1}")
        e("v_and_b32 v3, 0x33, v1")
        e("v_bfe_u32 v4, v1, 2, 1")
        e("v_lshl_add_u32 v3, v4, 3, v3")
        e("v_bfe_u32 v4, v1, 3, 1")
        e("v_lshl_add_u32 v3, v4, 2, v3")
        e("v_lshlrev_b32 v3, 4, v3")
        e("s_lshl_b32 s75, s60, 10")
        e(f"s_add_u32 s75, s75, {WS_KF}")
        e(f"buffer_store_dwordx4 {vr(KACC,4)}, v3, s[48:51], s75 offen")
        allreduce(e, "v_add_f32", 224, 225, 5, 6)
        allreduce(e, "v_max_f32", 224, 225, 0, 5)
        e("s_lshl_b32 s75, s60, 2")
        e(f"s_add_u32 s75, s75, {WS_KN}")
        e("v_mov_b32 v3, 0")
        e("s_mov_b64 exec, 1")
        e("buffer_store_dword v224, v3, s[48:51], s75 offen")
        e("s_mov_b64 exec, -1")
        e("s_branch K1_KVDONE")
        e.label("K1_VEP")
        for r in range(8):
            e(f"v_cvt_pk_bf16_f32 v{KACC+r}, v{KACC+2*r}, v{KACC+2*r+1}")
        e("v_lshrrev_b32 v3, 5, v1")
        e("v_and_b32 v4, 15, v1")
        e("v_lshl_add_u32 v3, v3, 4, v4")
        e("v_lshlrev_b32 v3, 4, v3")
        e("s_lshl_b32 s75, s60, 10")
        e(f"s_add_u32 s75, s75, {WS_VF}")
        e("s_mov_b32 exec_lo, 0xffff")
        e("s_mov_b32 exec_hi, 0xffff")
        e(f"buffer_store_dwordx4 {vr(KACC,4)}, v3, s[48:51], s75 offen")
        e(f"buffer_store_dwordx4 {vr(KACC+4,4)}, v3, s[48:51], s75 offen offset:512")
        e("s_mov_b64 exec, -1")
        e.label("K1_KVDONE")


LDS2 = 131072
SAFE_BOUND = 48.0


def gen_k2(e):
    n = "k2_kernel"
    e.raw(f".globl {n}\n.p2align 8\n.type {n},@function\n{n}:")
    e("s_cmp_ge_u32 s2, 256")
    e("s_cbranch_scc1 K2_END")
    e("s_load_dwordx2 s[28:29], s[0:1], 96")
    e("v_lshrrev_b32 v2, 6, v0")
    e("v_and_b32 v1, 63, v0")
    e("v_readfirstlane_b32 s30, v2")
    e("v_lshlrev_b32 v2, 4, v1")
    e("s_lshr_b32 s31, s2, 3")
    e("s_and_b32 s56, s2, 7")
    e("s_lshl_b32 s31, s31, 1")
    e("s_and_b32 s60, s30, 1")
    e("s_add_u32 s31, s31, s60")
    e("s_lshl_b32 s56, s56, 2")
    e("s_lshr_b32 s60, s30, 1")
    e("s_add_u32 s56, s56, s60")
    e("s_lshl_b32 s57, s31, 5")
    e("s_add_u32 s57, s57, s56")
    e("s_lshl_b32 s57, s57, 10")
    e("s_waitcnt lgkmcnt(0)")
    srd(e, 48, 28, WS_SIZE)
    Q = 4; C = 16; O = 32; S = [48, 64]; KF = [80, 84]; VF = [88, 96]; IDX = 8
    e(f"s_add_u32 s60, s57, {WS_QF}")
    e(f"buffer_load_dwordx4 {vr(Q,4)}, v2, s[48:51], s60 offen")
    e("v_lshlrev_b32 v3, 2, v1")
    e(f"s_mov_b32 s60, {WS_KN}")
    e("buffer_load_dword v9, v3, s[48:51], s60 offen")
    e("v_and_b32 v3, 31, v1")
    e("v_lshlrev_b32 v3, 2, v3")
    e("s_lshl_b32 s60, s31, 7")
    e(f"s_add_u32 s60, s60, {WS_G}")
    e("buffer_load_dword v10, v3, s[48:51], s60 offen")
    e("s_lshl_b32 s61, s30, 10")
    for c in range(8):
        for m in range(2):
            e(f"s_add_u32 m0, s61, {m * 65536 + c * 8192}")
            e(f"s_add_u32 s60, s61, {WS_KF + m * 65536 + c * 8192}")
            e("buffer_load_dwordx4 v2, s[48:51], s60 offen lds")
    e(f"v_mov_b32 v{IDX}, 0xdddd")
    for b in range(2):
        for r in range(8):
            e(f"v_mov_b32 v{VF[b]+r}, 0x3f803f80")
    for r in range(16):
        e(f"v_mov_b32 v{O+r}, 0")
    e("v_lshrrev_b32 v3, 5, v1")
    e("v_and_b32 v11, 15, v1")
    e("v_lshl_add_u32 v3, v3, 4, v11")
    e("v_lshlrev_b32 v3, 4, v3")
    e("v_add_u32 v3, 0x10000, v3")
    e("s_mov_b32 s40, 0xffff")
    e("s_mov_b32 s41, 0xffff")
    e("s_waitcnt vmcnt(16)")
    e("v_mov_b32 v11, 0")
    for i in range(4):
        e(f"v_dot2c_f32_bf16 v11, v{Q+i}, v{Q+i}")
    e("s_nop 2")
    allreduce(e, "v_add_f32", 11, 12, 5, 6)
    allreduce(e, "v_max_f32", 9, 12, 0, 6)
    e("v_mul_f32 v11, v11, v9")
    e("v_sqrt_f32 v11, v11")
    e("s_nop 0")
    e(f"v_mul_f32 v11, {fbits(1.02)}, v11")
    e(f"s_mov_b32 s60, {fbits(SAFE_BOUND)}")
    e("v_cmp_nle_f32 vcc, v11, s60")
    e("s_waitcnt vmcnt(14)")
    e("s_barrier")
    e("s_cbranch_vccz K2_FAST")
    e.label("K2_SLOW")
    e("s_waitcnt vmcnt(0)")
    e("s_barrier")
    e("v_mov_b32 v11, 0xff800000")
    e("v_mov_b32 v12, v2")
    e("s_mov_b32 s60, 64")
    e.label("K2_MAXLOOP")
    e(f"ds_read_b128 {vr(KF[0],4)}, v12")
    e("v_add_u32 v12, 0x400, v12")
    e("s_waitcnt lgkmcnt(0)")
    e(f"v_mfma_f32_32x32x16_bf16 {vr(S[0],16)}, {vr(KF[0],4)}, {vr(Q,4)}, 0")
    e("s_nop 15")
    for r in range(8):
        e(f"v_max3_f32 v11, v11, v{S[0]+2*r}, v{S[0]+2*r+1}")
    e("s_sub_u32 s60, s60, 1")
    e("s_cmp_lg_u32 s60, 0")
    e("s_cbranch_scc1 K2_MAXLOOP")
    allreduce(e, "v_max_f32", 11, 12, 5, 6)
    e("s_mov_b32 s42, 0")
    e("s_branch K2_GO")
    e.label("K2_FAST")
    e("s_mov_b32 s42, 1")
    e.label("K2_GO")
    for r in range(16):
        e(f"v_sub_f32 v{C+r}, 0, v11")

    def rdK(t, b):
        e(f"ds_read_b128 {vr(KF[b],4)}, v2 offset:{t*1024}")
    def rdV(t, b):
        e("s_mov_b64 exec, s[40:41]")
        e(f"ds_read_b128 {vr(VF[b],4)}, v3 offset:{t*1024}")
        e(f"ds_read_b128 {vr(VF[b]+4,4)}, v3 offset:{t*1024+512}")
        e("s_mov_b64 exec, -1")
    def qk(b):
        e(f"v_mfma_f32_32x32x16_bf16 {vr(S[b],16)}, {vr(KF[b],4)}, {vr(Q,4)}, {vr(C,16)}")
    def sp(b, half):
        e(f"v_smfmac_f32_32x32x32_bf16 {vr(O,16)}, {vr(VF[b]+4*half,4)}, {vr(S[b]+8*half,8)}, v{IDX}")
    def ex(b, lo, hi):
        for r in range(lo, hi):
            e(f"v_exp_f32 v{S[b]+r}, v{S[b]+r}")

    rdK(0, 0)
    rdV(0, 0)
    rdK(1, 1)
    e("s_waitcnt lgkmcnt(3)")
    qk(0)
    e("s_nop 15")
    for t in range(64):
        b = t & 1
        if t == 6:
            e("s_cmp_eq_u32 s42, 0")
            e("s_cbranch_scc1 K2_NOBAR")
            e("s_waitcnt vmcnt(0)")
            e("s_barrier")
            e.label("K2_NOBAR")
        if t + 1 < 64:
            e("s_waitcnt lgkmcnt(0)")
            qk(b ^ 1)
        else:
            e("s_waitcnt lgkmcnt(0)")
            e("s_nop 0")
        if t > 0:
            sp(b ^ 1, 1) if False else None
        ex(b, 0, 4)
        if t + 2 < 64:
            rdK(t + 2, b)
        if t + 1 < 64:
            rdV(t + 1, b ^ 1)
        ex(b, 4, 10)
        sp(b, 0)
        ex(b, 10, 16)
        e("s_nop 1")
        sp(b, 1)
    e("s_nop 15")
    e(f"v_rcp_f32 v11, v{O+8}")
    e("s_nop 0")
    e("v_mul_f32 v11, v11, v10")
    for r in range(8):
        e(f"v_mul_f32 v{O+r}, v{O+r}, v11")
    for r in range(4):
        e(f"v_cvt_pk_bf16_f32 v{O+r}, v{O+2*r}, v{O+2*r+1}")
    e(f"s_add_u32 s60, s57, {WS_OF}")
    e(f"buffer_store_dwordx4 {vr(O,4)}, v2, s[48:51], s60 offen")
    e.label("K2_END")
    e("s_endpgm")


LDS3 = 8 * 16384


def gen_k3(e):
    n = "k3_kernel"
    e.raw(f".globl {n}\n.p2align 8\n.type {n},@function\n{n}:")
    e("s_cmp_ge_u32 s2, 256")
    e("s_cbranch_scc1 K3_END")
    e("s_load_dwordx2 s[24:25], s[0:1], 80")
    e("s_load_dwordx2 s[28:29], s[0:1], 96")
    e("v_lshrrev_b32 v2, 6, v0")
    e("v_and_b32 v1, 63, v0")
    e("v_readfirstlane_b32 s30, v2")
    e("v_lshlrev_b32 v2, 4, v1")
    e("s_and_b32 s60, s2, 7")
    e("s_lshr_b32 s61, s2, 3")
    e("s_lshl_b32 s31, s60, 2")
    e("s_and_b32 s60, s61, 3")
    e("s_add_u32 s31, s31, s60")
    e("s_lshr_b32 s56, s61, 2")
    e("s_waitcnt lgkmcnt(0)")
    srd(e, 48, 28, WS_SIZE)
    srd(e, 52, 24, 2048 * 1024)
    e("s_mul_i32 s40, s31, 224")
    e("s_mul_i32 s60, s30, 14")
    e("s_add_u32 s40, s40, s60")
    e("s_lshl_b32 s40, s40, 10")
    e(f"s_add_u32 s40, s40, {WS_HF}")
    e(f"s_add_u32 s41, s40, {112*1024}")
    e("s_lshl_b32 s42, s31, 6")
    e("s_lshl_b32 s61, s30, 2")
    e("s_add_u32 s42, s42, s61")
    e("s_lshl_b32 s42, s42, 10")
    e(f"s_add_u32 s42, s42, {WS_OF}")
    e(f"s_add_u32 s43, s42, {32*1024}")
    e("s_mul_i32 s44, s56, 144")
    e("s_add_u32 s45, s44, s61")
    e("s_add_u32 s44, s44, s60")
    e("s_lshl_b32 s44, s44, 11")
    e(f"s_add_u32 s44, s44, {WS_WF}")
    e("s_lshl_b32 s45, s45, 11")
    e(f"s_add_u32 s45, s45, {WS_WF + 112*2048}")
    e("v_and_b32 v3, 31, v1")
    e("v_lshlrev_b32 v3, 2, v3")
    e("s_lshl_b32 s60, s31, 8")
    e(f"s_add_u32 s60, s60, {WS_G}")
    e("buffer_load_dword v4, v3, s[48:51], s60 offen")
    e("buffer_load_dword v5, v3, s[48:51], s60 offen offset:128")
    ACC = 16
    FB = 80
    NB = 10

    def loads(ks):
        f = FB + 16 * (ks % NB)
        if ks < 14:
            hb, wb, k = (40, 41), 44, ks
        else:
            hb, wb, k = (42, 43), 45, ks - 14
        e(f"s_add_u32 s60, s{wb}, {k*2048}")
        e(f"buffer_load_dwordx4 {vr(f,4)}, v2, s[48:51], s60 offen")
        e(f"buffer_load_dwordx4 {vr(f+4,4)}, v2, s[48:51], s60 offen offset:1024")
        for t in range(2):
            e(f"s_add_u32 s60, s{hb[t]}, {k*1024}")
            e(f"buffer_load_dwordx4 {vr(f+8+4*t,4)}, v2, s[48:51], s60 offen")
    for ks in range(NB):
        loads(ks)
    for ks in range(18):
        issued = min(18, ks + NB)
        e(f"s_waitcnt vmcnt({4*(issued - ks - 1)})")
        f = FB + 16 * (ks % NB)
        if ks == 14:
            e("s_nop 15")
            e("v_sub_f32 v4, 1.0, v4")
            e("v_sub_f32 v5, 1.0, v5")
            for m in range(2):
                for t in range(2):
                    for r in range(16):
                        a = ACC + 32 * m + 16 * t + r
                        e(f"v_mul_f32 v{a}, v{a}, v{4+t}")
            e("s_nop 1")
        for m in range(2):
            for t in range(2):
                d = ACC + 32 * m + 16 * t
                c = "0" if ks == 0 else vr(d, 16)
                e(f"v_mfma_f32_32x32x16_bf16 {vr(d,16)}, {vr(f+4*m,4)}, {vr(f+8+4*t,4)}, {c}")
        if ks + NB < 18:
            loads(ks + NB)
    e("s_nop 15")
    e("s_lshl_b32 s60, s30, 14")
    e("v_add_u32 v6, s60, v2")
    for q in range(16):
        e(f"ds_write_b128 v6, {vr(ACC+4*q,4)} offset:{q*1024}")
    e("s_waitcnt lgkmcnt(0)")
    e("s_barrier")
    e("s_lshl_b32 s60, s30, 10")
    e("v_add_u32 v6, s60, v2")
    e("v_add_u32 v7, 0x10000, v6")
    for p in range(8):
        a = 6 if p < 4 else 7
        for m in range(2):
            e(f"ds_read_b128 {vr(FB+8*p+4*m,4)}, v{a} offset:{(p&3)*16384 + m*8192}")
    for p in range(1, 8):
        e(f"s_waitcnt lgkmcnt({2*(7-p)})")
        for r in range(8):
            e(f"v_add_f32 v{FB+r}, v{FB+r}, v{FB+8*p+r}")
    for r in range(4):
        e(f"v_cvt_pk_bf16_f32 v{FB+8+r}, v{FB+r}, v{FB+4+r}")
    e("v_and_b32 v3, 31, v1")
    e("v_lshlrev_b32 v3, 10, v3")
    e("v_lshrrev_b32 v4, 5, v1")
    e("v_lshl_add_u32 v3, v4, 4, v3")
    e("s_lshl_b32 s60, s31, 16")
    e("s_lshr_b32 s61, s30, 2")
    e("s_lshl_b32 s61, s61, 15")
    e("s_add_u32 s60, s60, s61")
    e("s_lshl_b32 s61, s56, 7")
    e("s_add_u32 s60, s60, s61")
    e("s_and_b32 s61, s30, 3")
    e("s_lshl_b32 s61, s61, 5")
    e("s_add_u32 s60, s60, s61")
    e(f"buffer_store_dwordx4 {vr(FB+8,4)}, v3, s[52:55], s60 offen")
    e.label("K3_END")
    e("s_endpgm")


def kd(name, vgpr, sgpr=96):
    acc = (vgpr + 3) // 4 * 4
    return f""".p2align 6
.amdhsa_kernel {name}
  .amdhsa_next_free_vgpr {vgpr}
  .amdhsa_next_free_sgpr {sgpr}
  .amdhsa_accum_offset {acc}
  .amdhsa_group_segment_fixed_size 0
  .amdhsa_kernarg_size 104
  .amdhsa_user_sgpr_count 2
  .amdhsa_user_sgpr_kernarg_segment_ptr 1
  .amdhsa_system_sgpr_workgroup_id_x 1
.end_amdhsa_kernel
"""


def main(out):
    ref = open(f"cdna_kernels/{NAME}.s.ref").read().split("\n")
    hdr = [l for l in ref if l.startswith(";") and "@launch" not in l and "Override" not in l and "grid=ceil" not in l]
    e = Asm()
    gen_k1(e)
    gen_k2(e)
    gen_k3(e)
    s = "\n".join(hdr) + "\n"
    s += f"; @launch kernel=k1_kernel grid=(256,1,1) block=(512,1,1) lds={LDS1}\n"
    s += f"; @launch kernel=k2_kernel grid=(256,1,1) block=(512,1,1) lds={LDS2}\n"
    s += f"; @launch kernel=k3_kernel grid=(256,1,1) block=(512,1,1) lds={LDS3}\n"
    s += '.amdgcn_target "amdgcn-amd-amdhsa--gfx950"\n.text\n'
    s += e.text()
    s += '.section .rodata,"a"\n'
    s += kd("k1_kernel", 232) + kd("k2_kernel", 104) + kd("k3_kernel", 240)
    open(out, "w").write(s)


if __name__ == "__main__":
    main(sys.argv[1] if len(sys.argv) > 1 else f"cdna_kernels/{NAME}.s")
```

```python
import sys, os, struct

NAME = "gated_mix__grouped_kv_mqa__glu_gated_glu__prompt"

WS_QF = 0
WS_OF = 2 << 20
WS_KV = 4 << 20
WS_KN = WS_KV + 131072
WS_G = WS_KN + 4096
WS_FL = WS_G + 8192
WS_WF = 5 << 20
WS_HF = 8 << 20
WS_ST = 15 << 20
WS_SIZE = 16 << 20
OOB = 0x7f000000

LOG2E = 1.4426950408889634
STAMP = os.environ.get("STAMP", "0") == "1"
OPT = set(os.environ.get("OPT", "").split(","))


def fbits(x):
    return "0x%08x" % struct.unpack("<I", struct.pack("<f", x))[0]


class Asm:
    def __init__(self):
        self.lines = []
        self.vm = []
        self.uid = 0
        self.nbar = 0
    def __call__(self, s):
        self.lines.append("    " + s)
    def label(self, s):
        self.lines.append(s + ":")
    def raw(self, s):
        self.lines.append(s)
    def vmem(self, s, tag):
        self(s)
        self.vm.append(tag)
    def wait_vm(self, tag):
        idxs = [i for i, t in enumerate(self.vm) if t == tag]
        if not idxs:
            return
        idx = max(idxs)
        n = len(self.vm) - 1 - idx
        assert n <= 63
        self(f"s_waitcnt vmcnt({n})")
        self.vm = self.vm[idx + 1:]
    def wait_all(self):
        self("s_waitcnt vmcnt(0)")
        self.vm = []
    def bar(self):
        self("s_barrier")
        self.nbar += 1
    def newlabel(self, p):
        self.uid += 1
        return f"{p}_{self.uid}"
    def text(self):
        return "\n".join(self.lines) + "\n"


def stamp(e, i, real=False):
    if not STAMP:
        return
    e(("s_memrealtime" if real else "s_memtime") + " s[78:79]")
    e("s_waitcnt lgkmcnt(0)")
    e(f"s_mov_b32 s{80+i}, s78")


def stamp_flush(e, n):
    if not STAMP:
        return
    e("s_lshl_b32 s78, s2, 4")
    e("s_add_u32 s78, s78, s30")
    e("s_lshl_b32 s78, s78, 6")
    e(f"s_add_u32 s78, s78, {WS_ST}")
    e("v_mov_b32 v0, 0")
    e("s_mov_b64 exec, 1")
    for i in range(n):
        e(f"v_mov_b32 v1, s{80+i}")
        e(f"buffer_store_dword v1, v0, s[48:51], s78 offen offset:{4*i}")
    e("s_mov_b64 exec, -1")


def vr(a, n=1):
    return f"v{a}" if n == 1 else f"v[{a}:{a+n-1}]"


def srd(e, d, base, size):
    e(f"s_mov_b32 s{d}, s{base}")
    e(f"s_mov_b32 s{d+1}, s{base+1}")
    e(f"s_mov_b32 s{d+2}, {size}")
    e(f"s_mov_b32 s{d+3}, 0x00020000")


def allreduce(e, op, x, t, lo=0, hi=6):
    dpp = ["quad_perm:[1,0,3,2]", "quad_perm:[2,3,0,1]", "row_half_mirror", "row_mirror"]
    for b in range(lo, min(hi, 4)):
        e("s_nop 1")
        e(f"{op}_dpp v{x}, v{x}, v{x} {dpp[b]} row_mask:0xf bank_mask:0xf")
    for b, ins in ((4, "v_permlane16_swap_b32"), (5, "v_permlane32_swap_b32")):
        if lo <= b < hi:
            e(f"v_mov_b32 v{t}, v{x}")
            e("s_nop 1")
            e(f"{ins} v{x}, v{t}")
            e("s_nop 1")
            e(f"{op} v{x}, v{x}, v{t}")


X_ST = 16384
W_BASE = 3 * X_ST
KVS_BASE = W_BASE + 3 * 32768
LDS_TOTAL = KVS_BASE + 16384
SAFE_BOUND = 48.0
KV_PIECE = [32768, 114688, 131072, 147456, 0, 49152, 65536, 16384]


def spin_guard(e, done):
    e("s_cmp_eq_u32 s100, 0")
    e(f"s_cbranch_scc1 {done}")
    e("s_sub_u32 s100, s100, 1")


def spin(e, load, check, sleep):
    lo, done = e.newlabel("SPIN"), e.newlabel("SPIND")
    e.label(lo)
    load()
    e.wait_all()
    check()
    e("s_nop 4")
    e(f"s_cbranch_vccz {done}")
    spin_guard(e, done)
    e(f"s_sleep {sleep}")
    e(f"s_branch {lo}")
    e.label(done)


def prologue(e):
    n = NAME + "_kernel"
    e.raw(f".globl {n}\n.p2align 8\n.type {n},@function\n{n}:")
    e("s_cmp_ge_u32 s2, 256")
    e("s_cbranch_scc1 K_END")
    stamp(e, 0, True); stamp(e, 1)
    e("s_load_dwordx16 s[4:19], s[0:1], 0")
    e("s_load_dwordx8 s[20:27], s[0:1], 64")
    e("s_load_dwordx2 s[28:29], s[0:1], 96")
    e("s_mov_b32 s100, %d" % (0 if "nospin" in OPT else 0x20000))
    e("v_lshrrev_b32 v2, 6, v0")
    e("v_and_b32 v1, 63, v0")
    e("v_readfirstlane_b32 s30, v2")
    e("v_lshlrev_b32 v2, 4, v1")
    e("v_lshlrev_b32 v3, 2, v1")
    e("v_lshrrev_b32 v6, 4, v1")
    e("s_and_b32 s57, s2, 7")
    e("s_lshr_b32 s59, s2, 3")
    e("s_and_b32 s94, s59, 7")
    e("s_lshr_b32 s95, s59, 3")
    e("s_and_b32 s31, s57, 1")
    e("s_lshl_b32 s31, s31, 3")
    e("s_add_u32 s31, s31, s94")
    e("s_lshr_b32 s56, s57, 1")
    e("s_lshl_b32 s56, s56, 2")
    e("s_add_u32 s56, s56, s95")
    e("s_and_b32 s76, s57, 3")
    e("s_lshl_b32 s76, s76, 3")
    e("s_add_u32 s76, s76, s94")
    e("s_lshr_b32 s77, s57, 2")
    e("s_lshl_b32 s77, s77, 2")
    e("s_add_u32 s77, s77, s95")
    e("s_cmp_lt_u32 s30, 8")
    e("s_cbranch_scc1 COMPUTE")


def compute(e):
    e.label("COMPUTE")
    e.vm = []
    e.nbar = 0
    e("s_lshl_b32 s96, s76, 1")
    e("s_and_b32 s60, s30, 1")
    e("s_add_u32 s96, s96, s60")
    e("s_lshl_b32 s96, s96, 5")
    e("s_lshl_b32 s60, s77, 2")
    e("s_add_u32 s96, s96, s60")
    e("s_lshr_b32 s60, s30, 1")
    e("s_add_u32 s96, s96, s60")
    e("s_lshl_b32 s96, s96, 10")
    e("s_lshl_b32 s97, s31, 1")
    e("s_lshr_b32 s60, s30, 2")
    e("s_add_u32 s97, s97, s60")
    e("s_lshl_b32 s97, s97, 4")
    e("s_add_u32 s97, s97, s56")
    e("s_lshl_b32 s97, s97, 2")
    e("s_and_b32 s60, s30, 3")
    e("s_add_u32 s97, s97, s60")
    e("s_lshl_b32 s97, s97, 2")
    e(f"s_add_u32 s97, s97, {WS_FL}")
    e("v_and_b32 v14, 31, v1")
    e("v_lshrrev_b32 v15, 5, v1")
    e("v_lshrrev_b32 v16, 1, v14")
    e("v_and_b32 v16, 7, v16")
    e("v_xor_b32 v16, v16, v15")
    e("s_lshr_b32 s60, s30, 2")
    e("s_lshl_b32 s60, s60, 13")
    e("v_lshlrev_b32 v17, 7, v14")
    e("v_add_u32 v17, s60, v17")
    for s in range(4):
        e(f"v_xor_b32 v18, {2*s}, v16")
        e(f"v_lshl_add_u32 v{10+s}, v18, 4, v17")
    e("v_bfe_u32 v16, v1, 2, 2")
    e("v_lshl_add_u32 v17, v15, 3, v16")
    e("v_bfe_u32 v18, v1, 4, 1")
    e("v_bfe_u32 v19, v1, 1, 1")
    e("v_lshl_add_u32 v18, v18, 1, v19")
    e("s_and_b32 s60, s30, 3")
    e("s_lshl_b32 s60, s60, 2")
    e("v_add_u32 v18, s60, v18")
    e("v_lshlrev_b32 v19, 2, v16")
    e("v_xor_b32 v18, v18, v19")
    e("v_lshlrev_b32 v18, 4, v18")
    e("v_lshl_add_u32 v14, v17, 8, v18")
    e("v_and_b32 v19, 1, v1")
    e("v_lshl_add_u32 v14, v19, 3, v14")
    e(f"v_add_u32 v14, {W_BASE}, v14")
    e("v_add_u32 v15, 0x10000, v14")
    for r in range(4):
        e(f"v_mov_b32 v{56+r}, -1")
    e("v_mov_b32 v60, 0")
    e("s_waitcnt lgkmcnt(0)")
    srd(e, 48, 28, WS_SIZE)
    stamp(e, 2)
    if "nopoison" not in OPT:
        e(f"s_add_u32 s60, s96, {WS_QF}")
        e.vmem("buffer_store_dwordx4 v[56:59], v2, s[48:51], s60 offen sc1", "poison")
        e(f"s_add_u32 s60, s96, {WS_OF}")
        e.vmem("buffer_store_dwordx4 v[56:59], v2, s[48:51], s60 offen sc1", "poison")
    e("s_mov_b64 exec, 1")
    e.vmem("buffer_store_dword v60, v60, s[48:51], s97 offen sc1", "poison")
    e("s_mov_b64 exec, -1")

    ACC = 64
    FR = [24, 40]

    def reads(kc, s, fb):
        st = kc % 3
        f = FR[fb]
        if "noread" in OPT: return
        for m in range(2):
            for rho in range(2):
                off = st * 32768 + m * 16384 + (16 * s + 4 * rho) * 256
                a = 14
                if off >= 65536:
                    off -= 65536
                    a = 15
                e(f"ds_read_b64_tr_b16 {vr(f + 4*m + 2*rho, 2)}, v{a} offset:{off}")
        for t in range(2):
            e(f"ds_read_b128 {vr(f + 8 + 4*t, 4)}, v{10+s} offset:{st * X_ST + t * 4096}")

    def mfmas(fb, first):
        f = FR[fb]
        for m in range(2):
            for t in range(2):
                d = ACC + 32 * m + 16 * t
                c = "0" if first else vr(d, 16)
                e(f"v_mfma_f32_32x32x16_bf16 {vr(d,16)}, {vr(f+4*m,4)}, {vr(f+8+4*t,4)}, {c}")

    e.bar()
    stamp(e, 3)
    reads(0, 0, 0)
    for kc in range(8):
        for s in range(4):
            fb = s & 1
            if s < 3:
                reads(kc, s + 1, fb ^ 1)
                e("s_waitcnt lgkmcnt(6)")
            else:
                e("s_waitcnt lgkmcnt(0)")
                if kc == 2:
                    e.wait_all()
                e.bar()
                if "fine" in OPT and kc < 7: stamp(e, 4 + kc)
                if kc < 7:
                    mark = len(e.lines)
                    reads(kc + 1, 0, fb ^ 1)
                    rl = e.lines[mark:]; del e.lines[mark:]
                    mfmas(fb, False)
                    ml = e.lines[mark:]; del e.lines[mark:]
                    for i in range(4):
                        e.lines.append(ml[i]); e.lines.extend(rl[2*i:2*i+2])
                    continue
            mfmas(fb, kc == 0 and s == 0)
        if kc == 3:
            if "fine" not in OPT: stamp(e, 4)
    if "fine" not in OPT: stamp(e, 5)
    e(f"s_mov_b32 s60, {WS_KN}")
    e.vmem("buffer_load_dword v9, v3, s[48:51], s60 offen sc1", "kn")
    e.vmem("buffer_load_dword v5, v3, s[48:51], s60 offen offset:256 sc1", "kn")
    e("s_lshl_b32 s60, s31, 2")
    e("s_lshr_b32 s61, s30, 2")
    e("s_lshl_b32 s61, s61, 1")
    e("s_add_u32 s60, s60, s61")
    e("s_and_b32 s61, s30, 3")
    e("s_nop 7")
    HP = 128
    e("s_cmp_ge_u32 s56, 14")
    e("s_cbranch_scc1 EPI_Q")
    e("s_mul_i32 s64, s60, 112")
    e("s_lshl_b32 s62, s56, 2")
    e("s_add_u32 s62, s62, s61")
    e("s_lshl_b32 s62, s62, 1")
    e("s_add_u32 s64, s64, s62")
    e("s_lshl_b32 s64, s64, 10")
    e(f"s_add_u32 s64, s64, {WS_HF}")
    e(f"s_add_u32 s65, s64, {112*1024}")
    e(f"s_mov_b32 s63, {fbits(-LOG2E)}")
    for t in range(2):
        G = ACC + 16 * t
        U = ACC + 32 + 16 * t
        for r in range(16):
            e(f"v_mul_f32 v{G+r}, s63, v{G+r}")
        for r in range(16):
            e(f"v_exp_f32 v{G+r}, v{G+r}")
        for r in range(16):
            e(f"v_add_f32 v{G+r}, 1.0, v{G+r}")
        for r in range(16):
            e(f"v_rcp_f32 v{G+r}, v{G+r}")
        for r in range(16):
            e(f"v_mul_f32 v{G+r}, v{G+r}, v{U+r}")
        for r in range(8):
            e(f"v_cvt_pk_bf16_f32 v{HP+8*t+r}, v{G+2*r}, v{G+2*r+1}")
    e("s_branch EPI_DONE")
    e.label("EPI_Q")
    e("s_lshl_b32 s59, s60, 5")
    e("s_sub_u32 s62, s56, 14")
    e("s_lshl_b32 s62, s62, 4")
    e("s_add_u32 s59, s59, s62")
    e("s_lshl_b32 s62, s61, 1")
    e("s_add_u32 s59, s59, s62")
    e("s_lshl_b32 s59, s59, 10")
    e(f"s_add_u32 s59, s59, {WS_QF}")
    e(f"s_mov_b32 s63, {fbits(0.25 * LOG2E)}")
    e(f"s_mov_b32 s64, {OOB}")
    e(f"s_mov_b32 s65, {OOB}")
    for m in range(2):
        for t in range(2):
            A = ACC + 32 * m + 16 * t
            for r in range(16):
                e(f"v_mul_f32 v{A+r}, s63, v{A+r}")
            for r in range(8):
                e(f"v_cvt_pk_bf16_f32 v{A+r}, v{A+2*r}, v{A+2*r+1}")
            for r in range(8):
                e(f"v_min_u32 v{A+r}, -2, v{A+r}")
            e(f"s_add_u32 s62, s59, {(t * 32 + m * 8) * 1024}")
            e(f"buffer_store_dwordx4 {vr(A,4)}, v2, s[48:51], s62 offen sc1")
            e(f"buffer_store_dwordx4 {vr(A+4,4)}, v2, s[48:51], s62 offen offset:1024 sc1")
    e.label("EPI_DONE")
    if "fine" not in OPT: stamp(e, 6)

    Q = 16; IDX = 8; C = 24; O = 40; S = [56, 72]; KF = [88, 92]; VF = [96, 104]
    e(f"s_add_u32 s62, s96, {WS_QF}")

    def qload():
        e(f"buffer_load_dwordx4 {vr(Q,4)}, v2, s[48:51], s62 offen sc1")
    def qcheck():
        e(f"v_max_u32 v11, v{Q}, v{Q+1}")
        e(f"v_max3_u32 v11, v11, v{Q+2}, v{Q+3}")
        e("v_cmp_eq_u32 vcc, -1, v11")
    spin(e, qload, qcheck, 1)
    if "fine" not in OPT: stamp(e, 7)
    for t in range(2):
        e.vmem(f"buffer_store_dwordx4 {vr(HP+8*t,4)}, v2, s[48:51], s{64+t} offen sc1", "h")
        e.vmem(f"buffer_store_dwordx4 {vr(HP+8*t+4,4)}, v2, s[48:51], s{64+t} offen offset:1024 sc1", "h")
    e("v_max_f32 v9, v9, v5")
    e("v_mov_b32 v11, 0")
    for i in range(4):
        e(f"v_dot2c_f32_bf16 v11, v{Q+i}, v{Q+i}")
    e(f"v_mov_b32 v{IDX}, 0xdddd")
    for b in range(2):
        for r in range(8):
            e(f"v_mov_b32 v{VF[b]+r}, 0x3f803f80")
    for r in range(16):
        e(f"v_mov_b32 v{O+r}, 0")
    allreduce(e, "v_max_f32", 9, 12, 0, 6)
    allreduce(e, "v_add_f32", 11, 12, 5, 6)
    e("s_mov_b32 s40, 0xffff")
    e("s_mov_b32 s41, 0xffff")
    e("v_add_u32 v13, 0x10000, v2")
    e("v_add_u32 v4, 0x20000, v2")
    e("v_mul_f32 v11, v11, v9")
    e("v_sqrt_f32 v11, v11")
    e("s_nop 0")
    e(f"v_mul_f32 v11, {fbits(1.02)}, v11")
    e(f"s_mov_b32 s60, {fbits(SAFE_BOUND)}")
    e("v_cmp_nle_f32 vcc, v11, s60")
    e.bar()
    e("s_nop 4")
    e("s_cbranch_vccz ATT_GO")
    e("v_mov_b32 v11, 0xff800000")
    e("v_mov_b32 v12, v2")
    e("s_mov_b32 s60, 64")
    e.label("MAXLOOP")
    e(f"ds_read_b128 {vr(KF[0],4)}, v12")
    e("s_movk_i32 s61, 0x800")
    e("s_cmp_eq_u32 s60, 25")
    e("s_cselect_b32 s61, 0x8800, s61")
    e("v_add_u32 v12, s61, v12")
    e("s_waitcnt lgkmcnt(0)")
    e(f"v_mfma_f32_32x32x16_bf16 {vr(S[0],16)}, {vr(KF[0],4)}, {vr(Q,4)}, 0")
    e("s_nop 15")
    for r in range(8):
        e(f"v_max3_f32 v11, v11, v{S[0]+2*r}, v{S[0]+2*r+1}")
    e("s_sub_u32 s60, s60, 1")
    e("s_cmp_lg_u32 s60, 0")
    e("s_cbranch_scc1 MAXLOOP")
    allreduce(e, "v_max_f32", 11, 12, 5, 6)
    e.label("ATT_GO")

    def laddr(t):
        a = KV_PIECE[t >> 3] + (t & 7) * 2048
        return (("v2", "v13", "v4")[a >> 16], a & 0xffff)
    def rdK(t, b):
        a, o = laddr(t)
        e(f"ds_read_b128 {vr(KF[b],4)}, {a} offset:{o}")
    def rdV(t, b):
        a, o = laddr(t)
        e("s_mov_b64 exec, s[40:41]")
        e(f"ds_read_b128 {vr(VF[b],4)}, {a} offset:{o+1024}")
        e(f"ds_read_b128 {vr(VF[b]+4,4)}, {a} offset:{o+1280}")
        e("s_mov_b64 exec, -1")
    def qk(b):
        e(f"v_mfma_f32_32x32x16_bf16 {vr(S[b],16)}, {vr(KF[b],4)}, {vr(Q,4)}, {vr(C,16)}")
    def sp(b, half):
        e(f"v_smfmac_f32_32x32x32_bf16 {vr(O,16)}, {vr(VF[b]+4*half,4)}, {vr(S[b]+8*half,8)}, v{IDX}")
    def ex(b, lo, hi):
        for r in range(lo, hi):
            e(f"v_exp_f32 v{S[b]+r}, v{S[b]+r}")

    rdK(0, 0)
    rdV(0, 0)
    rdK(1, 1)
    for r in range(16):
        e(f"v_sub_f32 v{C+r}, 0, v11")
    if "fine" not in OPT: stamp(e, 8)
    e("s_waitcnt lgkmcnt(3)")
    qk(0)
    e("s_nop 15")
    for t in range(64):
        b = t & 1
        ex(b, 0, 2)
        if t > 0:
            sp(b ^ 1, 1)
        ex(b, 2, 6)
        e("s_waitcnt lgkmcnt(0)")
        if t + 1 < 64:
            qk(b ^ 1)
        ex(b, 6, 8)
        if t + 2 < 64:
            rdK(t + 2, b)
        ex(b, 8, 9)
        if t + 1 < 64:
            rdV(t + 1, b ^ 1)
        ex(b, 9, 11)
        sp(b, 0)
        ex(b, 11, 16)
        if t == int(os.environ.get("TFLAG", "3")):
            e.wait_all()
            e("v_mov_b32 v12, 1")
            e("v_mov_b32 v10, 0")
            e("s_mov_b64 exec, 1")
            e.vmem("buffer_store_dword v12, v10, s[48:51], s97 offen sc1", "hflag")
            e("s_mov_b64 exec, -1")
    e("s_nop 1")
    sp(1, 1)
    WOB = 56
    OB = 120
    AC2 = 24
    e("s_mul_i32 s36, s77, 144")
    e("s_lshr_b32 s60, s30, 1")
    e("s_lshl_b32 s60, s60, 3")
    e("s_add_u32 s36, s36, s60")
    e("s_lshl_b32 s36, s36, 11")
    e(f"s_add_u32 s36, s36, {WS_WF + 112*2048}")
    e("s_lshl_b32 s34, s76, 1")
    e("s_and_b32 s61, s30, 1")
    e("s_add_u32 s34, s34, s61")
    e("s_lshl_b32 s34, s34, 5")
    e("s_add_u32 s34, s34, s60")
    e("s_lshl_b32 s34, s34, 10")
    e(f"s_add_u32 s34, s34, {WS_OF}")
    e("s_add_u32 s35, s34, 4096")
    e("s_nop 3")
    if "fine" not in OPT: stamp(e, 9)
    e(f"v_rcp_f32 v11, v{O+8}")
    e("s_nop 0")
    for r in range(8):
        e(f"v_mul_f32 v{O+r}, v{O+r}, v11")
    for r in range(4):
        e(f"v_cvt_pk_bf16_f32 v{152+r}, v{O+2*r}, v{O+2*r+1}")
    for r in range(4):
        e(f"v_min_u32 v{152+r}, -2, v{152+r}")
    e(f"s_add_u32 s60, s96, {WS_OF}")
    e("buffer_store_dwordx4 v[152:155], v2, s[48:51], s60 offen sc1")
    e.bar()
    for k in range(8):
        e(f"s_add_u32 s60, s36, {k*2048}")
        e(f"buffer_load_dwordx4 {vr(WOB+8*k,4)}, v2, s[48:51], s60 offen sc1")
        e(f"buffer_load_dwordx4 {vr(WOB+8*k+4,4)}, v2, s[48:51], s60 offen offset:1024 sc1")
    e("v_and_b32 v10, 31, v1")
    e("v_lshlrev_b32 v12, 2, v10")
    e("s_lshl_b32 s60, s76, 8")
    e("s_lshr_b32 s61, s30, 2")
    e("s_lshl_b32 s61, s61, 7")
    e("s_add_u32 s60, s60, s61")
    e(f"s_add_u32 s60, s60, {WS_G}")
    e("buffer_load_dword v9, v12, s[48:51], s60 offen sc1")

    def oload():
        for k in range(8):
            e(f"buffer_load_dwordx4 {vr(OB+4*k,4)}, v2, s[48:51], s{34+(k>>2)} offen offset:{(k&3)*1024} sc1")
    def ocheck():
        e(f"v_max_u32 v11, v{OB}, v{OB+1}")
        for r in range(1, 16):
            e(f"v_max3_u32 v11, v11, v{OB+2*r}, v{OB+2*r+1}")
        e("v_cmp_eq_u32 vcc, -1, v11")
    spin(e, oload, ocheck, 1)
    if "fine" not in OPT: stamp(e, 10)
    for k in range(8):
        for m in range(2):
            d = AC2 + 16 * m
            c = "0" if k == 0 else vr(d, 16)
            e(f"v_mfma_f32_32x32x16_bf16 {vr(d,16)}, {vr(WOB+8*k+4*m,4)}, {vr(OB+4*k,4)}, {c}")
    srd(e, 52, 24, 2048 * 1024)
    e("s_lshr_b32 s60, s30, 1")
    e("s_lshl_b32 s60, s60, 14")
    e("s_and_b32 s61, s30, 1")
    e("s_lshl_b32 s61, s61, 12")
    e("s_add_u32 s60, s60, s61")
    e("v_add_u32 v7, s60, v13")
    e("s_nop 7")
    for m in range(2):
        for jq in range(4):
            e(f"ds_write_b128 v7, {vr(AC2+16*m+4*jq,4)} offset:{m*8192 + jq*1024}")
    e("s_waitcnt lgkmcnt(0)")
    e.bar()
    e("s_lshl_b32 s60, s30, 10")
    e("v_add_u32 v6, s60, v2")
    e("v_add_u32 v7, 0x10000, v6")
    R = 56
    for p in range(8):
        a = 6 if p < 4 else 7
        for m in range(2):
            e(f"ds_read_b128 {vr(R+8*p+4*m,4)}, v{a} offset:{(p&3)*16384 + m*8192}")
    e("v_sub_f32 v8, 1.0, v9")
    e("v_lshlrev_b32 v10, 10, v10")
    e("v_lshrrev_b32 v11, 5, v1")
    e("v_lshl_add_u32 v10, v11, 4, v10")
    e("s_lshl_b32 s60, s76, 16")
    e("s_lshr_b32 s61, s30, 2")
    e("s_lshl_b32 s61, s61, 15")
    e("s_add_u32 s60, s60, s61")
    e("s_lshl_b32 s61, s77, 7")
    e("s_add_u32 s60, s60, s61")
    e("s_and_b32 s61, s30, 3")
    e("s_lshl_b32 s61, s61, 5")
    e("s_add_u32 s60, s60, s61")
    for p in (1, 2, 3, 5, 6, 7):
        e(f"s_waitcnt lgkmcnt({2*(7-p)})")
        base = R if p < 4 else R + 32
        for r in range(8):
            e(f"v_add_f32 v{base+r}, v{base+r}, v{R+8*p+r}")
    for r in range(8):
        e(f"v_mul_f32 v{R+r}, v{R+r}, v8")
    for r in range(8):
        e(f"v_fmac_f32 v{R+r}, v{R+32+r}, v9")
    for r in range(4):
        e(f"v_cvt_pk_bf16_f32 v{R+8+r}, v{R+r}, v{R+4+r}")
    e(f"buffer_store_dwordx4 {vr(R+8,4)}, v10, s[52:55], s60 offen")
    stamp(e, 11)
    if STAMP:
        e("s_waitcnt vmcnt(0)")
    stamp(e, 12); stamp(e, 13, True)
    stamp_flush(e, 14)
    e.label("K_END")
    e("s_endpgm")
    return e.nbar


def helper(e):
    e.vm = []
    e.nbar = 0
    e("s_sub_u32 s3, s30, 8")
    e(f"s_mov_b32 s98, {OOB}")
    e("s_cmp_eq_u32 s3, 0")
    e("s_cselect_b32 s98, 0, s98")
    e("s_mov_b32 s62, 3584")
    e("s_cmp_ge_u32 s56, 14")
    e("s_cselect_b32 s62, 1024, s62")
    e("s_lshl_b32 s63, s56, 8")
    e("s_sub_u32 s60, s56, 14")
    e("s_lshl_b32 s60, s60, 9")
    e("s_cmp_ge_u32 s56, 14")
    e("s_cselect_b32 s63, s60, s63")
    e("s_cselect_b32 s64, 256, 0")
    e("s_add_u32 s64, s64, s63")
    e("s_and_b32 s60, s3, 1")
    e("s_lshl_b32 s60, s60, 2")
    e("v_add_u32 v7, s60, v6")
    e("v_and_b32 v8, 7, v1")
    e("v_xor_b32 v7, v7, v8")
    e("v_lshlrev_b32 v7, 4, v7")
    e("v_lshrrev_b32 v8, 3, v1")
    e("s_lshl_b32 s60, s31, 7")
    e("s_lshl_b32 s61, s3, 3")
    e("s_add_u32 s60, s60, s61")
    e("v_add_u32 v8, s60, v8")
    e("v_lshl_add_u32 v5, v8, 10, v7")
    e("s_lshl_b32 s60, s3, 2")
    e("v_add_u32 v8, s60, v6")
    e("v_mul_lo_u32 v8, v8, s62")
    e("v_lshlrev_b32 v7, 2, v6")
    e("v_and_b32 v10, 15, v1")
    e("v_xor_b32 v7, v7, v10")
    e("v_lshl_add_u32 v9, v7, 4, v8")
    e("s_lshl_b32 s65, s62, 4")
    e("s_lshl_b32 s66, s62, 6")
    e("s_lshl_b32 s67, s3, 10")
    e("s_lshl_b32 s93, s95, 1")
    e("s_add_u32 s93, s93, s94")
    if "norot" in OPT: e("s_mov_b32 s93, 0")
    e("s_waitcnt lgkmcnt(0)")
    stamp(e, 2)
    srd(e, 32, 4, 2048 * 1024)
    srd(e, 48, 28, WS_SIZE)
    e("s_mov_b32 s38, %d" % (512 * 3584))
    e("s_cmp_ge_u32 s56, 14")
    e("s_cselect_b32 s36, s6, s16")
    e("s_cselect_b32 s37, s7, s17")
    e("s_cselect_b32 s40, s6, s18")
    e("s_cselect_b32 s41, s7, s19")
    e("s_cselect_b32 s38, %d, s38" % (512 * 1024))
    e("s_mov_b32 s42, s38")
    e("s_mov_b32 s39, 0x00020000")
    e("s_mov_b32 s43, 0x00020000")

    def dma(kc, parts=(0, 1, 2)):
        st = kc % 3
        if "nodma" in OPT and kc > 0: return
        e(f"s_add_u32 s59, s93, {kc}")
        e("s_and_b32 s59, s59, 7")
        if 0 in parts:
            for n in range(4):
                e(f"s_add_u32 m0, s67, {st * X_ST + n * 4096}")
                e("s_lshl_b32 s60, s59, 7" if n == 0 else "s_add_u32 s60, s60, 0x8000")
                e.vmem("buffer_load_dwordx4 v5, s[32:35], s60 offen lds", f"c{kc}")
        e("s_mul_i32 s61, s66, s59")
        for m, (sr, cb) in enumerate(((36, 63), (40, 64))):
            if m + 1 not in parts:
                continue
            for n in range(4):
                e(f"s_add_u32 m0, s67, {W_BASE + st * 32768 + m * 16384 + n * 4096}")
                e(f"s_add_u32 s60, s61, s{cb}" if n == 0 else "s_add_u32 s60, s60, s65")
                e.vmem(f"buffer_load_dwordx4 v9, s[{sr}:{sr+3}], s60 offen lds", f"c{kc}")

    def kv_loads():
        e("s_and_b32 s99, s2, 1")
        e("s_cmp_eq_u32 s99, 0")
        e("s_cselect_b32 s68, s8, s10")
        e("s_cselect_b32 s69, s9, s11")
        e("s_mov_b32 s70, 16384")
        e("s_mov_b32 s71, 0x00020000")
        e("s_lshl_b32 s60, s3, 12")
        e(f"s_add_u32 m0, s60, {KVS_BASE}")
        e("s_nop 0")
        for n in range(4):
            e.vmem(f"buffer_load_dwordx4 v2, s[68:71], s60 offen offset:{n*1024} lds", "kv")
        e("v_and_b32 v7, 15, v1")
        e("v_lshlrev_b32 v7, 10, v7")
        e("v_lshl_add_u32 v7, v6, 4, v7")
        e("s_lshr_b32 s60, s2, 1")
        e("s_lshl_b32 s60, s60, 14")
        e("s_lshl_b32 s61, s3, 8")
        e("s_add_u32 s60, s60, s61")
        for n in range(4):
            e.vmem(f"buffer_load_dwordx4 {vr(24+4*n,4)}, v7, s[32:35], s60 offen offset:{n*64}", "kv")

    def kv_part1():
        e("v_bfe_u32 v16, v1, 2, 2")
        e("v_lshl_add_u32 v17, v6, 3, v16")
        e("v_and_b32 v19, 3, v1")
        e("v_lshlrev_b32 v19, 3, v19")
        e("v_lshl_add_u32 v16, v17, 5, v19")
        e("s_lshl_b32 s60, s3, 12")
        e(f"s_add_u32 s60, s60, {KVS_BASE}")
        e("v_add_u32 v16, s60, v16")
        e("v_add_u32 v17, s60, v2")
        e.wait_vm("kv")
        for s in range(4):
            for rho in range(2):
                e(f"ds_read_b64_tr_b16 {vr(40 + 4*s + 2*rho, 2)}, v16 offset:{(32*s + 4*rho)*32}")
        e("s_waitcnt lgkmcnt(0)")
        e("s_cmp_eq_u32 s99, 0")
        e("s_cbranch_scc0 KV_V1")
        for s in range(4):
            e(f"v_mfma_f32_16x16x32_bf16 v[56:59], {vr(40+4*s,4)}, {vr(24+4*s,4)}, " + ("0" if s == 0 else "v[56:59]"))
        e("s_branch KV_J1")
        e.label("KV_V1")
        for s in range(4):
            e(f"v_mfma_f32_16x16x32_bf16 v[56:59], {vr(24+4*s,4)}, {vr(40+4*s,4)}, " + ("0" if s == 0 else "v[56:59]"))
        e.label("KV_J1")
        e("s_nop 7")
        e("ds_write_b128 v17, v[56:59]")
        e("s_waitcnt lgkmcnt(0)")

    def kv_part2():
        e(f"v_add_u32 v17, {KVS_BASE}, v2")
        for p in range(4):
            e(f"ds_read_b128 {vr(24+4*p,4)}, v17 offset:{p*4096}")
        e("s_waitcnt lgkmcnt(0)")
        for p in range(1, 4):
            for r in range(4):
                e(f"v_add_f32 v{24+r}, v{24+r}, v{24+4*p+r}")
        e("v_mul_f32 v28, v24, v24")
        for r in range(1, 4):
            e(f"v_fmac_f32 v28, v{24+r}, v{24+r}")
        e("v_cvt_pk_bf16_f32 v30, v24, v25")
        e("v_cvt_pk_bf16_f32 v31, v26, v27")
        e("v_and_b32 v32, 1, v6")
        e("v_lshrrev_b32 v33, 1, v6")
        e("s_cmp_eq_u32 s99, 0")
        e("s_cselect_b32 s60, 9, 3")
        e("s_cselect_b32 s61, 3, 9")
        e("v_lshlrev_b32 v32, s60, v32")
        e("v_lshlrev_b32 v33, s61, v33")
        e("v_and_b32 v34, 15, v1")
        e("v_lshlrev_b32 v34, 4, v34")
        e("v_add3_u32 v32, v32, v33, v34")
        e("s_lshr_b32 s60, s2, 2")
        e("s_lshl_b32 s60, s60, 11")
        e("s_lshl_b32 s61, s99, 10")
        e("s_add_u32 s60, s60, s61")
        e("s_and_b32 s61, s2, 2")
        e("s_lshl_b32 s61, s61, 7")
        e("s_add_u32 s60, s60, s61")
        e(f"s_add_u32 s60, s60, {WS_KV}")
        e("s_add_u32 s60, s60, s98")
        e.vmem("buffer_store_dwordx2 v[30:31], v32, s[48:51], s60 offen sc1", "kvst")
        allreduce(e, "v_add_f32", 28, 29, 4, 6)
        allreduce(e, "v_max_f32", 28, 29, 0, 4)
        e("s_lshl_b32 s60, s2, 1")
        e(f"s_add_u32 s60, s60, {WS_KN}")
        e("s_add_u32 s60, s60, s98")
        e("s_cmp_eq_u32 s99, 0")
        e(f"s_cselect_b32 s60, s60, {OOB}")
        e("v_mov_b32 v29, 0")
        e("s_mov_b64 exec, 1")
        e.vmem("buffer_store_dword v28, v29, s[48:51], s60 offen sc1", "kvst")
        e("s_mov_b64 exec, -1")

    def arrive(off, tag):
        e("v_mov_b32 v21, 1")
        e("v_mov_b32 v22, 0")
        e("s_mov_b64 exec, 1")
        e.vmem(f"buffer_atomic_add v21, v22, s[72:75], s98 offen offset:{off} sc1", tag)
        e("s_mov_b64 exec, -1")

    def side_loads():
        srd(e, 52, 22, 1024)
        e("s_lshl_b32 s59, s2, 3")
        e("s_lshl_b32 s60, s3, 1")
        e("s_add_u32 s59, s59, s60")
        e("s_lshl_b32 s60, s59, 10")
        e.vmem("buffer_load_dwordx4 v[24:27], v2, s[32:35], s60 offen", "side")
        e.vmem("buffer_load_dwordx4 v[28:31], v2, s[32:35], s60 offen offset:1024", "side")
        e.vmem("buffer_load_dwordx4 v[32:35], v2, s[52:55], 0 offen", "side")
        e("s_mov_b32 s46, %d" % (512 * 1024))
        e("s_cmp_lt_u32 s2, 112")
        e("s_cselect_b32 s44, s20, s12")
        e("s_cselect_b32 s45, s21, s13")
        e("s_cselect_b32 s46, %d, s46" % (1792 * 1024))
        e("s_cselect_b32 s60, 0, 112")
        e("s_mov_b32 s47, 0x00020000")
        e("s_sub_u32 s60, s2, s60")
        e("s_lshl_b32 s60, s60, 14")
        e("s_lshl_b32 s61, s3, 8")
        e("s_add_u32 s60, s60, s61")
        e("v_and_b32 v7, 31, v1")
        e("v_lshlrev_b32 v7, 2, v7")
        e("v_lshrrev_b32 v8, 5, v1")
        e("v_lshl_add_u32 v7, v8, 12, v7")
        e("v_add_u32 v8, 0x2000, v7")
        for u in range(2):
            for j in range(8):
                src = 7 if j < 4 else 8
                e.vmem(f"buffer_load_dword v{40+8*u+j}, v{src}, s[44:47], s60 offen offset:{(j&3)*1024 + u*128}", "side")

    def side_jobs():
        e.wait_vm("side")
        e("v_mov_b32 v36, 0")
        e("v_mov_b32 v37, 0")
        for i in range(4):
            e(f"v_dot2c_f32_bf16 v36, v{24+i}, v{32+i}")
        for i in range(4):
            e(f"v_dot2c_f32_bf16 v37, v{28+i}, v{32+i}")
        e("s_mov_b32 s60, 0x05040100")
        e("s_mov_b32 s61, 0x07060302")
        for u in range(2):
            for i in range(4):
                e(f"v_perm_b32 v{56+8*u+i}, v{41+8*u+2*i}, v{40+8*u+2*i}, s60")
                e(f"v_perm_b32 v{60+8*u+i}, v{41+8*u+2*i}, v{40+8*u+2*i}, s61")
        e("s_mul_i32 s59, s3, 288")
        e("s_add_u32 s59, s59, s2")
        e("s_lshl_b32 s59, s59, 11")
        e(f"s_add_u32 s59, s59, {WS_WF}")
        e("s_cmp_lt_u32 s2, 144")
        e(f"s_cselect_b32 s59, s59, {OOB}")
        e(f"s_add_u32 s60, s59, {144*2048}")
        for u in range(2):
            so = "s59" if u == 0 else "s60"
            e.vmem(f"buffer_store_dwordx4 {vr(56+8*u,4)}, v2, s[48:51], {so} offen sc1", "sidest")
            e.vmem(f"buffer_store_dwordx4 {vr(60+8*u,4)}, v2, s[48:51], {so} offen offset:1024 sc1", "sidest")
        for x in (36, 37):
            allreduce(e, "v_add_f32", x, 38)
            e(f"v_mul_f32 v{x}, {fbits(-LOG2E)}, v{x}")
            e(f"v_exp_f32 v{x}, v{x}")
            e("s_nop 0")
            e(f"v_add_f32 v{x}, 1.0, v{x}")
            e(f"v_rcp_f32 v{x}, v{x}")
        e("s_lshl_b32 s59, s2, 5")
        e("s_lshl_b32 s60, s3, 3")
        e("s_add_u32 s59, s59, s60")
        e(f"s_add_u32 s59, s59, {WS_G}")
        e("v_mov_b32 v38, 0")
        e("s_mov_b64 exec, 1")
        e.vmem("buffer_store_dwordx2 v[36:37], v38, s[48:51], s59 offen sc1", "sidest")
        e("s_mov_b64 exec, -1")

    def cnt_spin(off):
        def ld():
            e(f"buffer_load_dword v20, v22, s[72:75], 0 offen offset:{off} sc1")
        def ck():
            e("s_movk_i32 s60, 256")
            e("v_cmp_ne_u32 vcc, s60, v20")
        e("v_mov_b32 v22, 0")
        spin(e, ld, ck, 4)

    def kv_piece(p):
        e(f"s_add_u32 s59, s94, {p}")
        e("s_and_b32 s59, s59, 7")
        e("s_lshl_b32 s59, s59, 14")
        e("s_add_u32 s59, s59, s67")
        e(f"s_add_u32 s59, s59, {WS_KV}")
        for n in range(4):
            e(f"s_add_u32 m0, s67, {KV_PIECE[p] + n * 4096}")
            e(f"s_add_u32 s60, s59, {n * 4096}")
            e.vmem("buffer_load_dwordx4 v2, s[48:51], s60 offen sc1 lds", "kvl")

    def fs(i):
        if "fine" in OPT: stamp(e, i)

    dma(0)
    dma(1, (0, 1))
    e.wait_vm("c0")
    e.bar()
    stamp(e, 3)
    dma(1, (2,))
    kv_loads()
    srd(e, 72, 26, 0 if "noflag" in OPT else 256)
    e.wait_vm("c1")
    fs(4)
    e.bar()
    dma(2)
    kv_part1()
    dma(3, (0, 1))
    e.wait_vm("c2")
    fs(5)
    e.bar()
    dma(3, (2,))
    kv_part2()
    dma(4)
    e.wait_vm("c3")
    fs(6)
    e.bar()
    dma(5)
    side_loads()
    e.wait_vm("c4")
    arrive(0, "arr")
    fs(7)
    e.bar()
    if "fine" not in OPT: stamp(e, 4)
    dma(6)
    e.wait_vm("c5")
    fs(8)
    e.bar()
    dma(7)
    side_jobs()
    e("v_mov_b32 v22, 0")
    e.vmem("buffer_load_dword v20, v22, s[72:75], 0 offen sc1", "poll")
    e.wait_vm("c6")
    fs(9)
    e.bar()
    e.wait_vm("poll")
    e("s_movk_i32 s60, 256")
    e("v_cmp_ne_u32 vcc, s60, v20")
    e("s_nop 4")
    e("s_cbranch_vccz S1A_OK")
    cnt_spin(0)
    e.label("S1A_OK")
    for p in range(4):
        kv_piece(p)
    fs(10)
    e.bar()
    arrive(128, "arr")
    for p in range(4, 7):
        kv_piece(p)
    e.bar()
    if "fine" not in OPT: stamp(e, 5)
    kv_piece(7)
    e.wait_all()
    if "fine" not in OPT: stamp(e, 6)
    e.bar()
    if "fine" not in OPT: stamp(e, 7)
    e("s_mul_i32 s32, s76, 224")
    e("s_mul_i32 s60, s3, 28")
    e("s_add_u32 s32, s32, s60")
    e("s_lshl_b32 s32, s32, 10")
    e(f"s_add_u32 s32, s32, {WS_HF}")
    e(f"s_add_u32 s33, s32, {112*1024}")
    e("s_mul_i32 s36, s77, 144")
    e("s_add_u32 s36, s36, s60")
    e("s_lshl_b32 s36, s36, 11")
    e(f"s_add_u32 s36, s36, {WS_WF}")
    e("s_lshl_b32 s62, s76, 8")
    e(f"s_add_u32 s62, s62, {WS_FL}")
    e("s_mov_b32 s40, -1")
    e("s_mov_b32 s41, 0x00ffffff")

    def fl_ld():
        e("buffer_load_dword v20, v3, s[48:51], s62 offen sc1")
    def fl_ck():
        e("s_mov_b64 exec, s[40:41]")
        e("v_cmp_ne_u32 vcc, 1, v20")
        e("s_mov_b64 exec, -1")
    spin(e, fl_ld, fl_ck, 8)
    cnt_spin(128)
    if "fine" not in OPT: stamp(e, 8)
    DAC = 24
    FB = 88
    NB = 5

    def dload(ks):
        f = FB + 16 * (ks % NB)
        e(f"s_add_u32 s60, s36, {ks*2048}")
        e.vmem(f"buffer_load_dwordx4 {vr(f,4)}, v2, s[48:51], s60 offen sc1", f"d{ks}")
        e.vmem(f"buffer_load_dwordx4 {vr(f+4,4)}, v2, s[48:51], s60 offen offset:1024 sc1", f"d{ks}")
        for t in range(2):
            e(f"s_add_u32 s60, s{32+t}, {ks*1024}")
            e.vmem(f"buffer_load_dwordx4 {vr(f+8+4*t,4)}, v2, s[48:51], s60 offen sc1", f"d{ks}")
    if "hprio" in OPT:
        e("s_setprio 1")
    for ks in range(NB):
        dload(ks)
    for ks in range(28):
        f = FB + 16 * (ks % NB)
        e.wait_vm(f"d{ks}")
        for m in range(2):
            for t in range(2):
                d = DAC + 32 * m + 16 * t
                c = "0" if ks == 0 else vr(d, 16)
                e(f"v_mfma_f32_32x32x16_bf16 {vr(d,16)}, {vr(f+4*m,4)}, {vr(f+8+4*t,4)}, {c}")
        if ks + NB < 28:
            dload(ks + NB)
    if "fine" not in OPT: stamp(e, 9)
    e("s_lshl_b32 s60, s3, 14")
    e("v_add_u32 v6, s60, v2")
    e("s_nop 15")
    e.bar()
    if "fine" not in OPT: stamp(e, 10)
    for q in range(16):
        e(f"ds_write_b128 v6, {vr(DAC+4*q,4)} offset:{q*1024}")
    e("s_waitcnt lgkmcnt(0)")
    e.bar()
    stamp(e, 11); stamp(e, 12); stamp(e, 13, True)
    stamp_flush(e, 14)
    e("s_endpgm")
    return e.nbar


def kd(name, vgpr, sgpr=102):
    acc = (vgpr + 3) // 4 * 4
    return f""".p2align 6
.amdhsa_kernel {name}
  .amdhsa_next_free_vgpr {vgpr}
  .amdhsa_next_free_sgpr {sgpr}
  .amdhsa_accum_offset {acc}
  .amdhsa_group_segment_fixed_size 0
  .amdhsa_kernarg_size 104
  .amdhsa_user_sgpr_count 2
  .amdhsa_user_sgpr_kernarg_segment_ptr 1
  .amdhsa_system_sgpr_workgroup_id_x 1
.end_amdhsa_kernel
"""


def main(out):
    ref = open(f"cdna_kernels/{NAME}.s.ref").read().split("\n")
    hdr = [l for l in ref if l.startswith(";") and "@launch" not in l and "Override" not in l and "grid=ceil" not in l]
    e = Asm()
    prologue(e)
    n2 = helper(e)
    n1 = compute(e)
    assert n1 == n2, (n1, n2)
    s = "\n".join(hdr) + "\n"
    s += f"; @launch grid=(256,1,1) block=(768,1,1) lds={LDS_TOTAL}\n"
    s += '.amdgcn_target "amdgcn-amd-amdhsa--gfx950"\n.text\n'
    s += e.text()
    s += '.section .rodata,"a"\n'
    s += kd(NAME + "_kernel", 168)
    open(out, "w").write(s)


if __name__ == "__main__":
    main(sys.argv[1] if len(sys.argv) > 1 else f"cdna_kernels/{NAME}.s")
```

```python
import sys, os, struct

NAME = "gated_mix__grouped_kv_mqa__glu_gated_glu__prompt"

WS_OF = 2 << 20
WS_KV = 4 << 20
WS_KN = WS_KV + 131072
WS_G = WS_KN + 4096
WS_FL = WS_G + 8192
WS_HF = 8 << 20
WS_ST = 15 << 20
WS_SIZE = 16 << 20
OOB = 0x7f000000

LOG2E = 1.4426950408889634
STAMP = os.environ.get("STAMP", "0") == "1"
OPT = set(os.environ.get("OPT", "").split(","))
FINE = "fine" in OPT
FINE2 = "fine2" in OPT


def fbits(x):
    return "0x%08x" % struct.unpack("<I", struct.pack("<f", x))[0]


class Asm:
    def __init__(self):
        self.lines = []
        self.vm = []
        self.uid = 0
        self.nbar = 0
    def __call__(self, s):
        self.lines.append("    " + s)
    def label(self, s):
        self.lines.append(s + ":")
    def raw(self, s):
        self.lines.append(s)
    def vmem(self, s, tag):
        self(s)
        self.vm.append(tag)
    def wait_vm(self, tag):
        idxs = [i for i, t in enumerate(self.vm) if t == tag]
        if not idxs:
            return
        idx = max(idxs)
        n = len(self.vm) - 1 - idx
        assert n <= 63
        self(f"s_waitcnt vmcnt({n})")
        self.vm = self.vm[idx + 1:]
    def wait_all(self):
        self("s_waitcnt vmcnt(0)")
        self.vm = []
    def bar(self):
        self("s_barrier")
        self.nbar += 1
    def newlabel(self, p):
        self.uid += 1
        return f"{p}_{self.uid}"
    def text(self):
        return "\n".join(self.lines) + "\n"


def stamp(e, i, real=False):
    if not STAMP:
        return
    e(("s_memrealtime" if real else "s_memtime") + " s[78:79]")
    e("s_waitcnt lgkmcnt(0)")
    e(f"s_mov_b32 s{80+i}, s78")


def cs(e, i):
    if not FINE and not (FINE2 and i in (4, 5, 6, 7)):
        stamp(e, i)


def f2(e, i):
    if FINE2:
        stamp(e, i)


def fs(e, i):
    if FINE:
        stamp(e, i)


def stamp_flush(e, n):
    if not STAMP:
        return
    e("s_lshl_b32 s78, s2, 4")
    e("s_add_u32 s78, s78, s30")
    e("s_lshl_b32 s78, s78, 6")
    e(f"s_add_u32 s78, s78, {WS_ST}")
    e("v_mov_b32 v0, 0")
    e("s_mov_b64 exec, 1")
    for i in range(n):
        e(f"v_mov_b32 v1, s{80+i}")
        e(f"buffer_store_dword v1, v0, s[48:51], s78 offen offset:{4*i}")
    e("s_mov_b64 exec, -1")


def vr(a, n=1):
    return f"v{a}" if n == 1 else f"v[{a}:{a+n-1}]"


def srd(e, d, base, size):
    e(f"s_mov_b32 s{d}, s{base}")
    e(f"s_mov_b32 s{d+1}, s{base+1}")
    e(f"s_mov_b32 s{d+2}, {size}")
    e(f"s_mov_b32 s{d+3}, 0x00020000")


def allreduce(e, op, x, t, lo=0, hi=6):
    dpp = ["quad_perm:[1,0,3,2]", "quad_perm:[2,3,0,1]", "row_half_mirror", "row_mirror"]
    for b in range(lo, min(hi, 4)):
        e("s_nop 1")
        e(f"{op}_dpp v{x}, v{x}, v{x} {dpp[b]} row_mask:0xf bank_mask:0xf")
    for b, ins in ((4, "v_permlane16_swap_b32"), (5, "v_permlane32_swap_b32")):
        if lo <= b < hi:
            e(f"v_mov_b32 v{t}, v{x}")
            e("s_nop 1")
            e(f"{ins} v{x}, v{t}")
            e("s_nop 1")
            e(f"{op} v{x}, v{x}, v{t}")


X_ST = 16384
W_BASE = 3 * X_ST
QS_BASE = 32768
X_BASE = [0, 16384, 147456]
LDS_TOTAL = 163840
def stage(kc):
    return (kc + 1) % 3
SAFE_BOUND = 48.0
WD_BASE = 131072
NBW = 4


def spin_guard(e, done):
    e("s_cmp_eq_u32 s100, 0")
    e(f"s_cbranch_scc1 {done}")
    e("s_sub_u32 s100, s100, 1")


def spin(e, load, check, sleep, preloaded=False):
    lo, chk, done = e.newlabel("SPIN"), e.newlabel("SPINC"), e.newlabel("SPIND")
    if preloaded:
        e(f"s_branch {chk}")
    e.label(lo)
    load()
    e.label(chk)
    e.wait_all()
    check()
    e("s_nop 4")
    e(f"s_cbranch_vccz {done}")
    spin_guard(e, done)
    e(f"s_sleep {sleep}")
    e(f"s_branch {lo}")
    e.label(done)


def tr_addr128(e, d0, d1, t0, t1):
    e(f"v_bfe_u32 v{t0}, v1, 2, 2")
    e(f"v_lshrrev_b32 v{t1}, 5, v1")
    e(f"v_lshl_add_u32 v{d0}, v{t1}, 2, v{t0}")
    e(f"v_lshlrev_b32 v{d0}, 7, v{d0}")
    e(f"v_bfe_u32 v{t1}, v1, 4, 1")
    e(f"v_lshl_add_u32 v{d0}, v{t1}, 5, v{d0}")
    e(f"v_and_b32 v{t1}, 3, v1")
    e(f"v_lshl_add_u32 v{d0}, v{t1}, 3, v{d0}")
    e(f"v_bfe_u32 v{t1}, v1, 3, 1")
    e(f"v_lshlrev_b32 v{t1}, 6, v{t1}")
    e(f"v_add_u32 v{d0}, v{d0}, v{t1}")
    e(f"v_xor_b32 v{d1}, 64, v{d0}")


def dma_voff128(e, d, t0, t1):
    e(f"v_lshrrev_b32 v{t0}, 3, v1")
    e(f"v_bfe_u32 v{t1}, v1, 4, 1")
    e(f"v_lshlrev_b32 v{t1}, 2, v{t1}")
    e(f"v_and_b32 v{d}, 7, v1")
    e(f"v_xor_b32 v{d}, v{d}, v{t1}")
    e(f"v_lshlrev_b32 v{d}, 4, v{d}")
    e(f"v_lshl_add_u32 v{d}, v{t0}, 10, v{d}")


def prologue(e):
    n = NAME + "_kernel"
    e.raw(f".globl {n}\n.p2align 8\n.type {n},@function\n{n}:")
    e("s_cmp_ge_u32 s2, 256")
    e("s_cbranch_scc1 K_END")
    stamp(e, 0, True); stamp(e, 1)
    e("s_load_dwordx16 s[4:19], s[0:1], 0")
    e("s_load_dwordx8 s[20:27], s[0:1], 64")
    e("s_load_dwordx2 s[28:29], s[0:1], 96")
    e("s_mov_b32 s100, %d" % (0 if "nospin" in OPT else 0x20000))
    e("v_lshrrev_b32 v2, 6, v0")
    e("v_and_b32 v1, 63, v0")
    e("v_readfirstlane_b32 s30, v2")
    e("v_lshlrev_b32 v2, 4, v1")
    e("v_lshlrev_b32 v3, 2, v1")
    e("v_lshrrev_b32 v6, 4, v1")
    e("s_and_b32 s57, s2, 7")
    e("s_lshr_b32 s59, s2, 3")
    e("s_and_b32 s94, s59, 7")
    e("s_lshr_b32 s95, s59, 3")
    e("s_and_b32 s31, s57, 1")
    e("s_lshl_b32 s31, s31, 3")
    e("s_add_u32 s31, s31, s94")
    e("s_lshr_b32 s56, s57, 1")
    e("s_xor_b32 s60, s95, 3")
    e("s_lshl_b32 s60, s60, 2")
    e("s_add_u32 s56, s56, s60")
    e("s_and_b32 s76, s57, 3")
    e("s_lshl_b32 s76, s76, 3")
    e("s_add_u32 s76, s76, s94")
    e("s_lshr_b32 s77, s57, 2")
    e("s_lshl_b32 s77, s77, 2")
    e("s_add_u32 s77, s77, s95")
    e("s_sub_u32 s3, s30, 8")
    rot = os.environ.get("ROT", "8")
    e("s_lshl_b32 s58, s95, 1")
    e("s_add_u32 s58, s58, s94")
    if rot == "4":
        e("s_and_b32 s58, s58, 6")
    elif rot == "2":
        e("s_add_u32 s58, s94, s95")
        e("s_and_b32 s58, s58, 1")
        e("s_lshl_b32 s58, s58, 2")
    elif rot == "1":
        e("s_mov_b32 s58, 0")
    e("s_cmp_ge_u32 s56, 14")
    e("s_cbranch_scc1 SP_START")
    e("s_cmp_lt_u32 s30, 8")
    e("s_cbranch_scc1 COMPUTE")
    e("s_cmp_eq_u32 s3, 3")
    e("s_cbranch_scc1 SERVICE")
    e("s_branch LOADER")


def x_dma_voff(e):
    e("v_and_b32 v8, 7, v1")
    e("v_xor_b32 v7, v6, v8")
    e("v_lshrrev_b32 v8, 3, v1")
    e("v_lshlrev_b32 v8, 10, v8")
    e("v_lshl_add_u32 v4, v7, 4, v8")
    e("v_xor_b32 v5, 64, v4")


def kv_piece(e, tab):
    e(f"s_mov_b32 s59, {sum(t << (8 * i) for i, t in enumerate(tab)):#x}")
    e("s_lshl_b32 s62, s3, 3")
    e("s_lshr_b32 s59, s59, s62")
    e("s_and_b32 s59, s59, 15")
    e("s_add_u32 s62, s59, s94")
    e("s_and_b32 s62, s62, 7")
    e("s_lshl_b32 s62, s62, 14")
    e(f"s_add_u32 s62, s62, {WS_KV}")
    e("s_lshl_b32 s59, s59, 14")
    for n in range(16):
        if n % 4 == 0:
            e(f"s_add_u32 m0, s59, {n * 1024}")
            e(f"s_add_u32 s64, s62, {n * 1024}")
        e.vmem(f"buffer_load_dwordx4 v2, s[48:51], s64 offen offset:{(n & 3) * 1024} sc1 lds", "kvl")


def cnt_spin(e, off):
    e("v_mov_b32 v17, 0")
    spin(e, lambda: e(f"buffer_load_dword v20, v17, s[72:75], 0 offen offset:{off} sc1"),
         lambda: e("v_cmp_gt_u32 vcc, 32, v20"), 32)


def cnt_arrive(e, off):
    e("v_mov_b32 v21, 1")
    e("v_mov_b32 v17, 0")
    e("s_mov_b64 exec, 1")
    e(f"buffer_atomic_add v21, v17, s[72:75], 0 offen offset:{off} sc1")
    e("s_mov_b64 exec, -1")


def loader(e):
    e.label("LOADER")
    e.vm = []
    e.nbar = 0
    e("s_lshl_b32 s63, s56, 8")
    e("v_mul_u32_u24 v8, 3584, v6")
    e("v_lshlrev_b32 v7, 2, v6")
    e("v_and_b32 v10, 15, v1")
    e("v_xor_b32 v7, v7, v10")
    e("v_lshl_add_u32 v4, v7, 4, v8")
    e("v_mov_b32 v5, v4")
    e(f"s_mov_b32 s65, {4 * 3584}")
    e(f"s_mov_b32 s66, {64 * 3584}")
    e("s_lshl_b32 s67, s3, 14")
    e(f"s_add_u32 s67, s67, {W_BASE - 16384}")
    e("s_add_u32 s69, s67, 32768")
    e("s_add_u32 s70, s69, 32768")
    e("s_mov_b32 s34, %d" % (512 * 3584))
    e("s_cmp_lg_u32 s3, 0")
    e("s_cbranch_scc1 LD_W")
    x_dma_voff(e)
    e("s_lshl_b32 s63, s31, 17")
    e("s_mov_b32 s65, 8192")
    e("s_mov_b32 s66, 128")
    e("s_mov_b32 s67, 0")
    e(f"s_mov_b32 s69, {X_BASE[1]}")
    e(f"s_mov_b32 s70, {X_BASE[2]}")
    e("s_mov_b32 s34, %d" % (2048 * 1024))
    e.label("LD_W")
    e("s_mov_b32 s35, 0x00020000")
    e("s_waitcnt lgkmcnt(0)")
    stamp(e, 2)
    e("s_cmp_eq_u32 s3, 1")
    e("s_cselect_b32 s32, s16, s18")
    e("s_cselect_b32 s33, s17, s19")
    e("s_cmp_eq_u32 s3, 0")
    e("s_cselect_b32 s32, s4, s32")
    e("s_cselect_b32 s33, s5, s33")

    def dma(kc, n0=0, n1=16):
        sb = (67, 69, 70)[stage(kc)]
        so = 60 + (kc & 1)
        if n0 == 0:
            e(f"s_add_u32 s59, s58, {kc}")
            e("s_and_b32 s59, s59, 7")
            e(f"s_mul_i32 s{so}, s66, s59")
            e(f"s_add_u32 s{so}, s{so}, s63")
        for n in range(n0, n1):
            e(f"s_add_u32 m0, s{sb}, {n * 1024}")
            if n > 0:
                e(f"s_add_u32 s{so}, s{so}, s65")
            else:
                e("s_nop 0")
            e.vmem(f"buffer_load_dwordx4 v{4 + (n & 1)}, s[32:35], s{so} offen lds", f"c{kc}")

    LA = int(os.environ.get("LA", "6"))
    dma(0)
    dma(1, 0, LA)
    srd(e, 48, 28, WS_SIZE)
    e.wait_vm("c0")
    e.bar()
    stamp(e, 3)
    for kc in range(7):
        dma(kc + 1, LA, 16)
        if kc + 2 < 8:
            dma(kc + 2, 0, LA)
        if kc == 6:
            kv_piece(e, (0, 3, 4))
        e.wait_vm(f"c{kc+1}")
        fs(e, 4 + kc)
        e.bar()
        if kc == 3:
            cs(e, 4)
    kv_piece(e, (1, 5, 6))
    e.bar()
    cs(e, 5)
    e.bar()
    e("s_cmp_eq_u32 s3, 2")
    e("s_cbranch_scc1 KVP_SKIP")
    kv_piece(e, (7, 2, 2))
    e.label("KVP_SKIP")
    e.wait_all()
    cs(e, 6)
    e.bar()
    cs(e, 7)
    e("s_branch DOWN")
    return e.nbar


def wq_voff(e):
    e("v_lshrrev_b32 v7, 2, v1")
    e("v_and_b32 v8, 3, v1")
    e("v_lshlrev_b32 v8, 4, v8")
    e("v_lshl_add_u32 v4, v7, 10, v8")


def service(e):
    e.label("SERVICE")
    e.vm = []
    e.nbar = 0
    wq_voff(e)
    e("s_lshl_b32 s63, s56, 6")
    e("s_waitcnt lgkmcnt(0)")
    stamp(e, 2)
    srd(e, 32, 6, 512 * 1024)

    def dma(kc):
        e(f"s_add_u32 s59, s58, {kc}")
        e("s_and_b32 s59, s59, 7")
        e("s_lshl_b32 s60, s59, 16")
        e("s_add_u32 s60, s60, s63")
        for n in range(4):
            e(f"s_mov_b32 m0, {QS_BASE + stage(kc) * 4096 + n * 1024}")
            e("s_add_u32 s60, s60, 16384" if n else "s_nop 0")
            e.vmem("buffer_load_dwordx4 v4, s[32:35], s60 offen lds", f"c{kc}")
    dma(0)
    dma(1)
    srd(e, 48, 28, WS_SIZE)
    srd(e, 72, 26, 0 if "noflag" in OPT else 256)
    e.wait_vm("c0")
    e.bar()
    stamp(e, 3)
    for kc in range(7):
        if kc + 2 < 8:
            dma(kc + 2)
        if kc == 5:
            cnt_spin(e, 0)
        e.wait_vm(f"c{kc+1}")
        fs(e, 4 + kc)
        e.bar()
        if kc == 3:
            cs(e, 4)
    e.bar()
    cs(e, 5)
    e.bar()
    cnt_spin(e, 128)
    cs(e, 6)
    e.bar()
    cs(e, 7)
    return e.nbar


def down(e):
    e.label("DOWN")
    e.vm = []
    e.nbar = 0
    srd(e, 44, 20, 1792 * 1024)
    e("s_mul_i32 s32, s76, 224")
    e("s_mul_i32 s60, s3, 28")
    e("s_add_u32 s32, s32, s60")
    e("s_lshl_b32 s32, s32, 10")
    e(f"s_add_u32 s32, s32, {WS_HF}")
    e(f"s_add_u32 s33, s32, {112*1024}")
    e("s_lshl_b32 s36, s60, 14")
    e("s_lshl_b32 s61, s77, 7")
    e("s_add_u32 s36, s36, s61")
    e(f"s_mul_i32 s37, s3, {NBW * 2048}")
    e(f"s_add_u32 s37, s37, {WD_BASE}")
    e("s_setprio 2")
    dma_voff128(e, 4, 7, 8)
    tr_addr128(e, 9, 10, 7, 8)
    e("v_add_u32 v9, s37, v9")
    e("v_add_u32 v10, s37, v10")
    e("s_lshl_b32 s62, s76, 9")
    e("s_lshl_b32 s60, s3, 7")
    e("s_add_u32 s62, s62, s60")
    e(f"s_add_u32 s62, s62, {WS_FL}")
    DAC = 24
    WB = 88
    HB = 104
    NBH = 8

    def wload(ks):
        for u in range(2):
            e(f"s_add_u32 m0, s37, {(ks % NBW) * 2048 + u * 1024}")
            e(f"s_add_u32 s60, s36, {ks * 16384 + u * 8192}")
            e.vmem("buffer_load_dwordx4 v4, s[44:47], s60 offen lds", f"w{ks}")
    def hload(ks):
        f = HB + 8 * (ks % NBH)
        for t in range(2):
            e(f"s_add_u32 s60, s{32+t}, {ks*1024}")
            e.vmem(f"buffer_load_dwordx4 {vr(f+4*t,4)}, v2, s[48:51], s60 offen sc1", f"h{ks}")
    def wread(ks):
        f = WB + 8 * (ks & 1)
        for m in range(2):
            for rho in range(2):
                e(f"ds_read_b64_tr_b16 {vr(f+4*m+2*rho,2)}, v{9+m} offset:{(ks % NBW) * 2048 + rho * 1024}")

    e("s_cmp_ge_u32 s56, 14")
    e("s_cbranch_scc1 H_SKIP")
    e("v_add_u32 v7, s37, v2")
    for n in range(8):
        e(f"ds_read_b128 {vr(HB+4*n,4)}, v7 offset:{n*1024}")
    e("s_lshl_b32 s64, s31, 2")
    e("s_and_b32 s60, s3, 2")
    e("s_add_u32 s64, s64, s60")
    e("s_mul_i32 s64, s64, 112")
    e("s_lshl_b32 s60, s56, 1")
    e("s_and_b32 s61, s3, 1")
    e("s_add_u32 s66, s60, s61")
    e("s_lshl_b32 s60, s66, 2")
    e("s_add_u32 s64, s64, s60")
    e("s_lshl_b32 s64, s64, 10")
    e(f"s_add_u32 s64, s64, {WS_HF}")
    e(f"s_add_u32 s65, s64, {112*1024}")
    e("s_mul_i32 s60, s66, 37")
    e("s_lshr_b32 s60, s60, 8")
    e("s_mul_i32 s61, s60, 25")
    e("s_add_u32 s66, s66, s61")
    e("s_lshl_b32 s66, s66, 2")
    e("s_lshl_b32 s60, s31, 10")
    e("s_add_u32 s66, s66, s60")
    e("s_and_b32 s60, s3, 2")
    e("s_lshl_b32 s60, s60, 8")
    e("s_add_u32 s66, s66, s60")
    e(f"s_add_u32 s66, s66, {WS_FL}")
    e("s_waitcnt lgkmcnt(0)")
    for n in range(8):
        u, t, k = n >> 2, (n >> 1) & 1, n & 1
        e(f"buffer_store_dwordx4 {vr(HB+4*n,4)}, v2, s[48:51], s{64+t} offen offset:{(2*u+k)*1024} sc1")
        HT = int(os.environ.get("HT", "63"))
        if HT < 63:
            e(f"s_waitcnt vmcnt({HT})")
    f2(e, 4)
    e("v_mov_b32 v12, 1")
    e("v_mov_b32 v11, 0")
    e("s_waitcnt vmcnt(0)")
    f2(e, 5)
    e("s_mov_b64 exec, 1")
    e("buffer_store_dword v12, v11, s[48:51], s66 offen sc1")
    e("s_mov_b64 exec, -1")
    e.label("H_SKIP")
    f2(e, 6); f2(e, 7)
    for ks in range(NBW):
        wload(ks)

    def fl_ld():
        e("s_mov_b64 exec, 0x7f")
        e("buffer_load_dword v20, v3, s[48:51], s62 offen sc1")
        e("s_mov_b64 exec, -1")
    def fl_ck():
        e("s_mov_b64 exec, 0x7f")
        e("v_cmp_ne_u32 vcc, 1, v20")
        e("s_mov_b64 exec, -1")
    if "slp" in OPT:
        e("s_sleep 100")
    spin(e, fl_ld, fl_ck, 16)
    e("s_setprio 0")
    cs(e, 8)
    HA = int(os.environ.get("HA", "4"))
    for ks in range(HA):
        hload(ks)
    wread(0)
    for ks in range(28):
        e("s_waitcnt lgkmcnt(0)")
        if ks + NBW < 28:
            wload(ks + NBW)
        if ks + HA < 28:
            hload(ks + HA)
        if ks + 1 < 28:
            e.wait_vm(f"w{ks+1}")
            wread(ks + 1)
        e.wait_vm(f"h{ks}")
        f = WB + 8 * (ks & 1)
        h = HB + 8 * (ks % NBH)
        for m in range(2):
            for t in range(2):
                d = DAC + 32 * m + 16 * t
                c = "0" if ks == 0 else vr(d, 16)
                e(f"v_mfma_f32_32x32x16_bf16 {vr(d,16)}, {vr(f+4*m,4)}, {vr(h+4*t,4)}, {c}")
    cs(e, 9)
    e("s_setprio 2")
    srd(e, 44, 12, 512 * 1024)
    e("s_lshl_b32 s36, s3, 17")
    e("s_lshl_b32 s61, s77, 7")
    e("s_add_u32 s36, s36, s61")
    for n in range(16):
        e(f"s_add_u32 s60, s36, {n * 8192}")
        e(f"buffer_load_dwordx4 {vr(HB + 4 * n, 4)}, v4, s[44:47], s60 offen")
    e("s_lshl_b32 s60, s3, 14")
    e("v_add_u32 v6, s60, v2")
    e("v_add_u32 v8, s37, v2")
    e("v_subrev_u32 v7, 0x10000, v8")
    e("s_waitcnt vmcnt(0)")
    for n in range(16):
        if (n >> 1) & 1 == 0:
            e(f"ds_write_b128 v8, {vr(HB+4*n,4)} offset:{((n>>2)*2 + (n&1))*1024}")
    e("s_waitcnt lgkmcnt(0)")
    e.bar()
    cs(e, 10)
    for n in range(16):
        if (n >> 1) & 1 == 1:
            e(f"ds_write_b128 v7, {vr(HB+4*n,4)} offset:{((n>>2)*2 + (n&1))*1024}")
    e("s_waitcnt lgkmcnt(0)")
    e.bar()
    for q in range(16):
        e(f"ds_write_b128 v6, {vr(DAC+4*q,4)} offset:{q*1024}")
    e("s_waitcnt lgkmcnt(0)")
    e.bar()
    stamp(e, 11); stamp(e, 12); stamp(e, 13, True)
    stamp_flush(e, 14)
    e("s_endpgm")
    return e.nbar


SP_XB = 65536
SP_WQ = 131072


def sp_xload(e, rows_sgpr, lds_sgpr, chunk_sgpr):
    e(f"s_lshl_b32 s60, s{chunk_sgpr}, 7")
    e(f"s_add_u32 s60, s60, s{rows_sgpr}")
    e(f"s_lshl_b32 s61, s{chunk_sgpr}, 13")
    e(f"s_add_u32 s61, s61, {lds_sgpr}")
    for n in range(8):
        e(f"s_add_u32 m0, s61, {n * 1024}")
        e("s_add_u32 s60, s60, 8192" if n else "s_nop 0")
        e(f"buffer_load_dwordx4 v{4 + (n & 1)}, s[32:35], s60 offen lds")


def sp_start(e):
    e.label("SP_START")
    e("s_lshl_b32 s60, s31, 1")
    e("s_add_u32 s60, s60, s56")
    e("s_sub_u32 s97, s60, 14")
    e("s_lshl_b32 s63, s97, 16")
    x_dma_voff(e)
    e("s_waitcnt lgkmcnt(0)")
    srd(e, 32, 4, 2048 * 1024)
    e("s_cmp_ge_u32 s30, 8")
    e("s_cbranch_scc1 SP_START_H")
    sp_xload(e, 63, 0, 30)
    e("s_branch COMPUTE")
    e.label("SP_START_H")
    e("s_cmp_lt_u32 s3, 2")
    e("s_cselect_b32 s36, s8, s10")
    e("s_cselect_b32 s37, s9, s11")
    e("s_mov_b32 s38, 16384")
    e("s_mov_b32 s39, 0x00020000")
    e("s_lshl_b32 s61, s3, 13")
    e("s_and_b32 s62, s61, 0x2000")
    for n in range(8):
        if n % 4 == 0:
            e(f"s_add_u32 m0, s61, {SP_XB + n * 1024}")
            e(f"s_add_u32 s60, s62, {n * 1024}")
        e(f"buffer_load_dwordx4 v2, s[36:39], s60 offen offset:{(n & 3) * 1024} lds")
    e("s_branch SP_HELPER")


def sp_helper(e):
    e.label("SP_HELPER")
    e.vm = []
    e.nbar = 0
    e("v_mov_b32 v16, 0")
    stamp(e, 2)
    srd(e, 48, 28, WS_SIZE)
    srd(e, 72, 26, 0 if "noflag" in OPT else 256)
    e.wait_all()
    e.bar()
    stamp(e, 3)
    srd(e, 36, 22, 1024)
    e(f"s_mov_b32 m0, {SP_XB + 32768}")
    e("v_lshrrev_b32 v7, 2, v1")
    e("buffer_load_dwordx4 v2, s[36:39], 0 offen lds")
    e("v_and_b32 v8, 3, v1")
    e("v_lshlrev_b32 v8, 4, v8")
    e("v_lshl_add_u32 v9, v7, 10, v8")
    srd(e, 40, 6, 512 * 1024)
    e("s_lshl_b32 s60, s3, 17")
    e("s_lshl_b32 s62, s56, 6")
    e("s_add_u32 s60, s60, s62")
    e("s_lshl_b32 s61, s3, 13")
    for n in range(8):
        e(f"s_add_u32 m0, s61, {SP_WQ + n * 1024}")
        e("s_add_u32 s60, s60, 16384" if n else "s_nop 0")
        e("buffer_load_dwordx4 v9, s[40:43], s60 offen lds")
    e("s_lshl_b32 s60, s97, 9")
    e("s_lshl_b32 s61, s3, 7")
    e("s_add_u32 s60, s60, s61")
    e(f"s_add_u32 s60, s60, {WS_FL}")
    e("s_mov_b64 exec, 0xff")
    e("buffer_store_dword v16, v3, s[48:51], s60 offen sc1")
    e("s_mov_b64 exec, -1")
    for r in range(4):
        e(f"v_mov_b32 v{12+r}, -1")
    e("s_xor_b32 s63, s97, 1")
    e("s_lshl_b32 s63, s63, 16")
    e.wait_all()
    e.bar()
    cs(e, 4)
    e("s_cmp_lg_u32 s3, 3")
    e("s_cbranch_scc1 SPH_A")
    cnt_arrive(e, 0)
    e.label("SPH_A")
    e("s_lshl_b32 s60, s97, 16")
    e("s_lshl_b32 s61, s3, 14")
    e("s_add_u32 s60, s60, s61")
    e(f"s_add_u32 s60, s60, {WS_OF}")
    for n in range(16):
        if n % 4 == 0:
            e(f"s_add_u32 s61, s60, {n * 1024}")
        e(f"buffer_store_dwordx4 v[12:15], v2, s[48:51], s61 offen offset:{(n & 3) * 1024} sc1")
    e.bar()
    for u in range(2):
        e("s_lshl_b32 s62, s3, 1")
        e(f"s_add_u32 s62, s62, {u}")
        sp_xload(e, 63, SP_XB, 62)
    e.wait_all()
    e.bar()
    cs(e, 5)
    e("s_cmp_lg_u32 s3, 3")
    e("s_cbranch_scc1 SPH_C")
    cnt_arrive(e, 128)
    e.label("SPH_C")
    e("s_cmp_lg_u32 s3, 3")
    e("s_cbranch_scc1 SPH_B")
    cnt_spin(e, 0)
    e.label("SPH_B")
    e.wait_all()
    e.bar()
    e.bar()
    kv_piece(e, (0, 1, 2, 3))
    kv_piece(e, (4, 5, 6, 7))
    e("s_cmp_lg_u32 s3, 3")
    e("s_cbranch_scc1 SPH_D")
    cnt_spin(e, 128)
    e.label("SPH_D")
    e.wait_all()
    cs(e, 6)
    e.bar()
    cs(e, 7)
    e("s_branch DOWN")
    return e.nbar


def sp_compute(e):
    e.label("SP_COMPUTE")
    e.vm = []
    e.nbar = 0
    A = 64
    srd(e, 48, 28, WS_SIZE)
    srd(e, 52, 24, 2048 * 1024)
    e("v_mov_b32 v8, 0xdddd")
    stamp(e, 2)

    def xaddr(base):
        e("v_and_b32 v14, 31, v1")
        e("v_lshrrev_b32 v15, 5, v1")
        e("v_bfe_u32 v16, v1, 1, 3")
        e("v_xor_b32 v16, v16, v15")
        e("s_and_b32 s60, s30, 1")
        e("s_lshl_b32 s60, s60, 12")
        e(f"s_add_u32 s60, s60, {base}")
        e("v_lshlrev_b32 v17, 7, v14")
        e("v_add_u32 v17, s60, v17")
        for s in range(4):
            e(f"v_xor_b32 v18, {2*s}, v16")
            e(f"v_lshl_add_u32 v{10+s}, v18, 4, v17")
        e("v_bfe_u32 v16, v1, 2, 2")
        e("v_lshl_add_u32 v17, v15, 3, v16")
        e("v_and_b32 v18, 3, v1")
        e("v_lshlrev_b32 v18, 3, v18")
        for r in range(16):
            e(f"v_mov_b32 v{A+r}, 0")

    def chain(kind):
        lab = e.newlabel("CH")
        rs = {"K": 32, "V": 32, "Q": 64, "G": 2}[kind]
        if kind in "KV":
            e("v_lshl_add_u32 v14, v17, 5, v18")
            e(f"v_add_u32 v14, {SP_XB + (16384 if kind == 'V' else 0)}, v14")
        elif kind == "Q":
            e("v_lshl_add_u32 v14, v17, 6, v18")
            e("v_bfe_u32 v19, v1, 4, 1")
            e("v_lshl_add_u32 v14, v19, 5, v14")
            e(f"v_add_u32 v14, {SP_WQ}, v14")
        else:
            e("v_lshlrev_b32 v14, 4, v15")
            e(f"v_add_u32 v14, {SP_XB + 32768}, v14")
        def rd(s):
            e(f"ds_read_b128 {vr(24+4*s,4)}, v{10+s}")
            if kind == "G":
                e(f"ds_read_b128 {vr(40+4*s,4)}, v14 offset:{s*32}")
            else:
                for rho in range(2):
                    e(f"ds_read_b64_tr_b16 {vr(40+4*s+2*rho,2)}, v14 offset:{(16*s+4*rho)*rs}")
            e(f"v_add_u32 v{10+s}, 0x2000, v{10+s}")
            if s == 3:
                e(f"v_add_u32 v14, {64*rs}, v14")
        nrd = 2 if kind == "G" else 3
        for s in range(4):
            rd(s)
        e("s_mov_b32 s60, 8")
        e.label(lab)
        for s in range(4):
            e(f"s_waitcnt lgkmcnt({3 * nrd})")
            a, b = vr(40+4*s, 4), vr(24+4*s, 4)
            if kind == "V":
                a, b = b, a
            e(f"v_mfma_f32_32x32x16_bf16 {vr(A,16)}, {a}, {b}, {vr(A,16)}")
            rd(s)
        e("s_sub_u32 s60, s60, 1")
        e("s_cmp_lg_u32 s60, 0")
        e(f"s_cbranch_scc1 {lab}")
        e("s_waitcnt lgkmcnt(0)")

    xaddr(0)
    e("s_lshl_b32 s98, s97, 1")
    e("s_and_b32 s60, s30, 1")
    e("s_add_u32 s98, s98, s60")
    e.wait_all()
    e.bar()
    stamp(e, 3)
    e("s_lshr_b32 s99, s30, 1")
    e("s_cmp_eq_u32 s99, 1")
    e("s_cbranch_scc1 SPC_V")
    e("s_cmp_eq_u32 s99, 2")
    e("s_cbranch_scc1 SPC_G")
    e("s_cmp_eq_u32 s99, 3")
    e("s_cbranch_scc1 SPC_Q")
    chain("K")
    e(f"s_mov_b32 s60, {fbits(0.25 * LOG2E)}")
    e("v_and_b32 v14, 0x33, v1")
    e("v_bfe_u32 v15, v1, 2, 1")
    e("v_lshl_add_u32 v14, v15, 3, v14")
    e("v_bfe_u32 v15, v1, 3, 1")
    e("v_lshl_add_u32 v14, v15, 2, v14")
    e("v_lshlrev_b32 v14, 4, v14")
    e("s_nop 4")
    for r in range(8):
        e(f"v_mul_f32 v{A+r}, s60, v{A+r}")
    e(f"v_mul_f32 v18, v{A}, v{A}")
    for r in range(1, 8):
        e(f"v_fmac_f32 v18, v{A+r}, v{A+r}")
    for r in range(4):
        e(f"v_cvt_pk_bf16_f32 v{A+8+r}, v{A+2*r}, v{A+2*r+1}")
    e("s_lshl_b32 s60, s98, 11")
    e(f"s_add_u32 s60, s60, {WS_KV}")
    e(f"buffer_store_dwordx4 {vr(A+8,4)}, v14, s[48:51], s60 offen sc1")
    allreduce(e, "v_add_f32", 18, 19, 5, 6)
    allreduce(e, "v_max_f32", 18, 19, 0, 5)
    e("s_lshl_b32 s60, s98, 2")
    e(f"s_add_u32 s60, s60, {WS_KN}")
    e("s_mov_b64 exec, 1")
    e("buffer_store_dword v18, v3, s[48:51], s60 offen sc1")
    e("s_mov_b64 exec, -1")
    e("s_branch SPC_KV_DONE")
    e.label("SPC_V")
    chain("V")
    e("s_nop 9")
    for r in range(8):
        e(f"v_cvt_pk_bf16_f32 v{A+r}, v{A+2*r}, v{A+2*r+1}")
    e("s_lshl_b32 s60, s98, 11")
    e(f"s_add_u32 s60, s60, {WS_KV + 1024}")
    e("s_mov_b32 exec_lo, 0xffff")
    e("s_mov_b32 exec_hi, 0xffff")
    e(f"buffer_store_dwordx4 {vr(A,4)}, v2, s[48:51], s60 offen sc1")
    e(f"buffer_store_dwordx4 {vr(A+4,4)}, v2, s[48:51], s60 offen offset:256 sc1")
    e("s_mov_b64 exec, -1")
    e.label("SPC_KV_DONE")
    e("s_waitcnt vmcnt(0)")
    e("s_barrier")
    e("s_barrier")
    e("s_barrier")
    e("s_barrier")
    e("s_branch SPC_JOIN")
    e.label("SPC_G")
    e("s_barrier")
    chain("G")
    e("s_barrier")
    e("s_nop 9")
    e(f"v_mul_f32 v18, {fbits(-LOG2E)}, v{A}")
    e("v_exp_f32 v18, v18")
    e("s_lshl_b32 s60, s98, 7")
    e("v_add_f32 v18, 1.0, v18")
    e("v_rcp_f32 v20, v18")
    e(f"s_add_u32 s60, s60, {WS_G}")
    e("s_mov_b32 exec_hi, 0")
    e("buffer_store_dword v20, v3, s[48:51], s60 offen sc1")
    e("s_mov_b64 exec, -1")
    xaddr(SP_XB)
    e("s_xor_b32 s98, s98, 2")
    e("s_waitcnt vmcnt(0)")
    e("s_barrier")
    chain("Q")
    e("s_branch SPC_QW")
    e.label("SPC_Q")
    e.bar()
    chain("Q")
    e.bar()
    e.bar()
    e.label("SPC_QW")
    e.bar()
    e("s_and_b32 s60, s98, 3")
    e("s_nop 2")
    e("s_lshl_b32 s60, s60, 12")
    e(f"s_add_u32 s60, s60, {WD_BASE}")
    e("v_add_u32 v14, s60, v2")
    e("v_xor_b32 v15, 0x4000, v14")
    e("s_nop 3")
    for r in range(8):
        e(f"v_cvt_pk_bf16_f32 v{A+r}, v{A+2*r}, v{A+2*r+1}")
    e(f"ds_write_b128 v14, {vr(A,4)}")
    e(f"ds_write_b128 v15, {vr(A+4,4)}")
    e("s_waitcnt lgkmcnt(0)")
    e.label("SPC_JOIN")
    cs(e, 4); cs(e, 5)
    e(f"s_mov_b32 s60, {WS_KN}")
    e("buffer_load_dword v9, v3, s[48:51], s60 offen sc1")
    e("s_branch QJOIN")
    return e.nbar


def compute(e):
    e.label("COMPUTE")
    e("s_lshr_b32 s60, s30, 2")
    e("s_lshl_b32 s96, s31, 2")
    e("s_and_b32 s61, s30, 3")
    e("s_add_u32 s96, s96, s61")
    e("s_lshl_b32 s96, s96, 4")
    e("s_add_u32 s96, s96, s56")
    e("s_lshl_b32 s96, s96, 1")
    e("s_add_u32 s96, s96, s60")
    e("s_lshl_b32 s96, s96, 10")
    e("s_lshr_b32 s61, s30, 1")
    e("s_xor_b32 s61, s61, s60")
    e("s_and_b32 s93, s61, 1")
    e("s_mov_b32 s40, 0xffff")
    e("s_mov_b32 s41, 0xffff")
    tr_addr128(e, 161, 162, 16, 17)
    e("s_bfe_u32 s60, s30, 0x10001")
    e("s_lshl_b32 s60, s60, 14")
    e("s_lshr_b32 s61, s30, 2")
    e("s_lshl_b32 s61, s61, 16")
    e(f"s_add_u32 s60, s60, {WD_BASE}")
    e("s_sub_u32 s60, s60, s61")
    e("v_add_u32 v161, s60, v161")
    e("v_add_u32 v162, s60, v162")
    e("s_lshl_b32 s62, s30, 12")
    e(f"s_add_u32 s62, s62, {WD_BASE}")
    e("v_add_u32 v160, s62, v2")
    e("s_cmp_ge_u32 s56, 14")
    e("s_cbranch_scc1 SP_COMPUTE")
    e.vm = []
    e.nbar = 0
    if "nopf" not in OPT:
        e("s_getpc_b64 s[44:45]")
        e.label("PC_REF")
        e(f"s_sub_u32 s44, s44, PC_REF-{NAME}_kernel")
        e("s_subb_u32 s45, s45, 0")
        e("s_and_b32 s60, s94, 3")
        e("s_lshl_b32 s60, s60, 3")
        e("s_add_u32 s60, s60, s30")
        e("s_lshl_b32 s60, s60, 10")
        e(f"s_min_u32 s60, s60, CODE_END-{NAME}_kernel-1024")
        e("v_add_u32 v24, s60, v2")
        e("global_load_dwordx4 v[24:27], v24, s[44:45]")
    XA = 128
    e("v_and_b32 v14, 31, v1")
    e("v_lshrrev_b32 v15, 5, v1")
    e("v_bfe_u32 v16, v1, 1, 3")
    e("v_xor_b32 v16, v16, v15")
    e("s_lshr_b32 s60, s30, 2")
    e("s_lshl_b32 s60, s60, 13")
    e("s_and_b32 s61, s30, 1")
    e("s_lshl_b32 s61, s61, 12")
    e("s_add_u32 s60, s60, s61")
    e("v_lshlrev_b32 v17, 7, v14")
    e("v_add_u32 v17, s60, v17")
    for s in range(4):
        e(f"v_xor_b32 v18, {2*s}, v16")
        e(f"v_lshl_add_u32 v{XA+s}, v18, 4, v17")
        e(f"v_xor_b32 v{XA+4+s}, 0x1000, v{XA+s}")
        e(f"v_add_u32 v{XA+8+s}, {X_BASE[2]}, v{XA+s}")
        e(f"v_add_u32 v{XA+12+s}, {X_BASE[2]}, v{XA+4+s}")
    e("v_bfe_u32 v16, v1, 2, 2")
    e("v_lshl_add_u32 v17, v15, 3, v16")
    e("v_bfe_u32 v18, v1, 4, 1")
    e("v_and_b32 v19, 3, v1")
    e("v_lshlrev_b32 v4, 6, v17")
    e("v_lshl_add_u32 v4, v18, 5, v4")
    e("v_lshl_add_u32 v4, v19, 3, v4")
    e("v_bfe_u32 v19, v1, 1, 1")
    e("v_lshl_add_u32 v18, v18, 1, v19")
    e("s_and_b32 s60, s30, 3")
    e("s_lshl_b32 s60, s60, 2")
    e("v_add_u32 v18, s60, v18")
    e("v_lshlrev_b32 v19, 2, v16")
    e("v_xor_b32 v18, v18, v19")
    e("v_lshlrev_b32 v18, 4, v18")
    e("v_lshl_add_u32 v14, v17, 8, v18")
    e("v_and_b32 v19, 1, v1")
    e("v_lshl_add_u32 v14, v19, 3, v14")
    e(f"v_add_u32 v14, {W_BASE}, v14")
    e("v_add_u32 v15, 0x10000, v14")
    e("v_mov_b32 v8, 0xdddd")
    e("s_waitcnt lgkmcnt(0)")
    srd(e, 48, 28, WS_SIZE)
    srd(e, 52, 24, 2048 * 1024)
    e("s_waitcnt vmcnt(0)")
    stamp(e, 2)

    ACC = 64
    QACC = 144
    FR = [24, 44]

    def reads(kc, s, fb, q):
        st = stage(kc)
        f = FR[fb]
        L = []
        for t in range(2):
            if st < 2:
                L.append(f"ds_read_b128 {vr(f + 8 + 4*t, 4)}, v{XA+4*t+s} offset:{X_BASE[st]}")
            else:
                L.append(f"ds_read_b128 {vr(f + 8 + 4*t, 4)}, v{XA+8+4*t+s}")
        for m in range(2):
            for rho in range(2):
                off = st * 32768 + m * 16384 + (16 * s + 4 * rho) * 256
                a = 14
                if off >= 65536:
                    off -= 65536
                    a = 15
                L.append(f"ds_read_b64_tr_b16 {vr(f + 4*m + 2*rho, 2)}, v{a} offset:{off}")
        if q:
            for rho in range(2):
                L.append(f"ds_read_b64_tr_b16 {vr(f + 16 + 2*rho, 2)}, v4 offset:{QS_BASE + st * 4096 + (16 * s + 4 * rho) * 64}")
        return L

    def mfmas(fb, first, q):
        f = FR[fb]
        L = []
        if q:
            c = "0" if first else vr(QACC, 16)
            L.append(f"v_mfma_f32_32x32x16_bf16 {vr(QACC,16)}, {vr(f+16,4)}, {vr(f+8,4)}, {c}")
        for m in range(2):
            for t in range(2):
                d = ACC + 32 * m + 16 * t
                c = "0" if first else vr(d, 16)
                L.append(f"v_mfma_f32_32x32x16_bf16 {vr(d,16)}, {vr(f+4*m,4)}, {vr(f+8+4*t,4)}, {c}")
        return L

    def gemm(q):
        e.bar()
        stamp(e, 3)
        for l in reads(0, 0, 0, q):
            e(l)
        for kc in range(8):
            for s in range(4):
                fb = s & 1
                e("s_waitcnt lgkmcnt(0)")
                if s < 3:
                    rl = reads(kc, s + 1, fb ^ 1, q)
                elif kc < 7:
                    e.bar()
                    fs(e, 4 + kc)
                    rl = reads(kc + 1, 0, fb ^ 1, q)
                else:
                    rl = []
                    e.bar()
                ml = mfmas(fb, kc == 0 and s == 0, q)
                for i, m in enumerate(ml):
                    e(m)
                    for l in rl[2*i:2*i+2]:
                        e(l)
            if kc == 3:
                cs(e, 4)
        cs(e, 5)

    e("s_cmp_eq_u32 s93, 0")
    e("s_cbranch_scc1 GEMM_Q")
    gemm(False)
    e("s_branch GEMM_DONE")
    e.label("GEMM_Q")
    e.nbar = 0
    gemm(True)
    e("v_and_b32 v14, 0xffffbfff, v160")
    e("v_or_b32 v15, 0x4000, v160")
    e("s_nop 5")
    for r in range(8):
        e(f"v_cvt_pk_bf16_f32 v{QACC+r}, v{QACC+2*r}, v{QACC+2*r+1}")
    e(f"ds_write_b128 v14, {vr(QACC,4)}")
    e(f"ds_write_b128 v15, {vr(QACC+4,4)}")
    e("s_waitcnt lgkmcnt(0)")
    e.label("GEMM_DONE")
    e(f"s_mov_b32 s60, {WS_KN}")
    e("buffer_load_dword v9, v3, s[48:51], s60 offen sc1")
    nb_ffn = e.nbar
    e.label("QJOIN")
    e.nbar = 0
    Q = 16; IDX = 8; C = 24; O = 40; S = [56, 72]; KF = [88, 92]; VF = [144, 152]
    e.bar()
    e(f"ds_read_b128 {vr(Q,4)}, v160")
    for r in range(16):
        e(f"v_mov_b32 v{144+r}, 0x3f803f80")
    for r in range(16):
        e(f"v_mov_b32 v{O+r}, 0")
    e("v_mov_b32 v13, v2")
    e("v_mov_b32 v11, 0")
    e("s_waitcnt lgkmcnt(0)")
    for i in range(4):
        e(f"v_dot2c_f32_bf16 v11, v{Q+i}, v{Q+i}")
    HP = 128
    e("s_cmp_ge_u32 s56, 14")
    e("s_cbranch_scc1 EPI_DONE")
    e("s_and_b32 s61, s30, 1")
    e("s_lshl_b32 s61, s61, 11")
    e("v_add_u32 v7, s61, v160")
    e("v_xor_b32 v5, 0x800, v7")
    e(f"s_mov_b32 s64, {fbits(-LOG2E)}")
    e(f"s_mov_b32 s65, {fbits(-LOG2E)}")
    e("s_mov_b32 s66, 1.0")
    e("s_mov_b32 s67, 1.0")
    for t in range(2):
        G = ACC + 16 * t
        U = ACC + 32 + 16 * t
        for r in range(0, 16, 2):
            e(f"v_pk_mul_f32 {vr(G+r,2)}, {vr(G+r,2)}, s[64:65]")
        for r in range(16):
            e(f"v_exp_f32 v{G+r}, v{G+r}")
        for r in range(0, 16, 2):
            e(f"v_pk_add_f32 {vr(G+r,2)}, {vr(G+r,2)}, s[66:67]")
        for r in range(16):
            e(f"v_rcp_f32 v{G+r}, v{G+r}")
        for r in range(0, 16, 2):
            e(f"v_pk_mul_f32 {vr(G+r,2)}, {vr(G+r,2)}, {vr(U+r,2)}")
        for r in range(8):
            e(f"v_cvt_pk_bf16_f32 v{HP+8*t+r}, v{G+2*r}, v{G+2*r+1}")
        a = (7, 5)[t]
        e(f"ds_write_b128 v{a}, {vr(HP+8*t,4)}")
        e(f"ds_write_b128 v{a}, {vr(HP+8*t+4,4)} offset:1024")
    e.label("EPI_DONE")
    cs(e, 6)
    for r in range(8):
        e(f"v_mov_b32 v{S[1]+8+r}, 0")
    e.wait_all()
    allreduce(e, "v_max_f32", 9, 12, 0, 6)
    allreduce(e, "v_add_f32", 11, 12, 5, 6)
    e(f"v_mul_f32 v9, {fbits(1.04)}, v9")
    e("v_mul_f32 v11, v11, v9")
    e("v_sqrt_f32 v11, v11")
    e(f"s_mov_b32 s60, {fbits(SAFE_BOUND)}")
    e("v_cmp_nle_f32 vcc, v11, s60")
    e("s_waitcnt lgkmcnt(0)")
    cs(e, 7)
    e.bar()
    e("s_nop 4")
    e("s_cbranch_vccz ATT_GO")
    e("v_mov_b32 v11, 0xff800000")
    e("v_mov_b32 v12, v2")
    e("s_mov_b32 s60, 64")
    e.label("MAXLOOP")
    e(f"ds_read_b128 {vr(KF[0],4)}, v12")
    e("v_add_u32 v12, 0x800, v12")
    e("s_waitcnt lgkmcnt(0)")
    e(f"v_mfma_f32_32x32x16_bf16 {vr(S[0],16)}, {vr(KF[0],4)}, {vr(Q,4)}, 0")
    e("s_nop 15")
    for r in range(8):
        e(f"v_max3_f32 v11, v11, v{S[0]+2*r}, v{S[0]+2*r+1}")
    e("s_sub_u32 s60, s60, 1")
    e("s_cmp_lg_u32 s60, 0")
    e("s_cbranch_scc1 MAXLOOP")
    allreduce(e, "v_max_f32", 11, 12, 5, 6)
    e.label("ATT_GO")

    def laddr(t):
        return ("v13", t * 2048)
    def rdK(t, b):
        a, o = laddr(t)
        e(f"ds_read_b128 {vr(KF[b],4)}, {a} offset:{o}")
    def rdV(t, b):
        a, o = laddr(t)
        e("s_mov_b64 exec, s[40:41]")
        e(f"ds_read_b128 {vr(VF[b],4)}, {a} offset:{o+1024}")
        e(f"ds_read_b128 {vr(VF[b]+4,4)}, {a} offset:{o+1280}")
        e("s_mov_b64 exec, -1")
    def qk(b):
        e(f"v_mfma_f32_32x32x16_bf16 {vr(S[b],16)}, {vr(KF[b],4)}, {vr(Q,4)}, {vr(C,16)}")
    def sp(b, half):
        e(f"v_smfmac_f32_32x32x32_bf16 {vr(O,16)}, {vr(VF[b]+4*half,4)}, {vr(S[b]+8*half,8)}, v{IDX}")
    def ex(b, lo, hi):
        for r in range(lo, hi):
            e(f"v_exp_f32 v{S[b]+r}, v{S[b]+r}")

    rdK(0, 0)
    rdV(0, 0)
    rdK(1, 1)
    for r in range(16):
        e(f"v_sub_f32 v{C+r}, 0, v11")
    cs(e, 8)
    e("s_waitcnt lgkmcnt(3)")
    qk(0)
    e("s_nop 15")
    UN = int(os.environ.get("UN", "8"))
    e(f"s_mov_b32 s60, {64 // UN}")
    e.raw(".p2align 6")
    e.label("ATT_LOOP")
    for t in range(UN):
        b = t & 1
        ex(b, 0, 2)
        sp(b ^ 1, 1)
        ex(b, 2, 6)
        e("s_waitcnt lgkmcnt(0)")
        qk(b ^ 1)
        ex(b, 6, 8)
        rdK(t + 2, b)
        ex(b, 8, 9)
        rdV(t + 1, b ^ 1)
        ex(b, 9, 11)
        sp(b, 0)
        if t == UN - 1:
            e(f"v_add_u32 v13, {UN * 2048}, v13")
            e("s_sub_u32 s60, s60, 1")
            e("s_cmp_lg_u32 s60, 0")
        ex(b, 11, 16)
    e("s_cbranch_scc1 ATT_LOOP")
    e("s_waitcnt lgkmcnt(0)")
    e("s_nop 1")
    sp(1, 1)
    WOB = 56
    OB = 120
    AC2 = 24
    e("s_lshl_b32 s34, s76, 1")
    e("s_and_b32 s61, s30, 1")
    e("s_add_u32 s34, s34, s61")
    e("s_lshl_b32 s34, s34, 5")
    e("s_and_b32 s60, s30, 2")
    e("s_lshl_b32 s60, s60, 3")
    e("s_add_u32 s34, s34, s60")
    e("s_lshr_b32 s60, s30, 2")
    e("s_add_u32 s34, s34, s60")
    e("s_lshl_b32 s34, s34, 10")
    e(f"s_add_u32 s34, s34, {WS_OF}")
    e("s_add_u32 s35, s34, 4096")
    e("s_add_u32 s36, s34, 8192")
    e("s_add_u32 s37, s34, 12288")
    cs(e, 9)
    e(f"v_rcp_f32 v11, v{O+8}")
    e(f"s_add_u32 s62, s96, {WS_OF}")
    for r in range(8):
        e(f"v_mul_f32 v{O+r}, v{O+r}, v11")
    for r in range(4):
        e(f"v_cvt_pk_bf16_f32 v{164+r}, v{O+2*r}, v{O+2*r+1}")
    e("buffer_store_dwordx4 v[164:167], v2, s[48:51], s62 offen sc1")

    def oload(k0):
        for k in range(k0, 8):
            e(f"buffer_load_dwordx4 {vr(OB+4*k,4)}, v2, s[48:51], s{34+(k>>1)} offen offset:{(k&1)*2048} sc1")
    def wread():
        for k in range(8):
            for m in range(2):
                for rho in range(2):
                    e(f"ds_read_b64_tr_b16 {vr(WOB+8*k+4*m+2*rho,2)}, v{161+m} offset:{k*2048 + rho*1024}")
    def ocheck():
        e(f"v_max_u32 v11, v{OB}, v{OB+1}")
        for r in range(1, 16):
            e(f"v_max3_u32 v11, v11, v{OB+2*r}, v{OB+2*r+1}")
        e("v_cmp_eq_u32 vcc, -1, v11")
    def addrs():
        e("v_and_b32 v10, 31, v1")
        e("v_lshlrev_b32 v12, 2, v10")
        e("s_lshl_b32 s60, s76, 8")
        e("s_bfe_u32 s61, s30, 0x10001")
        e("s_lshl_b32 s61, s61, 7")
        e("s_add_u32 s60, s60, s61")
        e(f"s_add_u32 s60, s60, {WS_G}")
        e("buffer_load_dword v9, v12, s[48:51], s60 offen sc1")
        e("v_lshrrev_b32 v11, 5, v1")
        e("v_lshlrev_b32 v6, 4, v10")
        e("v_lshl_add_u32 v6, v11, 10, v6")
        e("s_lshl_b32 s60, s30, 11")
        e("v_add_u32 v6, s60, v6")
        e("v_add_u32 v5, 0x18000, v6")
        e("v_lshlrev_b32 v10, 10, v10")
        e("v_lshl_add_u32 v10, v11, 4, v10")
        e("s_lshr_b32 s60, s30, 1")
        e("s_lshl_b32 s60, s60, 14")
        e("s_and_b32 s61, s30, 1")
        e("s_lshl_b32 s61, s61, 12")
        e("s_add_u32 s60, s60, s61")
        e("s_add_u32 s60, s60, 0x18000")
        e("v_add_u32 v7, s60, v2")
        e("s_lshl_b32 s63, s76, 16")
        e("s_bfe_u32 s61, s30, 0x10001")
        e("s_lshl_b32 s61, s61, 15")
        e("s_add_u32 s63, s63, s61")
        e("s_lshl_b32 s61, s77, 7")
        e("s_add_u32 s63, s63, s61")
        e("s_lshr_b32 s61, s30, 2")
        e("s_lshl_b32 s61, s61, 6")
        e("s_add_u32 s63, s63, s61")
        e("s_and_b32 s61, s30, 1")
        e("s_lshl_b32 s61, s61, 5")
        e("s_add_u32 s63, s63, s61")
    e("s_cmp_ge_u32 s30, 4")
    e("s_cbranch_scc1 TAIL_ODD")
    addrs()
    e("s_waitcnt vmcnt(0)")
    spin(e, lambda: oload(0), ocheck, 16)
    e("s_barrier")
    wread()
    e("s_waitcnt lgkmcnt(0)")
    e("s_barrier")
    e("s_branch TAIL_JOIN")
    e.label("TAIL_ODD")
    e.bar()
    addrs()
    if "oearly" in OPT:
        oload(0)
    e.bar()
    if "oearly" not in OPT:
        oload(0)
    wread()
    e("s_waitcnt lgkmcnt(0)")
    e.label("TAIL_JOIN")
    f2(e, 4)
    for k in range(8):
        e.label(f"OCHK{k}")
        e(f"s_waitcnt vmcnt({7-k})")
        e(f"v_max_u32 v11, v{OB+4*k}, v{OB+4*k+1}")
        e(f"v_max3_u32 v11, v11, v{OB+4*k+2}, v{OB+4*k+3}")
        e("v_cmp_eq_u32 vcc, -1, v11")
        e("s_nop 4")
        e(f"s_cbranch_vccnz ORETRY{k}")
        e.label(f"OGO{k}")
        if k == 7:
            cs(e, 10)
        for m in range(2):
            d = AC2 + 16 * m
            c = "0" if k == 0 else vr(d, 16)
            e(f"v_mfma_f32_32x32x16_bf16 {vr(d,16)}, {vr(WOB+8*k+4*m,4)}, {vr(OB+4*k,4)}, {c}")
    e("v_sub_f32 v8, 1.0, v9")
    e("s_nop 9")
    for m in range(2):
        for jq in range(4):
            e(f"ds_write_b128 v7, {vr(AC2+16*m+4*jq,4)} offset:{m*8192 + jq*1024}")
    e("s_waitcnt lgkmcnt(0)")
    f2(e, 5)
    e.bar()
    f2(e, 6); f2(e, 7)
    R = 56
    for p in range(8):
        a = 6 if p < 4 else 5
        for hh in range(2):
            e(f"ds_read_b128 {vr(R+8*p+4*hh,4)}, v{a} offset:{(p&3)*16384 + hh*512}")
    for p in (1, 2, 3, 5, 6, 7):
        e(f"s_waitcnt lgkmcnt({2*(7-p)})")
        base = R if p < 4 else R + 32
        for r in range(0, 8, 2):
            e(f"v_pk_add_f32 {vr(base+r,2)}, {vr(base+r,2)}, {vr(R+8*p+r,2)}")
        if p == 3:
            for r in range(8):
                e(f"v_mul_f32 v{R+r}, v{R+r}, v8")
    for r in range(8):
        e(f"v_fmac_f32 v{R+r}, v{R+32+r}, v9")
    for r in range(4):
        e(f"v_cvt_pk_bf16_f32 v{R+8+r}, v{R+2*r}, v{R+2*r+1}")
    e(f"buffer_store_dwordx4 {vr(R+8,4)}, v10, s[52:55], s63 offen")
    stamp(e, 11)
    if STAMP:
        e("s_waitcnt vmcnt(0)")
    stamp(e, 12); stamp(e, 13, True)
    stamp_flush(e, 14)
    e.label("K_END")
    e("s_endpgm")
    for k in range(8):
        e.label(f"ORETRY{k}")
        spin_guard(e, f"OGO{k}")
        e("s_waitcnt vmcnt(0)")
        e(f"s_sleep {int(os.environ.get('OSL', '1'))}")
        oload(k)
        e(f"s_branch OCHK{k}")
    return nb_ffn, e.nbar


def kd(name, vgpr, sgpr=102):
    acc = (vgpr + 3) // 4 * 4
    return f""".p2align 6
.amdhsa_kernel {name}
  .amdhsa_next_free_vgpr {vgpr}
  .amdhsa_next_free_sgpr {sgpr}
  .amdhsa_accum_offset {acc}
  .amdhsa_group_segment_fixed_size 0
  .amdhsa_kernarg_size 104
  .amdhsa_user_sgpr_count 2
  .amdhsa_user_sgpr_kernarg_segment_ptr 1
  .amdhsa_system_sgpr_workgroup_id_x 1
.end_amdhsa_kernel
"""


def main(out):
    ref = open(f"cdna_kernels/{NAME}.s.ref").read().split("\n")
    hdr = [l for l in ref if l.startswith(";") and "@launch" not in l and "Override" not in l and "grid=ceil" not in l]
    e = Asm()
    prologue(e)
    sp_start(e)
    n1 = loader(e)
    n2 = service(e)
    n3 = down(e)
    nf, nc = compute(e)
    n5 = sp_helper(e)
    n6 = sp_compute(e)
    e.label("CODE_END")
    assert n1 == n2 and n1 + n3 == nf + nc and n5 + n3 == n6 + nc, (n1, n2, n3, nf, nc, n5, n6)
    s = "\n".join(hdr) + "\n"
    s += f"; @launch grid=(256,1,1) block=(768,1,1) lds={LDS_TOTAL}\n"
    s += '.amdgcn_target "amdgcn-amd-amdhsa--gfx950"\n.text\n'
    s += e.text()
    s += '.section .rodata,"a"\n'
    s += kd(NAME + "_kernel", 168)
    open(out, "w").write(s)


if __name__ == "__main__":
    main(sys.argv[1] if len(sys.argv) > 1 else f"cdna_kernels/{NAME}.s")
```

```python
import sys, os, struct

NAME = "gated_mix__grouped_kv_mqa__glu_gated_glu__prompt"

WS_OF = 2 << 20
WS_KV = 4 << 20
WS_KN = WS_KV + 131072
WS_G = WS_KN + 4096
WS_FL = WS_G + 8192
WS_HF = 8 << 20
WS_ST = 15 << 20
WS_SIZE = 16 << 20
OOB = 0x7f000000

LOG2E = 1.4426950408889634
STAMP = os.environ.get("STAMP", "0") == "1"
OPT = set(os.environ.get("OPT", "").split(","))
FINE = "fine" in OPT
FINE2 = "fine2" in OPT


def fbits(x):
    return "0x%08x" % struct.unpack("<I", struct.pack("<f", x))[0]


class Asm:
    def __init__(self):
        self.lines = []
        self.vm = []
        self.uid = 0
        self.nbar = 0
    def __call__(self, s):
        self.lines.append("    " + s)
    def label(self, s):
        self.lines.append(s + ":")
    def raw(self, s):
        self.lines.append(s)
    def vmem(self, s, tag):
        self(s)
        self.vm.append(tag)
    def wait_vm(self, tag):
        idxs = [i for i, t in enumerate(self.vm) if t == tag]
        if not idxs:
            return
        idx = max(idxs)
        n = len(self.vm) - 1 - idx
        assert n <= 63
        self(f"s_waitcnt vmcnt({n})")
        self.vm = self.vm[idx + 1:]
    def wait_all(self):
        self("s_waitcnt vmcnt(0)")
        self.vm = []
    def bar(self):
        self("s_barrier")
        self.nbar += 1
    def newlabel(self, p):
        self.uid += 1
        return f"{p}_{self.uid}"
    def text(self):
        return "\n".join(self.lines) + "\n"


def stamp(e, i, real=False):
    if not STAMP:
        return
    e(("s_memrealtime" if real else "s_memtime") + " s[78:79]")
    e("s_waitcnt lgkmcnt(0)")
    e(f"s_mov_b32 s{80+i}, s78")


def cs(e, i):
    if not FINE and not (FINE2 and i in (4, 5, 6, 7)):
        stamp(e, i)


def f2(e, i):
    if FINE2:
        stamp(e, i)


def fs(e, i):
    if FINE:
        stamp(e, i)


def stamp_flush(e, n):
    if not STAMP:
        return
    if "dbg" in OPT:
        lab = e.newlabel("DBGS")
        lo = int(os.environ.get("DBGW", "4"))
        e(f"s_sub_u32 s78, s30, {lo}")
        e("s_cmp_ge_u32 s78, 4")
        e(f"s_cbranch_scc1 {lab}")
        e(("s_cmp_lt_u32" if "dbgsp" in OPT else "s_cmp_ge_u32") + " s56, 14")
        e(f"s_cbranch_scc1 {lab}")
        srd(e, 72, 26, 256)
        e("v_mov_b32 v0, 0")
        e("s_mov_b64 exec, 1")
        for i in range(2, 13):
            e(f"s_sub_u32 s78, s{80+i}, s81")
            e("v_mov_b32 v1, s78")
            e(f"buffer_atomic_umax v1, v0, s[72:75], 0 offen offset:{4*i}")
        e("s_sub_u32 s78, s93, s80")
        e("v_mov_b32 v1, s78")
        e(f"buffer_atomic_umax v1, v0, s[72:75], 0 offen offset:52")
        e("s_mov_b64 exec, -1")
        e.label(lab)
        return
    e("s_lshl_b32 s78, s2, 4")
    e("s_add_u32 s78, s78, s30")
    e("s_lshl_b32 s78, s78, 6")
    e(f"s_add_u32 s78, s78, {WS_ST}")
    e("v_mov_b32 v0, 0")
    e("s_mov_b64 exec, 1")
    for i in range(n):
        e(f"v_mov_b32 v1, s{80+i}")
        e(f"buffer_store_dword v1, v0, s[48:51], s78 offen offset:{4*i}")
    e("s_mov_b64 exec, -1")


def vr(a, n=1):
    return f"v{a}" if n == 1 else f"v[{a}:{a+n-1}]"


def srd(e, d, base, size):
    e(f"s_mov_b32 s{d}, s{base}")
    e(f"s_mov_b32 s{d+1}, s{base+1}")
    e(f"s_mov_b32 s{d+2}, {size}")
    e(f"s_mov_b32 s{d+3}, 0x00020000")


def allreduce(e, op, x, t, lo=0, hi=6):
    dpp = ["quad_perm:[1,0,3,2]", "quad_perm:[2,3,0,1]", "row_half_mirror", "row_mirror"]
    for b in range(lo, min(hi, 4)):
        e("s_nop 1")
        e(f"{op}_dpp v{x}, v{x}, v{x} {dpp[b]} row_mask:0xf bank_mask:0xf")
    for b, ins in ((4, "v_permlane16_swap_b32"), (5, "v_permlane32_swap_b32")):
        if lo <= b < hi:
            e(f"v_mov_b32 v{t}, v{x}")
            e("s_nop 1")
            e(f"{ins} v{x}, v{t}")
            e("s_nop 1")
            e(f"{op} v{x}, v{x}, v{t}")


X_ST = 16384
W_BASE = 3 * X_ST
QS_BASE = 32768
X_BASE = [0, 16384, 147456]
LDS_TOTAL = 163840
def stage(kc):
    return (kc + 1) % 3
SAFE_BOUND = 48.0
WD_BASE = 131072
NBW = 4


def spin_guard(e, done):
    e("s_cmp_eq_u32 s100, 0")
    e(f"s_cbranch_scc1 {done}")
    e("s_sub_u32 s100, s100, 1")


def spin(e, load, check, sleep, preloaded=False):
    lo, chk, done = e.newlabel("SPIN"), e.newlabel("SPINC"), e.newlabel("SPIND")
    if preloaded:
        e(f"s_branch {chk}")
    e.label(lo)
    load()
    e.label(chk)
    e.wait_all()
    check()
    e("s_nop 4")
    e(f"s_cbranch_vccz {done}")
    spin_guard(e, done)
    e(f"s_sleep {sleep}")
    e(f"s_branch {lo}")
    e.label(done)


def tr_addr128(e, d0, d1, t0, t1):
    e(f"v_bfe_u32 v{t0}, v1, 2, 2")
    e(f"v_lshrrev_b32 v{t1}, 5, v1")
    e(f"v_lshl_add_u32 v{d0}, v{t1}, 2, v{t0}")
    e(f"v_lshlrev_b32 v{d0}, 7, v{d0}")
    e(f"v_bfe_u32 v{t1}, v1, 4, 1")
    e(f"v_lshl_add_u32 v{d0}, v{t1}, 5, v{d0}")
    e(f"v_and_b32 v{t1}, 3, v1")
    e(f"v_lshl_add_u32 v{d0}, v{t1}, 3, v{d0}")
    e(f"v_bfe_u32 v{t1}, v1, 3, 1")
    e(f"v_lshlrev_b32 v{t1}, 6, v{t1}")
    e(f"v_add_u32 v{d0}, v{d0}, v{t1}")
    e(f"v_xor_b32 v{d1}, 64, v{d0}")


def dma_voff128(e, d, t0, t1):
    e(f"v_lshrrev_b32 v{t0}, 3, v1")
    e(f"v_bfe_u32 v{t1}, v1, 4, 1")
    e(f"v_lshlrev_b32 v{t1}, 2, v{t1}")
    e(f"v_and_b32 v{d}, 7, v1")
    e(f"v_xor_b32 v{d}, v{d}, v{t1}")
    e(f"v_lshlrev_b32 v{d}, 4, v{d}")
    e(f"v_lshl_add_u32 v{d}, v{t0}, 10, v{d}")


def prologue(e):
    n = NAME + "_kernel"
    e.raw(f".globl {n}\n.p2align 8\n.type {n},@function\n{n}:")
    e("s_cmp_ge_u32 s2, 256")
    e("s_cbranch_scc1 K_END")
    stamp(e, 0, True); stamp(e, 1)
    e("s_load_dwordx16 s[4:19], s[0:1], 0")
    e("s_load_dwordx8 s[20:27], s[0:1], 64")
    e("s_load_dwordx2 s[28:29], s[0:1], 96")
    e("s_mov_b32 s100, %d" % (0 if "nospin" in OPT else 0x20000))
    e("v_lshrrev_b32 v2, 6, v0")
    e("v_and_b32 v1, 63, v0")
    e("v_readfirstlane_b32 s30, v2")
    e("v_lshlrev_b32 v2, 4, v1")
    e("v_lshlrev_b32 v3, 2, v1")
    e("v_lshrrev_b32 v6, 4, v1")
    e("s_and_b32 s57, s2, 7")
    e("s_lshr_b32 s59, s2, 3")
    e("s_and_b32 s94, s59, 7")
    e("s_lshr_b32 s95, s59, 3")
    e("s_and_b32 s31, s57, 1")
    e("s_lshl_b32 s31, s31, 3")
    e("s_add_u32 s31, s31, s94")
    e("s_lshr_b32 s56, s57, 1")
    e("s_xor_b32 s60, s95, 3")
    e("s_lshl_b32 s60, s60, 2")
    e("s_add_u32 s56, s56, s60")
    e("s_and_b32 s76, s57, 3")
    e("s_lshl_b32 s76, s76, 3")
    e("s_add_u32 s76, s76, s94")
    e("s_lshr_b32 s77, s57, 2")
    e("s_lshl_b32 s77, s77, 2")
    e("s_add_u32 s77, s77, s95")
    e("s_sub_u32 s3, s30, 8")
    rot = os.environ.get("ROT", "8")
    e("s_lshl_b32 s58, s95, 1")
    e("s_add_u32 s58, s58, s94")
    if rot == "4":
        e("s_and_b32 s58, s58, 6")
    elif rot == "2":
        e("s_add_u32 s58, s94, s95")
        e("s_and_b32 s58, s58, 1")
        e("s_lshl_b32 s58, s58, 2")
    elif rot == "1":
        e("s_mov_b32 s58, 0")
    e("s_cmp_ge_u32 s56, 14")
    e("s_cbranch_scc1 SP_START")
    e("s_cmp_lt_u32 s30, 8")
    e("s_cbranch_scc1 COMPUTE")
    e("s_cmp_eq_u32 s3, 3")
    e("s_cbranch_scc1 SERVICE")
    e("s_branch LOADER")


def x_dma_voff(e):
    e("v_and_b32 v8, 7, v1")
    e("v_xor_b32 v7, v6, v8")
    e("v_lshrrev_b32 v8, 3, v1")
    e("v_lshlrev_b32 v8, 10, v8")
    e("v_lshl_add_u32 v4, v7, 4, v8")
    e("v_xor_b32 v5, 64, v4")


def kv_piece(e, tab):
    e(f"s_mov_b32 s59, {sum(t << (8 * i) for i, t in enumerate(tab)):#x}")
    e("s_lshl_b32 s62, s3, 3")
    e("s_lshr_b32 s59, s59, s62")
    e("s_and_b32 s59, s59, 15")
    e("s_add_u32 s62, s59, s94")
    e("s_and_b32 s62, s62, 7")
    e("s_lshl_b32 s62, s62, 14")
    e(f"s_add_u32 s62, s62, {WS_KV}")
    e("s_lshl_b32 s59, s59, 14")
    for n in range(16):
        if n % 4 == 0:
            e(f"s_add_u32 m0, s59, {n * 1024}")
            e(f"s_add_u32 s64, s62, {n * 1024}")
        e.vmem(f"buffer_load_dwordx4 v2, s[48:51], s64 offen offset:{(n & 3) * 1024} sc1 lds", "kvl")


def cnt_spin(e, off):
    e("v_mov_b32 v17, 0")
    spin(e, lambda: e(f"buffer_load_dword v20, v17, s[72:75], 0 offen offset:{off} sc1"),
         lambda: e("v_cmp_gt_u32 vcc, 32, v20"), 32)


def cnt_arrive(e, off):
    e("v_mov_b32 v21, 1")
    e("v_mov_b32 v17, 0")
    e("s_mov_b64 exec, 1")
    e(f"buffer_atomic_add v21, v17, s[72:75], 0 offen offset:{off} sc1")
    e("s_mov_b64 exec, -1")


def loader(e):
    e.label("LOADER")
    e.vm = []
    e.nbar = 0
    e("s_lshl_b32 s63, s56, 8")
    e("v_mul_u32_u24 v8, 3584, v6")
    e("v_lshlrev_b32 v7, 2, v6")
    e("v_and_b32 v10, 15, v1")
    e("v_xor_b32 v7, v7, v10")
    e("v_lshl_add_u32 v4, v7, 4, v8")
    e("v_mov_b32 v5, v4")
    e(f"s_mov_b32 s65, {4 * 3584}")
    e(f"s_mov_b32 s66, {64 * 3584}")
    e("s_lshl_b32 s67, s3, 14")
    e(f"s_add_u32 s67, s67, {W_BASE - 16384}")
    e("s_add_u32 s69, s67, 32768")
    e("s_add_u32 s70, s69, 32768")
    e("s_mov_b32 s34, %d" % (512 * 3584))
    e("s_cmp_lg_u32 s3, 0")
    e("s_cbranch_scc1 LD_W")
    x_dma_voff(e)
    e("s_lshl_b32 s63, s31, 17")
    e("s_mov_b32 s65, 8192")
    e("s_mov_b32 s66, 128")
    e("s_mov_b32 s67, 0")
    e(f"s_mov_b32 s69, {X_BASE[1]}")
    e(f"s_mov_b32 s70, {X_BASE[2]}")
    e("s_mov_b32 s34, %d" % (2048 * 1024))
    e.label("LD_W")
    e("s_mov_b32 s35, 0x00020000")
    e("s_waitcnt lgkmcnt(0)")
    stamp(e, 2)
    e("s_cmp_eq_u32 s3, 1")
    e("s_cselect_b32 s32, s16, s18")
    e("s_cselect_b32 s33, s17, s19")
    e("s_cmp_eq_u32 s3, 0")
    e("s_cselect_b32 s32, s4, s32")
    e("s_cselect_b32 s33, s5, s33")

    def dma(kc, n0=0, n1=16):
        sb = (67, 69, 70)[stage(kc)]
        so = 60 + (kc & 1)
        if n0 == 0:
            e(f"s_add_u32 s59, s58, {kc}")
            e("s_and_b32 s59, s59, 7")
            e(f"s_mul_i32 s{so}, s66, s59")
            e(f"s_add_u32 s{so}, s{so}, s63")
        for n in range(n0, n1):
            e(f"s_add_u32 m0, s{sb}, {n * 1024}")
            if n > 0:
                e(f"s_add_u32 s{so}, s{so}, s65")
            else:
                e("s_nop 0")
            e.vmem(f"buffer_load_dwordx4 v{4 + (n & 1)}, s[32:35], s{so} offen lds", f"c{kc}")

    LA = int(os.environ.get("LA", "6"))
    dma(0)
    dma(1, 0, LA)
    srd(e, 48, 28, WS_SIZE)
    e.wait_vm("c0")
    e.bar()
    stamp(e, 3)
    for kc in range(7):
        dma(kc + 1, LA, 16)
        if kc + 2 < 8:
            dma(kc + 2, 0, LA)
        if kc == 6:
            kv_piece(e, (0, 3, 4))
        e.wait_vm(f"c{kc+1}")
        fs(e, 4 + kc)
        e.bar()
        if kc == 3:
            cs(e, 4)
    kv_piece(e, (1, 5, 6))
    e.bar()
    cs(e, 5)
    e.bar()
    e("s_cmp_eq_u32 s3, 2")
    e("s_cbranch_scc1 KVP_SKIP")
    kv_piece(e, (7, 2, 2))
    e.label("KVP_SKIP")
    e.wait_all()
    cs(e, 6)
    e.bar()
    cs(e, 7)
    e("s_branch DOWN")
    return e.nbar


def wq_voff(e):
    e("v_lshrrev_b32 v7, 2, v1")
    e("v_and_b32 v8, 3, v1")
    e("v_lshlrev_b32 v8, 4, v8")
    e("v_lshl_add_u32 v4, v7, 10, v8")


def service(e):
    e.label("SERVICE")
    e.vm = []
    e.nbar = 0
    wq_voff(e)
    e("s_lshl_b32 s63, s56, 6")
    e("s_waitcnt lgkmcnt(0)")
    stamp(e, 2)
    srd(e, 32, 6, 512 * 1024)

    def dma(kc):
        e(f"s_add_u32 s59, s58, {kc}")
        e("s_and_b32 s59, s59, 7")
        e("s_lshl_b32 s60, s59, 16")
        e("s_add_u32 s60, s60, s63")
        for n in range(4):
            e(f"s_mov_b32 m0, {QS_BASE + stage(kc) * 4096 + n * 1024}")
            e("s_add_u32 s60, s60, 16384" if n else "s_nop 0")
            e.vmem("buffer_load_dwordx4 v4, s[32:35], s60 offen lds", f"c{kc}")
    dma(0)
    dma(1)
    srd(e, 48, 28, WS_SIZE)
    srd(e, 72, 26, 0 if "noflag" in OPT else 256)
    e.wait_vm("c0")
    e.bar()
    stamp(e, 3)
    for kc in range(7):
        if kc + 2 < 8:
            dma(kc + 2)
        if kc == 5:
            cnt_spin(e, 0)
        e.wait_vm(f"c{kc+1}")
        fs(e, 4 + kc)
        e.bar()
        if kc == 3:
            cs(e, 4)
    e.bar()
    cs(e, 5)
    e.bar()
    cnt_spin(e, 128)
    cs(e, 6)
    e.bar()
    cs(e, 7)
    return e.nbar


def down(e):
    e.label("DOWN")
    e.vm = []
    e.nbar = 0
    srd(e, 44, 20, 1792 * 1024)
    e("s_mul_i32 s32, s76, 224")
    e("s_mul_i32 s60, s3, 28")
    e("s_add_u32 s32, s32, s60")
    e("s_lshl_b32 s32, s32, 10")
    e(f"s_add_u32 s32, s32, {WS_HF}")
    e(f"s_add_u32 s33, s32, {112*1024}")
    e("s_lshl_b32 s36, s60, 14")
    e("s_lshl_b32 s61, s77, 7")
    e("s_add_u32 s36, s36, s61")
    e(f"s_mul_i32 s37, s3, {NBW * 2048}")
    e(f"s_add_u32 s37, s37, {WD_BASE}")
    e("s_setprio 2")
    dma_voff128(e, 4, 7, 8)
    tr_addr128(e, 9, 10, 7, 8)
    e("v_add_u32 v9, s37, v9")
    e("v_add_u32 v10, s37, v10")
    e("s_lshl_b32 s62, s76, 9")
    e("s_lshl_b32 s60, s3, 7")
    e("s_add_u32 s62, s62, s60")
    e(f"s_add_u32 s62, s62, {WS_FL}")
    DAC = 24
    WB = 88
    HB = 104
    NBH = 8

    def wload(ks):
        for u in range(2):
            e(f"s_add_u32 m0, s37, {(ks % NBW) * 2048 + u * 1024}")
            e(f"s_add_u32 s60, s36, {ks * 16384 + u * 8192}")
            e.vmem("buffer_load_dwordx4 v4, s[44:47], s60 offen lds", f"w{ks}")
    def hload(ks):
        f = HB + 8 * (ks % NBH)
        for t in range(2):
            e(f"s_add_u32 s60, s{32+t}, {ks*1024}")
            e.vmem(f"buffer_load_dwordx4 {vr(f+4*t,4)}, v2, s[48:51], s60 offen sc1", f"h{ks}")
    def wread(ks):
        f = WB + 8 * (ks & 1)
        for m in range(2):
            for rho in range(2):
                e(f"ds_read_b64_tr_b16 {vr(f+4*m+2*rho,2)}, v{9+m} offset:{(ks % NBW) * 2048 + rho * 1024}")

    e("s_cmp_ge_u32 s56, 14")
    e("s_cbranch_scc1 H_SKIP")
    e("v_add_u32 v7, s37, v2")
    for n in range(8):
        e(f"ds_read_b128 {vr(HB+4*n,4)}, v7 offset:{n*1024}")
    e("s_lshl_b32 s64, s31, 2")
    e("s_and_b32 s60, s3, 2")
    e("s_add_u32 s64, s64, s60")
    e("s_mul_i32 s64, s64, 112")
    e("s_lshl_b32 s60, s56, 1")
    e("s_and_b32 s61, s3, 1")
    e("s_add_u32 s66, s60, s61")
    e("s_lshl_b32 s60, s66, 2")
    e("s_add_u32 s64, s64, s60")
    e("s_lshl_b32 s64, s64, 10")
    e(f"s_add_u32 s64, s64, {WS_HF}")
    e(f"s_add_u32 s65, s64, {112*1024}")
    e("s_mul_i32 s60, s66, 37")
    e("s_lshr_b32 s60, s60, 8")
    e("s_mul_i32 s61, s60, 25")
    e("s_add_u32 s66, s66, s61")
    e("s_lshl_b32 s66, s66, 2")
    e("s_lshl_b32 s60, s31, 10")
    e("s_add_u32 s66, s66, s60")
    e("s_and_b32 s60, s3, 2")
    e("s_lshl_b32 s60, s60, 8")
    e("s_add_u32 s66, s66, s60")
    e(f"s_add_u32 s66, s66, {WS_FL}")
    e("s_waitcnt lgkmcnt(0)")
    for n in range(8):
        u, t, k = n >> 2, (n >> 1) & 1, n & 1
        e(f"buffer_store_dwordx4 {vr(HB+4*n,4)}, v2, s[48:51], s{64+t} offen offset:{(2*u+k)*1024} sc1")
        HT = int(os.environ.get("HT", "63"))
        if HT < 63:
            e(f"s_waitcnt vmcnt({HT})")
    f2(e, 4)
    e("v_mov_b32 v12, 1")
    e("v_mov_b32 v11, 0")
    e("s_waitcnt vmcnt(0)")
    f2(e, 5)
    e("s_mov_b64 exec, 1")
    e("buffer_store_dword v12, v11, s[48:51], s66 offen sc1")
    e("s_mov_b64 exec, -1")
    e.label("H_SKIP")
    f2(e, 6); f2(e, 7)
    for ks in range(NBW):
        wload(ks)

    def fl_ld():
        e("s_mov_b64 exec, 0x7f")
        e("buffer_load_dword v20, v3, s[48:51], s62 offen sc1")
        e("s_mov_b64 exec, -1")
    def fl_ck():
        e("s_mov_b64 exec, 0x7f")
        e("v_cmp_ne_u32 vcc, 1, v20")
        e("s_mov_b64 exec, -1")
    if "slp" in OPT:
        e("s_sleep 100")
    spin(e, fl_ld, fl_ck, 16)
    e("s_setprio 0")
    cs(e, 8)
    HA = int(os.environ.get("HA", "4"))
    for ks in range(HA):
        hload(ks)
    wread(0)
    for ks in range(28):
        e("s_waitcnt lgkmcnt(0)")
        if ks + NBW < 28:
            wload(ks + NBW)
        if ks + HA < 28:
            hload(ks + HA)
        if ks + 1 < 28:
            e.wait_vm(f"w{ks+1}")
            wread(ks + 1)
        e.wait_vm(f"h{ks}")
        f = WB + 8 * (ks & 1)
        h = HB + 8 * (ks % NBH)
        for m in range(2):
            for t in range(2):
                d = DAC + 32 * m + 16 * t
                c = "0" if ks == 0 else vr(d, 16)
                e(f"v_mfma_f32_32x32x16_bf16 {vr(d,16)}, {vr(f+4*m,4)}, {vr(h+4*t,4)}, {c}")
    cs(e, 9)
    e("s_setprio 2")
    srd(e, 44, 12, 512 * 1024)
    e("s_lshl_b32 s36, s3, 17")
    e("s_lshl_b32 s61, s77, 7")
    e("s_add_u32 s36, s36, s61")
    for n in range(16):
        e(f"s_add_u32 s60, s36, {n * 8192}")
        e(f"buffer_load_dwordx4 {vr(HB + 4 * n, 4)}, v4, s[44:47], s60 offen")
    e("s_lshl_b32 s60, s3, 14")
    e("v_add_u32 v6, s60, v2")
    e("v_add_u32 v8, s37, v2")
    e("v_subrev_u32 v7, 0x10000, v8")
    e("s_waitcnt vmcnt(0)")
    for n in range(16):
        if (n >> 1) & 1 == 0:
            e(f"ds_write_b128 v8, {vr(HB+4*n,4)} offset:{((n>>2)*2 + (n&1))*1024}")
    e("s_waitcnt lgkmcnt(0)")
    e.bar()
    cs(e, 10)
    for n in range(16):
        if (n >> 1) & 1 == 1:
            e(f"ds_write_b128 v7, {vr(HB+4*n,4)} offset:{((n>>2)*2 + (n&1))*1024}")
    e("s_waitcnt lgkmcnt(0)")
    e.bar()
    for q in range(16):
        e(f"ds_write_b128 v6, {vr(DAC+4*q,4)} offset:{q*1024}")
    e("s_waitcnt lgkmcnt(0)")
    e.bar()
    stamp(e, 11); stamp(e, 12); stamp(e, 13, True)
    stamp_flush(e, 14)
    e("s_endpgm")
    return e.nbar


SP_XB = 65536
SP_WQ = 131072


def sp_xload(e, rows_sgpr, lds_sgpr, chunk_sgpr):
    e(f"s_lshl_b32 s60, s{chunk_sgpr}, 7")
    e(f"s_add_u32 s60, s60, s{rows_sgpr}")
    e(f"s_lshl_b32 s61, s{chunk_sgpr}, 13")
    e(f"s_add_u32 s61, s61, {lds_sgpr}")
    for n in range(8):
        e(f"s_add_u32 m0, s61, {n * 1024}")
        e("s_add_u32 s60, s60, 8192" if n else "s_nop 0")
        e(f"buffer_load_dwordx4 v{4 + (n & 1)}, s[32:35], s60 offen lds")


def sp_start(e):
    e.label("SP_START")
    e("s_lshl_b32 s60, s31, 1")
    e("s_add_u32 s60, s60, s56")
    e("s_sub_u32 s97, s60, 14")
    e("s_lshl_b32 s63, s97, 16")
    x_dma_voff(e)
    e("s_waitcnt lgkmcnt(0)")
    srd(e, 32, 4, 2048 * 1024)
    e("s_cmp_ge_u32 s30, 8")
    e("s_cbranch_scc1 SP_START_H")
    sp_xload(e, 63, 0, 30)
    e("s_branch COMPUTE")
    e.label("SP_START_H")
    e("s_cmp_lt_u32 s3, 2")
    e("s_cselect_b32 s36, s8, s10")
    e("s_cselect_b32 s37, s9, s11")
    e("s_mov_b32 s38, 16384")
    e("s_mov_b32 s39, 0x00020000")
    e("s_lshl_b32 s61, s3, 13")
    e("s_and_b32 s62, s61, 0x2000")
    for n in range(8):
        if n % 4 == 0:
            e(f"s_add_u32 m0, s61, {SP_XB + n * 1024}")
            e(f"s_add_u32 s60, s62, {n * 1024}")
        e(f"buffer_load_dwordx4 v2, s[36:39], s60 offen offset:{(n & 3) * 1024} lds")
    e("s_branch SP_HELPER")


def sp_helper(e):
    e.label("SP_HELPER")
    e.vm = []
    e.nbar = 0
    e("v_mov_b32 v16, 0")
    stamp(e, 2)
    srd(e, 48, 28, WS_SIZE)
    srd(e, 72, 26, 0 if "noflag" in OPT else 256)
    e.wait_all()
    e.bar()
    stamp(e, 3)
    srd(e, 36, 22, 1024)
    e(f"s_mov_b32 m0, {SP_XB + 32768}")
    e("v_lshrrev_b32 v7, 2, v1")
    e("buffer_load_dwordx4 v2, s[36:39], 0 offen lds")
    e("v_and_b32 v8, 3, v1")
    e("v_lshlrev_b32 v8, 4, v8")
    e("v_lshl_add_u32 v9, v7, 10, v8")
    srd(e, 40, 6, 512 * 1024)
    e("s_lshl_b32 s60, s3, 17")
    e("s_lshl_b32 s62, s56, 6")
    e("s_add_u32 s60, s60, s62")
    e("s_lshl_b32 s61, s3, 13")
    for n in range(8):
        e(f"s_add_u32 m0, s61, {SP_WQ + n * 1024}")
        e("s_add_u32 s60, s60, 16384" if n else "s_nop 0")
        e("buffer_load_dwordx4 v9, s[40:43], s60 offen lds")
    e("s_lshl_b32 s60, s97, 9")
    e("s_lshl_b32 s61, s3, 7")
    e("s_add_u32 s60, s60, s61")
    e(f"s_add_u32 s60, s60, {WS_FL}")
    e("s_mov_b64 exec, 0xff")
    e("buffer_store_dword v16, v3, s[48:51], s60 offen sc1")
    e("s_mov_b64 exec, -1")
    for r in range(4):
        e(f"v_mov_b32 v{12+r}, -1")
    e("s_xor_b32 s63, s97, 1")
    e("s_lshl_b32 s63, s63, 16")
    e.wait_all()
    e.bar()
    cs(e, 4)
    e("s_cmp_lg_u32 s3, 3")
    e("s_cbranch_scc1 SPH_A")
    cnt_arrive(e, 0)
    e.label("SPH_A")
    e("s_lshl_b32 s60, s97, 16")
    e("s_lshl_b32 s61, s3, 14")
    e("s_add_u32 s60, s60, s61")
    e(f"s_add_u32 s60, s60, {WS_OF}")
    for n in range(16):
        if n % 4 == 0:
            e(f"s_add_u32 s61, s60, {n * 1024}")
        e(f"buffer_store_dwordx4 v[12:15], v2, s[48:51], s61 offen offset:{(n & 3) * 1024} sc1")
    e.bar()
    for u in range(2):
        e("s_lshl_b32 s62, s3, 1")
        e(f"s_add_u32 s62, s62, {u}")
        sp_xload(e, 63, SP_XB, 62)
    e.wait_all()
    e.bar()
    cs(e, 5)
    e("s_cmp_lg_u32 s3, 3")
    e("s_cbranch_scc1 SPH_C")
    cnt_arrive(e, 128)
    e.label("SPH_C")
    e("s_cmp_lg_u32 s3, 3")
    e("s_cbranch_scc1 SPH_B")
    cnt_spin(e, 0)
    e.label("SPH_B")
    e.wait_all()
    e.bar()
    e.bar()
    kv_piece(e, (0, 1, 2, 3))
    kv_piece(e, (4, 5, 6, 7))
    e("s_cmp_lg_u32 s3, 3")
    e("s_cbranch_scc1 SPH_D")
    cnt_spin(e, 128)
    e.label("SPH_D")
    e.wait_all()
    cs(e, 6)
    e.bar()
    cs(e, 7)
    e("s_branch DOWN")
    return e.nbar


def sp_compute(e):
    e.label("SP_COMPUTE")
    e.vm = []
    e.nbar = 0
    A = 64
    srd(e, 48, 28, WS_SIZE)
    srd(e, 52, 24, 2048 * 1024)
    e("v_mov_b32 v8, 0xdddd")
    stamp(e, 2)

    def xaddr(base):
        e("v_and_b32 v14, 31, v1")
        e("v_lshrrev_b32 v15, 5, v1")
        e("v_bfe_u32 v16, v1, 1, 3")
        e("v_xor_b32 v16, v16, v15")
        e("s_and_b32 s60, s30, 1")
        e("s_lshl_b32 s60, s60, 12")
        e(f"s_add_u32 s60, s60, {base}")
        e("v_lshlrev_b32 v17, 7, v14")
        e("v_add_u32 v17, s60, v17")
        for s in range(4):
            e(f"v_xor_b32 v18, {2*s}, v16")
            e(f"v_lshl_add_u32 v{10+s}, v18, 4, v17")
        e("v_bfe_u32 v16, v1, 2, 2")
        e("v_lshl_add_u32 v17, v15, 3, v16")
        e("v_and_b32 v18, 3, v1")
        e("v_lshlrev_b32 v18, 3, v18")
        for r in range(16):
            e(f"v_mov_b32 v{A+r}, 0")

    def chain(kind):
        lab = e.newlabel("CH")
        rs = {"K": 32, "V": 32, "Q": 64, "G": 2}[kind]
        if kind in "KV":
            e("v_lshl_add_u32 v14, v17, 5, v18")
            e(f"v_add_u32 v14, {SP_XB + (16384 if kind == 'V' else 0)}, v14")
        elif kind == "Q":
            e("v_lshl_add_u32 v14, v17, 6, v18")
            e("v_bfe_u32 v19, v1, 4, 1")
            e("v_lshl_add_u32 v14, v19, 5, v14")
            e(f"v_add_u32 v14, {SP_WQ}, v14")
        else:
            e("v_lshlrev_b32 v14, 4, v15")
            e(f"v_add_u32 v14, {SP_XB + 32768}, v14")
        def rd(s):
            e(f"ds_read_b128 {vr(24+4*s,4)}, v{10+s}")
            if kind == "G":
                e(f"ds_read_b128 {vr(40+4*s,4)}, v14 offset:{s*32}")
            else:
                for rho in range(2):
                    e(f"ds_read_b64_tr_b16 {vr(40+4*s+2*rho,2)}, v14 offset:{(16*s+4*rho)*rs}")
            e(f"v_add_u32 v{10+s}, 0x2000, v{10+s}")
            if s == 3:
                e(f"v_add_u32 v14, {64*rs}, v14")
        nrd = 2 if kind == "G" else 3
        for s in range(4):
            rd(s)
        e("s_mov_b32 s60, 8")
        e.label(lab)
        for s in range(4):
            e(f"s_waitcnt lgkmcnt({3 * nrd})")
            a, b = vr(40+4*s, 4), vr(24+4*s, 4)
            if kind == "V":
                a, b = b, a
            e(f"v_mfma_f32_32x32x16_bf16 {vr(A,16)}, {a}, {b}, {vr(A,16)}")
            rd(s)
        e("s_sub_u32 s60, s60, 1")
        e("s_cmp_lg_u32 s60, 0")
        e(f"s_cbranch_scc1 {lab}")
        e("s_waitcnt lgkmcnt(0)")

    xaddr(0)
    e("s_lshl_b32 s98, s97, 1")
    e("s_and_b32 s60, s30, 1")
    e("s_add_u32 s98, s98, s60")
    e.wait_all()
    e.bar()
    stamp(e, 3)
    e("s_lshr_b32 s99, s30, 1")
    e("s_cmp_eq_u32 s99, 1")
    e("s_cbranch_scc1 SPC_V")
    e("s_cmp_eq_u32 s99, 2")
    e("s_cbranch_scc1 SPC_G")
    e("s_cmp_eq_u32 s99, 3")
    e("s_cbranch_scc1 SPC_Q")
    chain("K")
    e(f"s_mov_b32 s60, {fbits(0.25 * LOG2E)}")
    e("v_and_b32 v14, 0x33, v1")
    e("v_bfe_u32 v15, v1, 2, 1")
    e("v_lshl_add_u32 v14, v15, 3, v14")
    e("v_bfe_u32 v15, v1, 3, 1")
    e("v_lshl_add_u32 v14, v15, 2, v14")
    e("v_lshlrev_b32 v14, 4, v14")
    e("s_nop 4")
    for r in range(8):
        e(f"v_mul_f32 v{A+r}, s60, v{A+r}")
    e(f"v_mul_f32 v18, v{A}, v{A}")
    for r in range(1, 8):
        e(f"v_fmac_f32 v18, v{A+r}, v{A+r}")
    for r in range(4):
        e(f"v_cvt_pk_bf16_f32 v{A+8+r}, v{A+2*r}, v{A+2*r+1}")
    e("s_lshl_b32 s60, s98, 11")
    e(f"s_add_u32 s60, s60, {WS_KV}")
    e(f"buffer_store_dwordx4 {vr(A+8,4)}, v14, s[48:51], s60 offen sc1")
    allreduce(e, "v_add_f32", 18, 19, 5, 6)
    allreduce(e, "v_max_f32", 18, 19, 0, 5)
    e("s_lshl_b32 s60, s98, 2")
    e(f"s_add_u32 s60, s60, {WS_KN}")
    e("s_mov_b64 exec, 1")
    e("buffer_store_dword v18, v3, s[48:51], s60 offen sc1")
    e("s_mov_b64 exec, -1")
    e("s_branch SPC_KV_DONE")
    e.label("SPC_V")
    chain("V")
    e("s_nop 9")
    for r in range(8):
        e(f"v_cvt_pk_bf16_f32 v{A+r}, v{A+2*r}, v{A+2*r+1}")
    e("s_lshl_b32 s60, s98, 11")
    e(f"s_add_u32 s60, s60, {WS_KV + 1024}")
    e("s_mov_b32 exec_lo, 0xffff")
    e("s_mov_b32 exec_hi, 0xffff")
    e(f"buffer_store_dwordx4 {vr(A,4)}, v2, s[48:51], s60 offen sc1")
    e(f"buffer_store_dwordx4 {vr(A+4,4)}, v2, s[48:51], s60 offen offset:256 sc1")
    e("s_mov_b64 exec, -1")
    e.label("SPC_KV_DONE")
    e("s_waitcnt vmcnt(0)")
    e("s_barrier")
    e("s_barrier")
    e("s_barrier")
    e("s_barrier")
    e("s_branch SPC_JOIN")
    e.label("SPC_G")
    e("s_barrier")
    chain("G")
    e("s_barrier")
    e("s_nop 9")
    e(f"v_mul_f32 v18, {fbits(-LOG2E)}, v{A}")
    e("v_exp_f32 v18, v18")
    e("s_lshl_b32 s60, s98, 7")
    e("v_add_f32 v18, 1.0, v18")
    e("v_rcp_f32 v20, v18")
    e(f"s_add_u32 s60, s60, {WS_G}")
    e("s_mov_b32 exec_hi, 0")
    e("buffer_store_dword v20, v3, s[48:51], s60 offen sc1")
    e("s_mov_b64 exec, -1")
    xaddr(SP_XB)
    e("s_xor_b32 s98, s98, 2")
    e("s_waitcnt vmcnt(0)")
    e("s_barrier")
    chain("Q")
    e("s_branch SPC_QW")
    e.label("SPC_Q")
    e.bar()
    chain("Q")
    e.bar()
    e.bar()
    e.label("SPC_QW")
    e.bar()
    e("s_and_b32 s60, s98, 3")
    e("s_nop 2")
    e("s_lshl_b32 s60, s60, 12")
    e(f"s_add_u32 s60, s60, {WD_BASE}")
    e("v_add_u32 v14, s60, v2")
    e("v_xor_b32 v15, 0x4000, v14")
    e("s_nop 3")
    for r in range(8):
        e(f"v_cvt_pk_bf16_f32 v{A+r}, v{A+2*r}, v{A+2*r+1}")
    e(f"ds_write_b128 v14, {vr(A,4)}")
    e(f"ds_write_b128 v15, {vr(A+4,4)}")
    e("s_waitcnt lgkmcnt(0)")
    e.label("SPC_JOIN")
    cs(e, 4); cs(e, 5)
    e(f"s_mov_b32 s60, {WS_KN}")
    e("buffer_load_dword v9, v3, s[48:51], s60 offen sc1")
    e("s_branch QJOIN")
    return e.nbar


def compute(e):
    e.label("COMPUTE")
    e("s_lshr_b32 s60, s30, 2")
    e("s_lshl_b32 s96, s31, 2")
    e("s_and_b32 s61, s30, 3")
    e("s_add_u32 s96, s96, s61")
    e("s_lshl_b32 s96, s96, 4")
    e("s_add_u32 s96, s96, s56")
    e("s_lshl_b32 s96, s96, 1")
    e("s_add_u32 s96, s96, s60")
    e("s_lshl_b32 s96, s96, 10")
    e("s_lshr_b32 s61, s30, 1")
    e("s_xor_b32 s61, s61, s60")
    e("s_and_b32 s93, s61, 1")
    e("s_mov_b32 s40, 0xffff")
    e("s_mov_b32 s41, 0xffff")
    tr_addr128(e, 161, 162, 16, 17)
    e("s_bfe_u32 s60, s30, 0x10001")
    e("s_lshl_b32 s60, s60, 14")
    e("s_lshr_b32 s61, s30, 2")
    e("s_lshl_b32 s61, s61, 16")
    e(f"s_add_u32 s60, s60, {WD_BASE}")
    e("s_sub_u32 s60, s60, s61")
    e("v_add_u32 v161, s60, v161")
    e("v_add_u32 v162, s60, v162")
    e("s_lshl_b32 s62, s30, 12")
    e(f"s_add_u32 s62, s62, {WD_BASE}")
    e("v_add_u32 v160, s62, v2")
    e("s_cmp_ge_u32 s56, 14")
    e("s_cbranch_scc1 SP_COMPUTE")
    e.vm = []
    e.nbar = 0
    if "nopf" not in OPT:
        e("s_getpc_b64 s[44:45]")
        e.label("PC_REF")
        e(f"s_sub_u32 s44, s44, PC_REF-{NAME}_kernel")
        e("s_subb_u32 s45, s45, 0")
        e("s_and_b32 s60, s94, 3")
        e("s_lshl_b32 s60, s60, 3")
        e("s_add_u32 s60, s60, s30")
        e("s_lshl_b32 s60, s60, 10")
        e(f"s_min_u32 s60, s60, CODE_END-{NAME}_kernel-1024")
        e("v_add_u32 v24, s60, v2")
        e("global_load_dwordx4 v[24:27], v24, s[44:45]")
    XA = 128
    e("v_and_b32 v14, 31, v1")
    e("v_lshrrev_b32 v15, 5, v1")
    e("v_bfe_u32 v16, v1, 1, 3")
    e("v_xor_b32 v16, v16, v15")
    e("s_lshr_b32 s60, s30, 2")
    e("s_lshl_b32 s60, s60, 13")
    e("s_and_b32 s61, s30, 1")
    e("s_lshl_b32 s61, s61, 12")
    e("s_add_u32 s60, s60, s61")
    e("v_lshlrev_b32 v17, 7, v14")
    e("v_add_u32 v17, s60, v17")
    for s in range(4):
        e(f"v_xor_b32 v18, {2*s}, v16")
        e(f"v_lshl_add_u32 v{XA+s}, v18, 4, v17")
        e(f"v_xor_b32 v{XA+4+s}, 0x1000, v{XA+s}")
        e(f"v_add_u32 v{XA+8+s}, {X_BASE[2]}, v{XA+s}")
        e(f"v_add_u32 v{XA+12+s}, {X_BASE[2]}, v{XA+4+s}")
    e("v_bfe_u32 v16, v1, 2, 2")
    e("v_lshl_add_u32 v17, v15, 3, v16")
    e("v_bfe_u32 v18, v1, 4, 1")
    e("v_and_b32 v19, 3, v1")
    e("v_lshlrev_b32 v4, 6, v17")
    e("v_lshl_add_u32 v4, v18, 5, v4")
    e("v_lshl_add_u32 v4, v19, 3, v4")
    e("v_bfe_u32 v19, v1, 1, 1")
    e("v_lshl_add_u32 v18, v18, 1, v19")
    e("s_and_b32 s60, s30, 3")
    e("s_lshl_b32 s60, s60, 2")
    e("v_add_u32 v18, s60, v18")
    e("v_lshlrev_b32 v19, 2, v16")
    e("v_xor_b32 v18, v18, v19")
    e("v_lshlrev_b32 v18, 4, v18")
    e("v_lshl_add_u32 v14, v17, 8, v18")
    e("v_and_b32 v19, 1, v1")
    e("v_lshl_add_u32 v14, v19, 3, v14")
    e(f"v_add_u32 v14, {W_BASE}, v14")
    e("v_add_u32 v15, 0x10000, v14")
    e("v_mov_b32 v8, 0xdddd")
    e("s_waitcnt lgkmcnt(0)")
    srd(e, 48, 28, WS_SIZE)
    srd(e, 52, 24, 2048 * 1024)
    e("s_waitcnt vmcnt(0)")
    stamp(e, 2)

    ACC = 64
    QACC = 144
    FR = [24, 44]

    def reads(kc, s, fb, q):
        st = stage(kc)
        f = FR[fb]
        L = []
        for t in range(2):
            if st < 2:
                L.append(f"ds_read_b128 {vr(f + 8 + 4*t, 4)}, v{XA+4*t+s} offset:{X_BASE[st]}")
            else:
                L.append(f"ds_read_b128 {vr(f + 8 + 4*t, 4)}, v{XA+8+4*t+s}")
        for m in range(2):
            for rho in range(2):
                off = st * 32768 + m * 16384 + (16 * s + 4 * rho) * 256
                a = 14
                if off >= 65536:
                    off -= 65536
                    a = 15
                L.append(f"ds_read_b64_tr_b16 {vr(f + 4*m + 2*rho, 2)}, v{a} offset:{off}")
        if q:
            for rho in range(2):
                L.append(f"ds_read_b64_tr_b16 {vr(f + 16 + 2*rho, 2)}, v4 offset:{QS_BASE + st * 4096 + (16 * s + 4 * rho) * 64}")
        return L

    def mfmas(fb, first, q):
        f = FR[fb]
        L = []
        if q:
            c = "0" if first else vr(QACC, 16)
            L.append(f"v_mfma_f32_32x32x16_bf16 {vr(QACC,16)}, {vr(f+16,4)}, {vr(f+8,4)}, {c}")
        for m in range(2):
            for t in range(2):
                d = ACC + 32 * m + 16 * t
                c = "0" if first else vr(d, 16)
                L.append(f"v_mfma_f32_32x32x16_bf16 {vr(d,16)}, {vr(f+4*m,4)}, {vr(f+8+4*t,4)}, {c}")
        return L

    def gemm(q):
        e.bar()
        stamp(e, 3)
        for l in reads(0, 0, 0, q):
            e(l)
        for kc in range(8):
            for s in range(4):
                fb = s & 1
                e("s_waitcnt lgkmcnt(0)")
                if s < 3:
                    rl = reads(kc, s + 1, fb ^ 1, q)
                elif kc < 7:
                    e.bar()
                    fs(e, 4 + kc)
                    rl = reads(kc + 1, 0, fb ^ 1, q)
                else:
                    rl = []
                    e.bar()
                ml = mfmas(fb, kc == 0 and s == 0, q)
                for i, m in enumerate(ml):
                    e(m)
                    for l in rl[2*i:2*i+2]:
                        e(l)
            if kc == 3:
                cs(e, 4)
        cs(e, 5)

    e("s_cmp_eq_u32 s93, 0")
    e("s_cbranch_scc1 GEMM_Q")
    gemm(False)
    e("s_branch GEMM_DONE")
    e.label("GEMM_Q")
    e.nbar = 0
    gemm(True)
    e("v_and_b32 v14, 0xffffbfff, v160")
    e("v_or_b32 v15, 0x4000, v160")
    e("s_nop 5")
    for r in range(8):
        e(f"v_cvt_pk_bf16_f32 v{QACC+r}, v{QACC+2*r}, v{QACC+2*r+1}")
    e(f"ds_write_b128 v14, {vr(QACC,4)}")
    e(f"ds_write_b128 v15, {vr(QACC+4,4)}")
    e("s_waitcnt lgkmcnt(0)")
    e.label("GEMM_DONE")
    e(f"s_mov_b32 s60, {WS_KN}")
    e("buffer_load_dword v9, v3, s[48:51], s60 offen sc1")
    nb_ffn = e.nbar
    e.label("QJOIN")
    e.nbar = 0
    Q = 16; IDX = 8; C = 24; O = 40; S = [56, 72]; KF = [88, 92]; VF = [144, 152]
    e.bar()
    e(f"ds_read_b128 {vr(Q,4)}, v160")
    for r in range(16):
        e(f"v_mov_b32 v{144+r}, 0x3f803f80")
    for r in range(16):
        e(f"v_mov_b32 v{O+r}, 0")
    e("v_mov_b32 v13, v2")
    e("v_mov_b32 v11, 0")
    e("s_waitcnt lgkmcnt(0)")
    for i in range(4):
        e(f"v_dot2c_f32_bf16 v11, v{Q+i}, v{Q+i}")
    HP = 128
    e("s_cmp_ge_u32 s56, 14")
    e("s_cbranch_scc1 EPI_DONE")
    e("s_and_b32 s61, s30, 1")
    e("s_lshl_b32 s61, s61, 11")
    e("v_add_u32 v7, s61, v160")
    e("v_xor_b32 v5, 0x800, v7")
    e(f"s_mov_b32 s64, {fbits(-LOG2E)}")
    e(f"s_mov_b32 s65, {fbits(-LOG2E)}")
    e("s_mov_b32 s66, 1.0")
    e("s_mov_b32 s67, 1.0")
    for t in range(2):
        G = ACC + 16 * t
        U = ACC + 32 + 16 * t
        for r in range(0, 16, 2):
            e(f"v_pk_mul_f32 {vr(G+r,2)}, {vr(G+r,2)}, s[64:65]")
        for r in range(16):
            e(f"v_exp_f32 v{G+r}, v{G+r}")
        for r in range(0, 16, 2):
            e(f"v_pk_add_f32 {vr(G+r,2)}, {vr(G+r,2)}, s[66:67]")
        for r in range(16):
            e(f"v_rcp_f32 v{G+r}, v{G+r}")
        for r in range(0, 16, 2):
            e(f"v_pk_mul_f32 {vr(G+r,2)}, {vr(G+r,2)}, {vr(U+r,2)}")
        for r in range(8):
            e(f"v_cvt_pk_bf16_f32 v{HP+8*t+r}, v{G+2*r}, v{G+2*r+1}")
        a = (7, 5)[t]
        e(f"ds_write_b128 v{a}, {vr(HP+8*t,4)}")
        e(f"ds_write_b128 v{a}, {vr(HP+8*t+4,4)} offset:1024")
    e.label("EPI_DONE")
    cs(e, 6)
    for r in range(8):
        e(f"v_mov_b32 v{S[1]+8+r}, 0")
    e.wait_all()
    allreduce(e, "v_max_f32", 9, 12, 0, 6)
    allreduce(e, "v_add_f32", 11, 12, 5, 6)
    e(f"v_mul_f32 v9, {fbits(1.04)}, v9")
    e("v_mul_f32 v11, v11, v9")
    e("v_sqrt_f32 v11, v11")
    e(f"s_mov_b32 s60, {fbits(SAFE_BOUND)}")
    e("v_cmp_nle_f32 vcc, v11, s60")
    e("s_waitcnt lgkmcnt(0)")
    cs(e, 7)
    e.bar()
    e("s_nop 4")
    e("s_cbranch_vccz ATT_GO")
    e("v_mov_b32 v11, 0xff800000")
    e("v_mov_b32 v12, v2")
    e("s_mov_b32 s60, 64")
    e.label("MAXLOOP")
    e(f"ds_read_b128 {vr(KF[0],4)}, v12")
    e("v_add_u32 v12, 0x800, v12")
    e("s_waitcnt lgkmcnt(0)")
    e(f"v_mfma_f32_32x32x16_bf16 {vr(S[0],16)}, {vr(KF[0],4)}, {vr(Q,4)}, 0")
    e("s_nop 15")
    for r in range(8):
        e(f"v_max3_f32 v11, v11, v{S[0]+2*r}, v{S[0]+2*r+1}")
    e("s_sub_u32 s60, s60, 1")
    e("s_cmp_lg_u32 s60, 0")
    e("s_cbranch_scc1 MAXLOOP")
    allreduce(e, "v_max_f32", 11, 12, 5, 6)
    e.label("ATT_GO")

    def laddr(t):
        return ("v13", t * 2048)
    def rdK(t, b):
        a, o = laddr(t)
        e(f"ds_read_b128 {vr(KF[b],4)}, {a} offset:{o}")
    def rdV(t, b):
        a, o = laddr(t)
        e("s_mov_b64 exec, s[40:41]")
        e(f"ds_read_b128 {vr(VF[b],4)}, {a} offset:{o+1024}")
        e(f"ds_read_b128 {vr(VF[b]+4,4)}, {a} offset:{o+1280}")
        e("s_mov_b64 exec, -1")
    def qk(b):
        e(f"v_mfma_f32_32x32x16_bf16 {vr(S[b],16)}, {vr(KF[b],4)}, {vr(Q,4)}, {vr(C,16)}")
    def sp(b, half):
        e(f"v_smfmac_f32_32x32x32_bf16 {vr(O,16)}, {vr(VF[b]+4*half,4)}, {vr(S[b]+8*half,8)}, v{IDX}")
    def ex(b, lo, hi):
        for r in range(lo, hi):
            e(f"v_exp_f32 v{S[b]+r}, v{S[b]+r}")

    rdK(0, 0)
    rdV(0, 0)
    rdK(1, 1)
    for r in range(16):
        e(f"v_sub_f32 v{C+r}, 0, v11")
    cs(e, 8)
    e("s_waitcnt lgkmcnt(3)")
    qk(0)
    e("s_nop 15")
    UN = int(os.environ.get("UN", "8"))
    e(f"s_mov_b32 s60, {64 // UN}")
    e.raw(".p2align 6")
    e.label("ATT_LOOP")
    for t in range(UN):
        b = t & 1
        ex(b, 0, 2)
        sp(b ^ 1, 1)
        ex(b, 2, 6)
        e("s_waitcnt lgkmcnt(0)")
        qk(b ^ 1)
        ex(b, 6, 8)
        rdK(t + 2, b)
        ex(b, 8, 9)
        rdV(t + 1, b ^ 1)
        ex(b, 9, 11)
        sp(b, 0)
        if t == UN - 1:
            e(f"v_add_u32 v13, {UN * 2048}, v13")
            e("s_sub_u32 s60, s60, 1")
            e("s_cmp_lg_u32 s60, 0")
        ex(b, 11, 16)
    e("s_cbranch_scc1 ATT_LOOP")
    e("s_waitcnt lgkmcnt(0)")
    e("s_nop 1")
    sp(1, 1)
    WOB = 56
    OB = 120
    AC2 = 24
    e("s_lshl_b32 s34, s76, 1")
    e("s_and_b32 s61, s30, 1")
    e("s_add_u32 s34, s34, s61")
    e("s_lshl_b32 s34, s34, 5")
    e("s_and_b32 s60, s30, 2")
    e("s_lshl_b32 s60, s60, 3")
    e("s_add_u32 s34, s34, s60")
    e("s_lshr_b32 s60, s30, 2")
    e("s_add_u32 s34, s34, s60")
    e("s_lshl_b32 s34, s34, 10")
    e(f"s_add_u32 s34, s34, {WS_OF}")
    e("s_add_u32 s35, s34, 4096")
    e("s_add_u32 s36, s34, 8192")
    e("s_add_u32 s37, s34, 12288")
    cs(e, 9)
    e(f"v_rcp_f32 v11, v{O+8}")
    e(f"s_add_u32 s62, s96, {WS_OF}")
    for r in range(8):
        e(f"v_mul_f32 v{O+r}, v{O+r}, v11")
    for r in range(4):
        e(f"v_cvt_pk_bf16_f32 v{164+r}, v{O+2*r}, v{O+2*r+1}")
    e("buffer_store_dwordx4 v[164:167], v2, s[48:51], s62 offen sc1")

    def oload(k0):
        for k in range(k0, 8):
            e(f"buffer_load_dwordx4 {vr(OB+4*k,4)}, v2, s[48:51], s{34+(k>>1)} offen offset:{(k&1)*2048} sc1")
    def wread():
        for k in range(8):
            for m in range(2):
                for rho in range(2):
                    e(f"ds_read_b64_tr_b16 {vr(WOB+8*k+4*m+2*rho,2)}, v{161+m} offset:{k*2048 + rho*1024}")
    def ocheck():
        e(f"v_max_u32 v11, v{OB}, v{OB+1}")
        for r in range(1, 16):
            e(f"v_max3_u32 v11, v11, v{OB+2*r}, v{OB+2*r+1}")
        e("v_cmp_eq_u32 vcc, -1, v11")
    def addrs():
        e("v_and_b32 v10, 31, v1")
        e("v_lshlrev_b32 v12, 2, v10")
        e("s_lshl_b32 s60, s76, 8")
        e("s_bfe_u32 s61, s30, 0x10001")
        e("s_lshl_b32 s61, s61, 7")
        e("s_add_u32 s60, s60, s61")
        e(f"s_add_u32 s60, s60, {WS_G}")
        e("buffer_load_dword v9, v12, s[48:51], s60 offen sc1")
        e("v_lshrrev_b32 v11, 5, v1")
        e("v_lshlrev_b32 v6, 4, v10")
        e("v_lshl_add_u32 v6, v11, 10, v6")
        e("s_lshl_b32 s60, s30, 11")
        e("v_add_u32 v6, s60, v6")
        e("v_add_u32 v5, 0x18000, v6")
        e("v_lshlrev_b32 v10, 10, v10")
        e("v_lshl_add_u32 v10, v11, 4, v10")
        e("s_lshr_b32 s60, s30, 1")
        e("s_lshl_b32 s60, s60, 14")
        e("s_and_b32 s61, s30, 1")
        e("s_lshl_b32 s61, s61, 12")
        e("s_add_u32 s60, s60, s61")
        e("s_add_u32 s60, s60, 0x18000")
        e("v_add_u32 v7, s60, v2")
        e("s_lshl_b32 s63, s76, 16")
        e("s_bfe_u32 s61, s30, 0x10001")
        e("s_lshl_b32 s61, s61, 15")
        e("s_add_u32 s63, s63, s61")
        e("s_lshl_b32 s61, s77, 7")
        e("s_add_u32 s63, s63, s61")
        e("s_lshr_b32 s61, s30, 2")
        e("s_lshl_b32 s61, s61, 6")
        e("s_add_u32 s63, s63, s61")
        e("s_and_b32 s61, s30, 1")
        e("s_lshl_b32 s61, s61, 5")
        e("s_add_u32 s63, s63, s61")
    e("s_cmp_ge_u32 s30, 4")
    e("s_cbranch_scc1 TAIL_ODD")
    addrs()
    e("s_waitcnt vmcnt(0)")
    spin(e, lambda: oload(0), ocheck, 16)
    e("s_barrier")
    wread()
    e("s_waitcnt lgkmcnt(0)")
    e("s_barrier")
    e("s_branch TAIL_JOIN")
    e.label("TAIL_ODD")
    e.bar()
    addrs()
    if "oearly" in OPT:
        oload(0)
    e.bar()
    if "oearly" not in OPT:
        oload(0)
    wread()
    e("s_waitcnt lgkmcnt(0)")
    e.label("TAIL_JOIN")
    f2(e, 4)
    for k in range(8):
        e.label(f"OCHK{k}")
        e(f"s_waitcnt vmcnt({7-k})")
        e(f"v_max_u32 v11, v{OB+4*k}, v{OB+4*k+1}")
        e(f"v_max3_u32 v11, v11, v{OB+4*k+2}, v{OB+4*k+3}")
        e("v_cmp_eq_u32 vcc, -1, v11")
        e("s_nop 4")
        e(f"s_cbranch_vccnz ORETRY{k}")
        e.label(f"OGO{k}")
        if k == 7:
            cs(e, 10)
        for m in range(2):
            d = AC2 + 16 * m
            c = "0" if k == 0 else vr(d, 16)
            e(f"v_mfma_f32_32x32x16_bf16 {vr(d,16)}, {vr(WOB+8*k+4*m,4)}, {vr(OB+4*k,4)}, {c}")
    e("v_sub_f32 v8, 1.0, v9")
    e("s_nop 9")
    for m in range(2):
        for jq in range(4):
            e(f"ds_write_b128 v7, {vr(AC2+16*m+4*jq,4)} offset:{m*8192 + jq*1024}")
    e("s_waitcnt lgkmcnt(0)")
    f2(e, 5)
    e.bar()
    f2(e, 6); f2(e, 7)
    R = 56
    for p in range(8):
        a = 6 if p < 4 else 5
        for hh in range(2):
            e(f"ds_read_b128 {vr(R+8*p+4*hh,4)}, v{a} offset:{(p&3)*16384 + hh*512}")
    for p in (1, 2, 3, 5, 6, 7):
        e(f"s_waitcnt lgkmcnt({2*(7-p)})")
        base = R if p < 4 else R + 32
        for r in range(0, 8, 2):
            e(f"v_pk_add_f32 {vr(base+r,2)}, {vr(base+r,2)}, {vr(R+8*p+r,2)}")
        if p == 3:
            for r in range(8):
                e(f"v_mul_f32 v{R+r}, v{R+r}, v8")
    for r in range(8):
        e(f"v_fmac_f32 v{R+r}, v{R+32+r}, v9")
    for r in range(4):
        e(f"v_cvt_pk_bf16_f32 v{R+8+r}, v{R+2*r}, v{R+2*r+1}")
    e(f"buffer_store_dwordx4 {vr(R+8,4)}, v10, s[52:55], s63 offen")
    stamp(e, 11)
    if STAMP:
        e("s_waitcnt vmcnt(0)")
    stamp(e, 12); stamp(e, 13, True)
    stamp_flush(e, 14)
    e.label("K_END")
    e("s_endpgm")
    for k in range(8):
        e.label(f"ORETRY{k}")
        spin_guard(e, f"OGO{k}")
        e("s_waitcnt vmcnt(0)")
        e(f"s_sleep {int(os.environ.get('OSL', '1'))}")
        oload(k)
        e(f"s_branch OCHK{k}")
    return nb_ffn, e.nbar


def kd(name, vgpr, sgpr=102):
    acc = (vgpr + 3) // 4 * 4
    return f""".p2align 6
.amdhsa_kernel {name}
  .amdhsa_next_free_vgpr {vgpr}
  .amdhsa_next_free_sgpr {sgpr}
  .amdhsa_accum_offset {acc}
  .amdhsa_group_segment_fixed_size 0
  .amdhsa_kernarg_size 104
  .amdhsa_user_sgpr_count 2
  .amdhsa_user_sgpr_kernarg_segment_ptr 1
  .amdhsa_system_sgpr_workgroup_id_x 1
.end_amdhsa_kernel
"""


def main(out):
    ref = open(f"cdna_kernels/{NAME}.s.ref").read().split("\n")
    hdr = [l for l in ref if l.startswith(";") and "@launch" not in l and "Override" not in l and "grid=ceil" not in l]
    e = Asm()
    prologue(e)
    sp_start(e)
    n1 = loader(e)
    n2 = service(e)
    n3 = down(e)
    nf, nc = compute(e)
    n5 = sp_helper(e)
    n6 = sp_compute(e)
    e.label("CODE_END")
    assert n1 == n2 and n1 + n3 == nf + nc and n5 + n3 == n6 + nc, (n1, n2, n3, nf, nc, n5, n6)
    s = "\n".join(hdr) + "\n"
    s += f"; @launch grid=(256,1,1) block=(768,1,1) lds={LDS_TOTAL}\n"
    s += '.amdgcn_target "amdgcn-amd-amdhsa--gfx950"\n.text\n'
    s += e.text()
    s += '.section .rodata,"a"\n'
    s += kd(NAME + "_kernel", 168)
    open(out, "w").write(s)


if __name__ == "__main__":
    main(sys.argv[1] if len(sys.argv) > 1 else f"cdna_kernels/{NAME}.s")
```

```python
import sys, os, struct

NAME = "gated_mix__grouped_kv_mqa__glu_gated_glu__prompt"

WS_OF = 2 << 20
WS_KV = 4 << 20
WS_KN = WS_KV + 131072
WS_G = WS_KN + 4096
WS_FL = WS_G + 8192
WS_HF = 8 << 20
WS_ST = 15 << 20
WS_SIZE = 16 << 20
OOB = 0x7f000000

LOG2E = 1.4426950408889634
STAMP = os.environ.get("STAMP", "0") == "1"
OPT = set(os.environ.get("OPT", "").split(","))
FINE = "fine" in OPT
FINE2 = "fine2" in OPT


def fbits(x):
    return "0x%08x" % struct.unpack("<I", struct.pack("<f", x))[0]


class Asm:
    def __init__(self):
        self.lines = []
        self.vm = []
        self.uid = 0
        self.nbar = 0
    def __call__(self, s):
        self.lines.append("    " + s)
    def label(self, s):
        self.lines.append(s + ":")
    def raw(self, s):
        self.lines.append(s)
    def vmem(self, s, tag):
        self(s)
        self.vm.append(tag)
    def wait_vm(self, tag):
        idxs = [i for i, t in enumerate(self.vm) if t == tag]
        if not idxs:
            return
        idx = max(idxs)
        n = len(self.vm) - 1 - idx
        assert n <= 63
        self(f"s_waitcnt vmcnt({n})")
        self.vm = self.vm[idx + 1:]
    def wait_all(self):
        self("s_waitcnt vmcnt(0)")
        self.vm = []
    def bar(self):
        self("s_barrier")
        self.nbar += 1
    def newlabel(self, p):
        self.uid += 1
        return f"{p}_{self.uid}"
    def text(self):
        return "\n".join(self.lines) + "\n"


def stamp(e, i, real=False):
    if not STAMP:
        return
    if "amp" in OPT:
        if i not in (1, int(os.environ["AMP"])):
            return
        real = True
    e(("s_memrealtime" if real else "s_memtime") + " s[78:79]")
    e("s_waitcnt lgkmcnt(0)")
    e(f"s_mov_b32 s{80+i}, s78")


def cs(e, i):
    if not FINE and not (FINE2 and i in (4, 5, 6, 7)):
        stamp(e, i)


def f2(e, i):
    if FINE2:
        stamp(e, i)


def fs(e, i):
    if FINE:
        stamp(e, i)


def stamp_flush(e, n):
    if not STAMP:
        return
    if "amp" in OPT:
        lab, lp = e.newlabel("AMPS"), e.newlabel("AMPL")
        i = int(os.environ["AMP"])
        e(f"s_cmp_lg_u32 s30, {int(os.environ.get('DBGW', '4'))}")
        e(f"s_cbranch_scc1 {lab}")
        e(("s_cmp_lt_u32" if "dbgsp" in OPT else "s_cmp_ge_u32") + " s56, 14")
        e(f"s_cbranch_scc1 {lab}")
        e(f"s_sub_u32 s60, s{80+i}, s81")
        e("s_mul_i32 s60, s60, 10")
        e("s_memrealtime s[62:63]")
        e("s_waitcnt lgkmcnt(0)")
        e.label(lp)
        e("s_memrealtime s[78:79]")
        e("s_waitcnt lgkmcnt(0)")
        e("s_sub_u32 s61, s78, s62")
        e("s_cmp_lt_u32 s61, s60")
        e(f"s_cbranch_scc1 {lp}")
        e.label(lab)
        return
    if "dbg" in OPT:
        lab = e.newlabel("DBGS")
        lo = int(os.environ.get("DBGW", "4"))
        e(f"s_sub_u32 s78, s30, {lo}")
        e("s_cmp_ge_u32 s78, 4")
        e(f"s_cbranch_scc1 {lab}")
        e(("s_cmp_lt_u32" if "dbgsp" in OPT else "s_cmp_ge_u32") + " s56, 14")
        e(f"s_cbranch_scc1 {lab}")
        srd(e, 72, 26, 256)
        e("v_mov_b32 v0, 0")
        e("s_mov_b64 exec, 1")
        for i in range(2, 13):
            e(f"s_sub_u32 s78, s{80+i}, s81")
            e("v_mov_b32 v1, s78")
            e(f"buffer_atomic_umax v1, v0, s[72:75], 0 offen offset:{4*i}")
        e("s_sub_u32 s78, s93, s80")
        e("v_mov_b32 v1, s78")
        e(f"buffer_atomic_umax v1, v0, s[72:75], 0 offen offset:52")
        e("s_mov_b64 exec, -1")
        e.label(lab)
        return
    e("s_lshl_b32 s78, s2, 4")
    e("s_add_u32 s78, s78, s30")
    e("s_lshl_b32 s78, s78, 6")
    e(f"s_add_u32 s78, s78, {WS_ST}")
    e("v_mov_b32 v0, 0")
    e("s_mov_b64 exec, 1")
    for i in range(n):
        e(f"v_mov_b32 v1, s{80+i}")
        e(f"buffer_store_dword v1, v0, s[48:51], s78 offen offset:{4*i}")
    e("s_mov_b64 exec, -1")


def vr(a, n=1):
    return f"v{a}" if n == 1 else f"v[{a}:{a+n-1}]"


def srd(e, d, base, size):
    e(f"s_mov_b32 s{d}, s{base}")
    e(f"s_mov_b32 s{d+1}, s{base+1}")
    e(f"s_mov_b32 s{d+2}, {size}")
    e(f"s_mov_b32 s{d+3}, 0x00020000")


def allreduce(e, op, x, t, lo=0, hi=6):
    dpp = ["quad_perm:[1,0,3,2]", "quad_perm:[2,3,0,1]", "row_half_mirror", "row_mirror"]
    for b in range(lo, min(hi, 4)):
        e("s_nop 1")
        e(f"{op}_dpp v{x}, v{x}, v{x} {dpp[b]} row_mask:0xf bank_mask:0xf")
    for b, ins in ((4, "v_permlane16_swap_b32"), (5, "v_permlane32_swap_b32")):
        if lo <= b < hi:
            e(f"v_mov_b32 v{t}, v{x}")
            e("s_nop 1")
            e(f"{ins} v{x}, v{t}")
            e("s_nop 1")
            e(f"{op} v{x}, v{x}, v{t}")


X_ST = 16384
W_BASE = 3 * X_ST
QS_BASE = 32768
X_BASE = [0, 16384, 147456]
LDS_TOTAL = 163840
def stage(kc):
    return (kc + 1) % 3
SAFE_BOUND = 48.0
WD_BASE = 131072
NBW = 4


def spin_guard(e, done):
    e("s_cmp_eq_u32 s100, 0")
    e(f"s_cbranch_scc1 {done}")
    e("s_sub_u32 s100, s100, 1")


def spin(e, load, check, sleep, preloaded=False):
    lo, chk, done = e.newlabel("SPIN"), e.newlabel("SPINC"), e.newlabel("SPIND")
    if preloaded:
        e(f"s_branch {chk}")
    e.label(lo)
    load()
    e.label(chk)
    e.wait_all()
    check()
    e("s_nop 4")
    e(f"s_cbranch_vccz {done}")
    spin_guard(e, done)
    e(f"s_sleep {sleep}")
    e(f"s_branch {lo}")
    e.label(done)


def tr_addr128(e, d0, d1, t0, t1):
    e(f"v_bfe_u32 v{t0}, v1, 2, 2")
    e(f"v_lshrrev_b32 v{t1}, 5, v1")
    e(f"v_lshl_add_u32 v{d0}, v{t1}, 2, v{t0}")
    e(f"v_lshlrev_b32 v{d0}, 7, v{d0}")
    e(f"v_bfe_u32 v{t1}, v1, 4, 1")
    e(f"v_lshl_add_u32 v{d0}, v{t1}, 5, v{d0}")
    e(f"v_and_b32 v{t1}, 3, v1")
    e(f"v_lshl_add_u32 v{d0}, v{t1}, 3, v{d0}")
    e(f"v_bfe_u32 v{t1}, v1, 3, 1")
    e(f"v_lshlrev_b32 v{t1}, 6, v{t1}")
    e(f"v_add_u32 v{d0}, v{d0}, v{t1}")
    e(f"v_xor_b32 v{d1}, 64, v{d0}")


def dma_voff128(e, d, t0, t1):
    e(f"v_lshrrev_b32 v{t0}, 3, v1")
    e(f"v_bfe_u32 v{t1}, v1, 4, 1")
    e(f"v_lshlrev_b32 v{t1}, 2, v{t1}")
    e(f"v_and_b32 v{d}, 7, v1")
    e(f"v_xor_b32 v{d}, v{d}, v{t1}")
    e(f"v_lshlrev_b32 v{d}, 4, v{d}")
    e(f"v_lshl_add_u32 v{d}, v{t0}, 10, v{d}")


def prologue(e):
    n = NAME + "_kernel"
    e.raw(f".globl {n}\n.p2align 8\n.type {n},@function\n{n}:")
    e("s_cmp_ge_u32 s2, 256")
    e("s_cbranch_scc1 K_END")
    stamp(e, 0, True); stamp(e, 1)
    e("s_load_dwordx16 s[4:19], s[0:1], 0")
    e("s_load_dwordx8 s[20:27], s[0:1], 64")
    e("s_load_dwordx2 s[28:29], s[0:1], 96")
    e("s_mov_b32 s100, %d" % (0 if "nospin" in OPT else 0x20000))
    e("v_lshrrev_b32 v2, 6, v0")
    e("v_and_b32 v1, 63, v0")
    e("v_readfirstlane_b32 s30, v2")
    e("v_lshlrev_b32 v2, 4, v1")
    e("v_lshlrev_b32 v3, 2, v1")
    e("v_lshrrev_b32 v6, 4, v1")
    e("s_and_b32 s57, s2, 7")
    e("s_lshr_b32 s59, s2, 3")
    e("s_and_b32 s94, s59, 7")
    e("s_lshr_b32 s95, s59, 3")
    e("s_and_b32 s31, s57, 1")
    e("s_lshl_b32 s31, s31, 3")
    e("s_add_u32 s31, s31, s94")
    e("s_lshr_b32 s56, s57, 1")
    e("s_xor_b32 s60, s95, 3")
    e("s_lshl_b32 s60, s60, 2")
    e("s_add_u32 s56, s56, s60")
    e("s_and_b32 s76, s57, 3")
    e("s_lshl_b32 s76, s76, 3")
    e("s_add_u32 s76, s76, s94")
    e("s_lshr_b32 s77, s57, 2")
    e("s_lshl_b32 s77, s77, 2")
    e("s_add_u32 s77, s77, s95")
    e("s_sub_u32 s3, s30, 8")
    rot = os.environ.get("ROT", "8")
    e("s_lshl_b32 s58, s95, 1")
    e("s_add_u32 s58, s58, s94")
    if rot == "4":
        e("s_and_b32 s58, s58, 6")
    elif rot == "2":
        e("s_add_u32 s58, s94, s95")
        e("s_and_b32 s58, s58, 1")
        e("s_lshl_b32 s58, s58, 2")
    elif rot == "1":
        e("s_mov_b32 s58, 0")
    e("s_cmp_ge_u32 s56, 14")
    e("s_cbranch_scc1 SP_START")
    e("s_cmp_lt_u32 s30, 8")
    e("s_cbranch_scc1 COMPUTE")
    e("s_cmp_eq_u32 s3, 3")
    e("s_cbranch_scc1 SERVICE")
    e("s_branch LOADER")


def x_dma_voff(e):
    e("v_and_b32 v8, 7, v1")
    e("v_xor_b32 v7, v6, v8")
    e("v_lshrrev_b32 v8, 3, v1")
    e("v_lshlrev_b32 v8, 10, v8")
    e("v_lshl_add_u32 v4, v7, 4, v8")
    e("v_xor_b32 v5, 64, v4")


def kv_piece(e, tab):
    e(f"s_mov_b32 s59, {sum(t << (8 * i) for i, t in enumerate(tab)):#x}")
    e("s_lshl_b32 s62, s3, 3")
    e("s_lshr_b32 s59, s59, s62")
    e("s_and_b32 s59, s59, 15")
    e("s_add_u32 s62, s59, s94")
    e("s_and_b32 s62, s62, 7")
    e("s_lshl_b32 s62, s62, 14")
    e(f"s_add_u32 s62, s62, {WS_KV}")
    e("s_lshl_b32 s59, s59, 14")
    for n in range(16):
        if n % 4 == 0:
            e(f"s_add_u32 m0, s59, {n * 1024}")
            e(f"s_add_u32 s64, s62, {n * 1024}")
        e.vmem(f"buffer_load_dwordx4 v2, s[48:51], s64 offen offset:{(n & 3) * 1024} sc1 lds", "kvl")


def cnt_spin(e, off):
    e("v_mov_b32 v17, 0")
    spin(e, lambda: e(f"buffer_load_dword v20, v17, s[72:75], 0 offen offset:{off} sc1"),
         lambda: e("v_cmp_gt_u32 vcc, 32, v20"), 32)


def cnt_arrive(e, off):
    e("v_mov_b32 v21, 1")
    e("v_mov_b32 v17, 0")
    e("s_mov_b64 exec, 1")
    e(f"buffer_atomic_add v21, v17, s[72:75], 0 offen offset:{off} sc1")
    e("s_mov_b64 exec, -1")


def loader(e):
    e.label("LOADER")
    e.vm = []
    e.nbar = 0
    e("s_lshl_b32 s63, s56, 8")
    e("v_mul_u32_u24 v8, 3584, v6")
    e("v_lshlrev_b32 v7, 2, v6")
    e("v_and_b32 v10, 15, v1")
    e("v_xor_b32 v7, v7, v10")
    e("v_lshl_add_u32 v4, v7, 4, v8")
    e("v_mov_b32 v5, v4")
    e(f"s_mov_b32 s65, {4 * 3584}")
    e(f"s_mov_b32 s66, {64 * 3584}")
    e("s_lshl_b32 s67, s3, 14")
    e(f"s_add_u32 s67, s67, {W_BASE - 16384}")
    e("s_add_u32 s69, s67, 32768")
    e("s_add_u32 s70, s69, 32768")
    e("s_mov_b32 s34, %d" % (512 * 3584))
    e("s_cmp_lg_u32 s3, 0")
    e("s_cbranch_scc1 LD_W")
    x_dma_voff(e)
    e("s_lshl_b32 s63, s31, 17")
    e("s_mov_b32 s65, 8192")
    e("s_mov_b32 s66, 128")
    e("s_mov_b32 s67, 0")
    e(f"s_mov_b32 s69, {X_BASE[1]}")
    e(f"s_mov_b32 s70, {X_BASE[2]}")
    e("s_mov_b32 s34, %d" % (2048 * 1024))
    e.label("LD_W")
    e("s_mov_b32 s35, 0x00020000")
    e("s_waitcnt lgkmcnt(0)")
    stamp(e, 2)
    e("s_cmp_eq_u32 s3, 1")
    e("s_cselect_b32 s32, s16, s18")
    e("s_cselect_b32 s33, s17, s19")
    e("s_cmp_eq_u32 s3, 0")
    e("s_cselect_b32 s32, s4, s32")
    e("s_cselect_b32 s33, s5, s33")

    def dma(kc, n0=0, n1=16):
        sb = (67, 69, 70)[stage(kc)]
        so = 60 + (kc & 1)
        if n0 == 0:
            e(f"s_add_u32 s59, s58, {kc}")
            e("s_and_b32 s59, s59, 7")
            e(f"s_mul_i32 s{so}, s66, s59")
            e(f"s_add_u32 s{so}, s{so}, s63")
        for n in range(n0, n1):
            e(f"s_add_u32 m0, s{sb}, {n * 1024}")
            if n > 0:
                e(f"s_add_u32 s{so}, s{so}, s65")
            else:
                e("s_nop 0")
            e.vmem(f"buffer_load_dwordx4 v{4 + (n & 1)}, s[32:35], s{so} offen lds", f"c{kc}")

    LA = int(os.environ.get("LA", "6"))
    dma(0)
    dma(1, 0, LA)
    srd(e, 48, 28, WS_SIZE)
    e.wait_vm("c0")
    e.bar()
    stamp(e, 3)
    for kc in range(7):
        dma(kc + 1, LA, 16)
        if kc + 2 < 8:
            dma(kc + 2, 0, LA)
        if kc == 6:
            kv_piece(e, (0, 3, 4))
        e.wait_vm(f"c{kc+1}")
        fs(e, 4 + kc)
        e.bar()
        if kc == 3:
            cs(e, 4)
    kv_piece(e, (1, 5, 6))
    e.bar()
    cs(e, 5)
    e.bar()
    e("s_cmp_eq_u32 s3, 2")
    e("s_cbranch_scc1 KVP_SKIP")
    kv_piece(e, (7, 2, 2))
    e.label("KVP_SKIP")
    e.wait_all()
    cs(e, 6)
    e.bar()
    cs(e, 7)
    e("s_branch DOWN")
    return e.nbar


def wq_voff(e):
    e("v_lshrrev_b32 v7, 2, v1")
    e("v_and_b32 v8, 3, v1")
    e("v_lshlrev_b32 v8, 4, v8")
    e("v_lshl_add_u32 v4, v7, 10, v8")


def service(e):
    e.label("SERVICE")
    e.vm = []
    e.nbar = 0
    wq_voff(e)
    e("s_lshl_b32 s63, s56, 6")
    e("s_waitcnt lgkmcnt(0)")
    stamp(e, 2)
    srd(e, 32, 6, 512 * 1024)

    def dma(kc):
        e(f"s_add_u32 s59, s58, {kc}")
        e("s_and_b32 s59, s59, 7")
        e("s_lshl_b32 s60, s59, 16")
        e("s_add_u32 s60, s60, s63")
        for n in range(4):
            e(f"s_mov_b32 m0, {QS_BASE + stage(kc) * 4096 + n * 1024}")
            e("s_add_u32 s60, s60, 16384" if n else "s_nop 0")
            e.vmem("buffer_load_dwordx4 v4, s[32:35], s60 offen lds", f"c{kc}")
    dma(0)
    dma(1)
    srd(e, 48, 28, WS_SIZE)
    srd(e, 72, 26, 0 if "noflag" in OPT else 256)
    e.wait_vm("c0")
    e.bar()
    stamp(e, 3)
    for kc in range(7):
        if kc + 2 < 8:
            dma(kc + 2)
        if kc == 5:
            cnt_spin(e, 0)
        e.wait_vm(f"c{kc+1}")
        fs(e, 4 + kc)
        e.bar()
        if kc == 3:
            cs(e, 4)
    e.bar()
    cs(e, 5)
    e.bar()
    cnt_spin(e, 128)
    cs(e, 6)
    e.bar()
    cs(e, 7)
    return e.nbar


def down(e):
    e.label("DOWN")
    e.vm = []
    e.nbar = 0
    srd(e, 44, 20, 1792 * 1024)
    e("s_mul_i32 s32, s76, 224")
    e("s_mul_i32 s60, s3, 28")
    e("s_add_u32 s32, s32, s60")
    e("s_lshl_b32 s32, s32, 10")
    e(f"s_add_u32 s32, s32, {WS_HF}")
    e(f"s_add_u32 s33, s32, {112*1024}")
    e("s_lshl_b32 s36, s60, 14")
    e("s_lshl_b32 s61, s77, 7")
    e("s_add_u32 s36, s36, s61")
    e(f"s_mul_i32 s37, s3, {NBW * 2048}")
    e(f"s_add_u32 s37, s37, {WD_BASE}")
    e("s_setprio 2")
    dma_voff128(e, 4, 7, 8)
    tr_addr128(e, 9, 10, 7, 8)
    e("v_add_u32 v9, s37, v9")
    e("v_add_u32 v10, s37, v10")
    e("s_lshl_b32 s62, s76, 9")
    e("s_lshl_b32 s60, s3, 7")
    e("s_add_u32 s62, s62, s60")
    e(f"s_add_u32 s62, s62, {WS_FL}")
    DAC = 24
    WB = 88
    HB = 104
    NBH = 8

    def wload(ks):
        for u in range(2):
            e(f"s_add_u32 m0, s37, {(ks % NBW) * 2048 + u * 1024}")
            e(f"s_add_u32 s60, s36, {ks * 16384 + u * 8192}")
            e.vmem("buffer_load_dwordx4 v4, s[44:47], s60 offen lds", f"w{ks}")
    def hload(ks):
        f = HB + 8 * (ks % NBH)
        for t in range(2):
            e(f"s_add_u32 s60, s{32+t}, {ks*1024}")
            e.vmem(f"buffer_load_dwordx4 {vr(f+4*t,4)}, v2, s[48:51], s60 offen sc1", f"h{ks}")
    def wread(ks):
        f = WB + 8 * (ks & 1)
        for m in range(2):
            for rho in range(2):
                e(f"ds_read_b64_tr_b16 {vr(f+4*m+2*rho,2)}, v{9+m} offset:{(ks % NBW) * 2048 + rho * 1024}")

    e("s_cmp_ge_u32 s56, 14")
    e("s_cbranch_scc1 H_SKIP")
    e("v_add_u32 v7, s37, v2")
    for n in range(8):
        e(f"ds_read_b128 {vr(HB+4*n,4)}, v7 offset:{n*1024}")
    e("s_lshl_b32 s64, s31, 2")
    e("s_and_b32 s60, s3, 2")
    e("s_add_u32 s64, s64, s60")
    e("s_mul_i32 s64, s64, 112")
    e("s_lshl_b32 s60, s56, 1")
    e("s_and_b32 s61, s3, 1")
    e("s_add_u32 s66, s60, s61")
    e("s_lshl_b32 s60, s66, 2")
    e("s_add_u32 s64, s64, s60")
    e("s_lshl_b32 s64, s64, 10")
    e(f"s_add_u32 s64, s64, {WS_HF}")
    e(f"s_add_u32 s65, s64, {112*1024}")
    e("s_mul_i32 s60, s66, 37")
    e("s_lshr_b32 s60, s60, 8")
    e("s_mul_i32 s61, s60, 25")
    e("s_add_u32 s66, s66, s61")
    e("s_lshl_b32 s66, s66, 2")
    e("s_lshl_b32 s60, s31, 10")
    e("s_add_u32 s66, s66, s60")
    e("s_and_b32 s60, s3, 2")
    e("s_lshl_b32 s60, s60, 8")
    e("s_add_u32 s66, s66, s60")
    e(f"s_add_u32 s66, s66, {WS_FL}")
    e("s_waitcnt lgkmcnt(0)")
    for n in range(8):
        u, t, k = n >> 2, (n >> 1) & 1, n & 1
        e(f"buffer_store_dwordx4 {vr(HB+4*n,4)}, v2, s[48:51], s{64+t} offen offset:{(2*u+k)*1024} sc1")
        HT = int(os.environ.get("HT", "63"))
        if HT < 63:
            e(f"s_waitcnt vmcnt({HT})")
    f2(e, 4)
    e("v_mov_b32 v12, 1")
    e("v_mov_b32 v11, 0")
    e("s_waitcnt vmcnt(0)")
    f2(e, 5)
    e("s_mov_b64 exec, 1")
    e("buffer_store_dword v12, v11, s[48:51], s66 offen sc1")
    e("s_mov_b64 exec, -1")
    e.label("H_SKIP")
    f2(e, 6); f2(e, 7)
    for ks in range(NBW):
        wload(ks)

    def fl_ld():
        e("s_mov_b64 exec, 0x7f")
        e("buffer_load_dword v20, v3, s[48:51], s62 offen sc1")
        e("s_mov_b64 exec, -1")
    def fl_ck():
        e("s_mov_b64 exec, 0x7f")
        e("v_cmp_ne_u32 vcc, 1, v20")
        e("s_mov_b64 exec, -1")
    if "slp" in OPT:
        e("s_sleep 100")
    spin(e, fl_ld, fl_ck, 16)
    e("s_setprio 0")
    cs(e, 8)
    HA = int(os.environ.get("HA", "4"))
    for ks in range(HA):
        hload(ks)
    wread(0)
    for ks in range(28):
        e("s_waitcnt lgkmcnt(0)")
        if ks + NBW < 28:
            wload(ks + NBW)
        if ks + HA < 28:
            hload(ks + HA)
        if ks + 1 < 28:
            e.wait_vm(f"w{ks+1}")
            wread(ks + 1)
        e.wait_vm(f"h{ks}")
        f = WB + 8 * (ks & 1)
        h = HB + 8 * (ks % NBH)
        for m in range(2):
            for t in range(2):
                d = DAC + 32 * m + 16 * t
                c = "0" if ks == 0 else vr(d, 16)
                e(f"v_mfma_f32_32x32x16_bf16 {vr(d,16)}, {vr(f+4*m,4)}, {vr(h+4*t,4)}, {c}")
    cs(e, 9)
    e("s_setprio 2")
    srd(e, 44, 12, 512 * 1024)
    e("s_lshl_b32 s36, s3, 17")
    e("s_lshl_b32 s61, s77, 7")
    e("s_add_u32 s36, s36, s61")
    for n in range(16):
        e(f"s_add_u32 s60, s36, {n * 8192}")
        e(f"buffer_load_dwordx4 {vr(HB + 4 * n, 4)}, v4, s[44:47], s60 offen")
    e("s_lshl_b32 s60, s3, 14")
    e("v_add_u32 v6, s60, v2")
    e("v_add_u32 v8, s37, v2")
    e("v_subrev_u32 v7, 0x10000, v8")
    e("s_waitcnt vmcnt(0)")
    for n in range(16):
        if (n >> 1) & 1 == 0:
            e(f"ds_write_b128 v8, {vr(HB+4*n,4)} offset:{((n>>2)*2 + (n&1))*1024}")
    e("s_waitcnt lgkmcnt(0)")
    e.bar()
    cs(e, 10)
    for n in range(16):
        if (n >> 1) & 1 == 1:
            e(f"ds_write_b128 v7, {vr(HB+4*n,4)} offset:{((n>>2)*2 + (n&1))*1024}")
    e("s_waitcnt lgkmcnt(0)")
    e.bar()
    for q in range(16):
        e(f"ds_write_b128 v6, {vr(DAC+4*q,4)} offset:{q*1024}")
    e("s_waitcnt lgkmcnt(0)")
    e.bar()
    stamp(e, 11); stamp(e, 12); stamp(e, 13, True)
    stamp_flush(e, 14)
    e("s_endpgm")
    return e.nbar


SP_XB = 65536
SP_WQ = 131072


def sp_xload(e, rows_sgpr, lds_sgpr, chunk_sgpr):
    e(f"s_lshl_b32 s60, s{chunk_sgpr}, 7")
    e(f"s_add_u32 s60, s60, s{rows_sgpr}")
    e(f"s_lshl_b32 s61, s{chunk_sgpr}, 13")
    e(f"s_add_u32 s61, s61, {lds_sgpr}")
    for n in range(8):
        e(f"s_add_u32 m0, s61, {n * 1024}")
        e("s_add_u32 s60, s60, 8192" if n else "s_nop 0")
        e(f"buffer_load_dwordx4 v{4 + (n & 1)}, s[32:35], s60 offen lds")


def sp_start(e):
    e.label("SP_START")
    e("s_lshl_b32 s60, s31, 1")
    e("s_add_u32 s60, s60, s56")
    e("s_sub_u32 s97, s60, 14")
    e("s_lshl_b32 s63, s97, 16")
    x_dma_voff(e)
    e("s_waitcnt lgkmcnt(0)")
    srd(e, 32, 4, 2048 * 1024)
    e("s_cmp_ge_u32 s30, 8")
    e("s_cbranch_scc1 SP_START_H")
    sp_xload(e, 63, 0, 30)
    e("s_branch COMPUTE")
    e.label("SP_START_H")
    e("s_cmp_lt_u32 s3, 2")
    e("s_cselect_b32 s36, s8, s10")
    e("s_cselect_b32 s37, s9, s11")
    e("s_mov_b32 s38, 16384")
    e("s_mov_b32 s39, 0x00020000")
    e("s_lshl_b32 s61, s3, 13")
    e("s_and_b32 s62, s61, 0x2000")
    for n in range(8):
        if n % 4 == 0:
            e(f"s_add_u32 m0, s61, {SP_XB + n * 1024}")
            e(f"s_add_u32 s60, s62, {n * 1024}")
        e(f"buffer_load_dwordx4 v2, s[36:39], s60 offen offset:{(n & 3) * 1024} lds")
    e("s_branch SP_HELPER")


def sp_helper(e):
    e.label("SP_HELPER")
    e.vm = []
    e.nbar = 0
    e("v_mov_b32 v16, 0")
    stamp(e, 2)
    srd(e, 48, 28, WS_SIZE)
    srd(e, 72, 26, 0 if "noflag" in OPT else 256)
    e.wait_all()
    e.bar()
    stamp(e, 3)
    srd(e, 36, 22, 1024)
    e(f"s_mov_b32 m0, {SP_XB + 32768}")
    e("v_lshrrev_b32 v7, 2, v1")
    e("buffer_load_dwordx4 v2, s[36:39], 0 offen lds")
    e("v_and_b32 v8, 3, v1")
    e("v_lshlrev_b32 v8, 4, v8")
    e("v_lshl_add_u32 v9, v7, 10, v8")
    srd(e, 40, 6, 512 * 1024)
    e("s_lshl_b32 s60, s3, 17")
    e("s_lshl_b32 s62, s56, 6")
    e("s_add_u32 s60, s60, s62")
    e("s_lshl_b32 s61, s3, 13")
    for n in range(8):
        e(f"s_add_u32 m0, s61, {SP_WQ + n * 1024}")
        e("s_add_u32 s60, s60, 16384" if n else "s_nop 0")
        e("buffer_load_dwordx4 v9, s[40:43], s60 offen lds")
    e("s_lshl_b32 s60, s97, 9")
    e("s_lshl_b32 s61, s3, 7")
    e("s_add_u32 s60, s60, s61")
    e(f"s_add_u32 s60, s60, {WS_FL}")
    e("s_mov_b64 exec, 0xff")
    e("buffer_store_dword v16, v3, s[48:51], s60 offen sc1")
    e("s_mov_b64 exec, -1")
    for r in range(4):
        e(f"v_mov_b32 v{12+r}, -1")
    e("s_xor_b32 s63, s97, 1")
    e("s_lshl_b32 s63, s63, 16")
    e.wait_all()
    e.bar()
    cs(e, 4)
    e("s_cmp_lg_u32 s3, 3")
    e("s_cbranch_scc1 SPH_A")
    cnt_arrive(e, 0)
    e.label("SPH_A")
    e("s_lshl_b32 s60, s97, 16")
    e("s_lshl_b32 s61, s3, 14")
    e("s_add_u32 s60, s60, s61")
    e(f"s_add_u32 s60, s60, {WS_OF}")
    for n in range(16):
        if n % 4 == 0:
            e(f"s_add_u32 s61, s60, {n * 1024}")
        e(f"buffer_store_dwordx4 v[12:15], v2, s[48:51], s61 offen offset:{(n & 3) * 1024} sc1")
    e.bar()
    for u in range(2):
        e("s_lshl_b32 s62, s3, 1")
        e(f"s_add_u32 s62, s62, {u}")
        sp_xload(e, 63, SP_XB, 62)
    e.wait_all()
    e.bar()
    cs(e, 5)
    e("s_cmp_lg_u32 s3, 3")
    e("s_cbranch_scc1 SPH_C")
    cnt_arrive(e, 128)
    e.label("SPH_C")
    e("s_cmp_lg_u32 s3, 3")
    e("s_cbranch_scc1 SPH_B")
    cnt_spin(e, 0)
    e.label("SPH_B")
    e.wait_all()
    e.bar()
    e.bar()
    kv_piece(e, (0, 1, 2, 3))
    kv_piece(e, (4, 5, 6, 7))
    e("s_cmp_lg_u32 s3, 3")
    e("s_cbranch_scc1 SPH_D")
    cnt_spin(e, 128)
    e.label("SPH_D")
    e.wait_all()
    cs(e, 6)
    e.bar()
    cs(e, 7)
    e("s_branch DOWN")
    return e.nbar


def sp_compute(e):
    e.label("SP_COMPUTE")
    e.vm = []
    e.nbar = 0
    A = 64
    srd(e, 48, 28, WS_SIZE)
    srd(e, 52, 24, 2048 * 1024)
    e("v_mov_b32 v8, 0xdddd")
    stamp(e, 2)

    def xaddr(base):
        e("v_and_b32 v14, 31, v1")
        e("v_lshrrev_b32 v15, 5, v1")
        e("v_bfe_u32 v16, v1, 1, 3")
        e("v_xor_b32 v16, v16, v15")
        e("s_and_b32 s60, s30, 1")
        e("s_lshl_b32 s60, s60, 12")
        e(f"s_add_u32 s60, s60, {base}")
        e("v_lshlrev_b32 v17, 7, v14")
        e("v_add_u32 v17, s60, v17")
        for s in range(4):
            e(f"v_xor_b32 v18, {2*s}, v16")
            e(f"v_lshl_add_u32 v{10+s}, v18, 4, v17")
        e("v_bfe_u32 v16, v1, 2, 2")
        e("v_lshl_add_u32 v17, v15, 3, v16")
        e("v_and_b32 v18, 3, v1")
        e("v_lshlrev_b32 v18, 3, v18")
        for r in range(16):
            e(f"v_mov_b32 v{A+r}, 0")

    def chain(kind):
        lab = e.newlabel("CH")
        rs = {"K": 32, "V": 32, "Q": 64, "G": 2}[kind]
        if kind in "KV":
            e("v_lshl_add_u32 v14, v17, 5, v18")
            e(f"v_add_u32 v14, {SP_XB + (16384 if kind == 'V' else 0)}, v14")
        elif kind == "Q":
            e("v_lshl_add_u32 v14, v17, 6, v18")
            e("v_bfe_u32 v19, v1, 4, 1")
            e("v_lshl_add_u32 v14, v19, 5, v14")
            e(f"v_add_u32 v14, {SP_WQ}, v14")
        else:
            e("v_lshlrev_b32 v14, 4, v15")
            e(f"v_add_u32 v14, {SP_XB + 32768}, v14")
        def rd(s):
            e(f"ds_read_b128 {vr(24+4*s,4)}, v{10+s}")
            if kind == "G":
                e(f"ds_read_b128 {vr(40+4*s,4)}, v14 offset:{s*32}")
            else:
                for rho in range(2):
                    e(f"ds_read_b64_tr_b16 {vr(40+4*s+2*rho,2)}, v14 offset:{(16*s+4*rho)*rs}")
            e(f"v_add_u32 v{10+s}, 0x2000, v{10+s}")
            if s == 3:
                e(f"v_add_u32 v14, {64*rs}, v14")
        nrd = 2 if kind == "G" else 3
        for s in range(4):
            rd(s)
        e("s_mov_b32 s60, 8")
        e.label(lab)
        for s in range(4):
            e(f"s_waitcnt lgkmcnt({3 * nrd})")
            a, b = vr(40+4*s, 4), vr(24+4*s, 4)
            if kind == "V":
                a, b = b, a
            e(f"v_mfma_f32_32x32x16_bf16 {vr(A,16)}, {a}, {b}, {vr(A,16)}")
            rd(s)
        e("s_sub_u32 s60, s60, 1")
        e("s_cmp_lg_u32 s60, 0")
        e(f"s_cbranch_scc1 {lab}")
        e("s_waitcnt lgkmcnt(0)")

    xaddr(0)
    e("s_lshl_b32 s98, s97, 1")
    e("s_and_b32 s60, s30, 1")
    e("s_add_u32 s98, s98, s60")
    e.wait_all()
    e.bar()
    stamp(e, 3)
    e("s_lshr_b32 s99, s30, 1")
    e("s_cmp_eq_u32 s99, 1")
    e("s_cbranch_scc1 SPC_V")
    e("s_cmp_eq_u32 s99, 2")
    e("s_cbranch_scc1 SPC_G")
    e("s_cmp_eq_u32 s99, 3")
    e("s_cbranch_scc1 SPC_Q")
    chain("K")
    e(f"s_mov_b32 s60, {fbits(0.25 * LOG2E)}")
    e("v_and_b32 v14, 0x33, v1")
    e("v_bfe_u32 v15, v1, 2, 1")
    e("v_lshl_add_u32 v14, v15, 3, v14")
    e("v_bfe_u32 v15, v1, 3, 1")
    e("v_lshl_add_u32 v14, v15, 2, v14")
    e("v_lshlrev_b32 v14, 4, v14")
    e("s_nop 4")
    for r in range(8):
        e(f"v_mul_f32 v{A+r}, s60, v{A+r}")
    e(f"v_mul_f32 v18, v{A}, v{A}")
    for r in range(1, 8):
        e(f"v_fmac_f32 v18, v{A+r}, v{A+r}")
    for r in range(4):
        e(f"v_cvt_pk_bf16_f32 v{A+8+r}, v{A+2*r}, v{A+2*r+1}")
    e("s_lshl_b32 s60, s98, 11")
    e(f"s_add_u32 s60, s60, {WS_KV}")
    e(f"buffer_store_dwordx4 {vr(A+8,4)}, v14, s[48:51], s60 offen sc1")
    allreduce(e, "v_add_f32", 18, 19, 5, 6)
    allreduce(e, "v_max_f32", 18, 19, 0, 5)
    e("s_lshl_b32 s60, s98, 2")
    e(f"s_add_u32 s60, s60, {WS_KN}")
    e("s_mov_b64 exec, 1")
    e("buffer_store_dword v18, v3, s[48:51], s60 offen sc1")
    e("s_mov_b64 exec, -1")
    e("s_branch SPC_KV_DONE")
    e.label("SPC_V")
    chain("V")
    e("s_nop 9")
    for r in range(8):
        e(f"v_cvt_pk_bf16_f32 v{A+r}, v{A+2*r}, v{A+2*r+1}")
    e("s_lshl_b32 s60, s98, 11")
    e(f"s_add_u32 s60, s60, {WS_KV + 1024}")
    e("s_mov_b32 exec_lo, 0xffff")
    e("s_mov_b32 exec_hi, 0xffff")
    e(f"buffer_store_dwordx4 {vr(A,4)}, v2, s[48:51], s60 offen sc1")
    e(f"buffer_store_dwordx4 {vr(A+4,4)}, v2, s[48:51], s60 offen offset:256 sc1")
    e("s_mov_b64 exec, -1")
    e.label("SPC_KV_DONE")
    e("s_waitcnt vmcnt(0)")
    e("s_barrier")
    e("s_barrier")
    e("s_barrier")
    e("s_barrier")
    e("s_branch SPC_JOIN")
    e.label("SPC_G")
    e("s_barrier")
    chain("G")
    e("s_barrier")
    e("s_nop 9")
    e(f"v_mul_f32 v18, {fbits(-LOG2E)}, v{A}")
    e("v_exp_f32 v18, v18")
    e("s_lshl_b32 s60, s98, 7")
    e("v_add_f32 v18, 1.0, v18")
    e("v_rcp_f32 v20, v18")
    e(f"s_add_u32 s60, s60, {WS_G}")
    e("s_mov_b32 exec_hi, 0")
    e("buffer_store_dword v20, v3, s[48:51], s60 offen sc1")
    e("s_mov_b64 exec, -1")
    xaddr(SP_XB)
    e("s_xor_b32 s98, s98, 2")
    e("s_waitcnt vmcnt(0)")
    e("s_barrier")
    chain("Q")
    e("s_branch SPC_QW")
    e.label("SPC_Q")
    e.bar()
    chain("Q")
    e.bar()
    e.bar()
    e.label("SPC_QW")
    e.bar()
    e("s_and_b32 s60, s98, 3")
    e("s_nop 2")
    e("s_lshl_b32 s60, s60, 12")
    e(f"s_add_u32 s60, s60, {WD_BASE}")
    e("v_add_u32 v14, s60, v2")
    e("v_xor_b32 v15, 0x4000, v14")
    e("s_nop 3")
    for r in range(8):
        e(f"v_cvt_pk_bf16_f32 v{A+r}, v{A+2*r}, v{A+2*r+1}")
    e(f"ds_write_b128 v14, {vr(A,4)}")
    e(f"ds_write_b128 v15, {vr(A+4,4)}")
    e("s_waitcnt lgkmcnt(0)")
    e.label("SPC_JOIN")
    cs(e, 4); cs(e, 5)
    e(f"s_mov_b32 s60, {WS_KN}")
    e("buffer_load_dword v9, v3, s[48:51], s60 offen sc1")
    e("s_branch QJOIN")
    return e.nbar


def compute(e):
    e.label("COMPUTE")
    e("s_lshr_b32 s60, s30, 2")
    e("s_lshl_b32 s96, s31, 2")
    e("s_and_b32 s61, s30, 3")
    e("s_add_u32 s96, s96, s61")
    e("s_lshl_b32 s96, s96, 4")
    e("s_add_u32 s96, s96, s56")
    e("s_lshl_b32 s96, s96, 1")
    e("s_add_u32 s96, s96, s60")
    e("s_lshl_b32 s96, s96, 10")
    e("s_lshr_b32 s61, s30, 1")
    e("s_xor_b32 s61, s61, s60")
    e("s_and_b32 s93, s61, 1")
    e("s_mov_b32 s40, 0xffff")
    e("s_mov_b32 s41, 0xffff")
    tr_addr128(e, 161, 162, 16, 17)
    e("s_bfe_u32 s60, s30, 0x10001")
    e("s_lshl_b32 s60, s60, 14")
    e("s_lshr_b32 s61, s30, 2")
    e("s_lshl_b32 s61, s61, 16")
    e(f"s_add_u32 s60, s60, {WD_BASE}")
    e("s_sub_u32 s60, s60, s61")
    e("v_add_u32 v161, s60, v161")
    e("v_add_u32 v162, s60, v162")
    e("s_lshl_b32 s62, s30, 12")
    e(f"s_add_u32 s62, s62, {WD_BASE}")
    e("v_add_u32 v160, s62, v2")
    e("s_cmp_ge_u32 s56, 14")
    e("s_cbranch_scc1 SP_COMPUTE")
    e.vm = []
    e.nbar = 0
    if "nopf" not in OPT:
        e("s_getpc_b64 s[44:45]")
        e.label("PC_REF")
        e(f"s_sub_u32 s44, s44, PC_REF-{NAME}_kernel")
        e("s_subb_u32 s45, s45, 0")
        e("s_and_b32 s60, s94, 3")
        e("s_lshl_b32 s60, s60, 3")
        e("s_add_u32 s60, s60, s30")
        e("s_lshl_b32 s60, s60, 10")
        e(f"s_min_u32 s60, s60, CODE_END-{NAME}_kernel-1024")
        e("v_add_u32 v24, s60, v2")
        e("global_load_dwordx4 v[24:27], v24, s[44:45]")
    XA = 128
    e("v_and_b32 v14, 31, v1")
    e("v_lshrrev_b32 v15, 5, v1")
    e("v_bfe_u32 v16, v1, 1, 3")
    e("v_xor_b32 v16, v16, v15")
    e("s_lshr_b32 s60, s30, 2")
    e("s_lshl_b32 s60, s60, 13")
    e("s_and_b32 s61, s30, 1")
    e("s_lshl_b32 s61, s61, 12")
    e("s_add_u32 s60, s60, s61")
    e("v_lshlrev_b32 v17, 7, v14")
    e("v_add_u32 v17, s60, v17")
    for s in range(4):
        e(f"v_xor_b32 v18, {2*s}, v16")
        e(f"v_lshl_add_u32 v{XA+s}, v18, 4, v17")
        e(f"v_xor_b32 v{XA+4+s}, 0x1000, v{XA+s}")
        e(f"v_add_u32 v{XA+8+s}, {X_BASE[2]}, v{XA+s}")
        e(f"v_add_u32 v{XA+12+s}, {X_BASE[2]}, v{XA+4+s}")
    e("v_bfe_u32 v16, v1, 2, 2")
    e("v_lshl_add_u32 v17, v15, 3, v16")
    e("v_bfe_u32 v18, v1, 4, 1")
    e("v_and_b32 v19, 3, v1")
    e("v_lshlrev_b32 v4, 6, v17")
    e("v_lshl_add_u32 v4, v18, 5, v4")
    e("v_lshl_add_u32 v4, v19, 3, v4")
    e("v_bfe_u32 v19, v1, 1, 1")
    e("v_lshl_add_u32 v18, v18, 1, v19")
    e("s_and_b32 s60, s30, 3")
    e("s_lshl_b32 s60, s60, 2")
    e("v_add_u32 v18, s60, v18")
    e("v_lshlrev_b32 v19, 2, v16")
    e("v_xor_b32 v18, v18, v19")
    e("v_lshlrev_b32 v18, 4, v18")
    e("v_lshl_add_u32 v14, v17, 8, v18")
    e("v_and_b32 v19, 1, v1")
    e("v_lshl_add_u32 v14, v19, 3, v14")
    e(f"v_add_u32 v14, {W_BASE}, v14")
    e("v_add_u32 v15, 0x10000, v14")
    e("v_mov_b32 v8, 0xdddd")
    e("s_waitcnt lgkmcnt(0)")
    srd(e, 48, 28, WS_SIZE)
    srd(e, 52, 24, 2048 * 1024)
    e("s_waitcnt vmcnt(0)")
    stamp(e, 2)

    ACC = 64
    QACC = 144
    FR = [24, 44]

    def reads(kc, s, fb, q):
        st = stage(kc)
        f = FR[fb]
        L = []
        for t in range(2):
            if st < 2:
                L.append(f"ds_read_b128 {vr(f + 8 + 4*t, 4)}, v{XA+4*t+s} offset:{X_BASE[st]}")
            else:
                L.append(f"ds_read_b128 {vr(f + 8 + 4*t, 4)}, v{XA+8+4*t+s}")
        for m in range(2):
            for rho in range(2):
                off = st * 32768 + m * 16384 + (16 * s + 4 * rho) * 256
                a = 14
                if off >= 65536:
                    off -= 65536
                    a = 15
                L.append(f"ds_read_b64_tr_b16 {vr(f + 4*m + 2*rho, 2)}, v{a} offset:{off}")
        if q:
            for rho in range(2):
                L.append(f"ds_read_b64_tr_b16 {vr(f + 16 + 2*rho, 2)}, v4 offset:{QS_BASE + st * 4096 + (16 * s + 4 * rho) * 64}")
        return L

    def mfmas(fb, first, q):
        f = FR[fb]
        L = []
        if q:
            c = "0" if first else vr(QACC, 16)
            L.append(f"v_mfma_f32_32x32x16_bf16 {vr(QACC,16)}, {vr(f+16,4)}, {vr(f+8,4)}, {c}")
        for m in range(2):
            for t in range(2):
                d = ACC + 32 * m + 16 * t
                c = "0" if first else vr(d, 16)
                L.append(f"v_mfma_f32_32x32x16_bf16 {vr(d,16)}, {vr(f+4*m,4)}, {vr(f+8+4*t,4)}, {c}")
        return L

    def gemm(q):
        e.bar()
        stamp(e, 3)
        for l in reads(0, 0, 0, q):
            e(l)
        for kc in range(8):
            for s in range(4):
                fb = s & 1
                e("s_waitcnt lgkmcnt(0)")
                if s < 3:
                    rl = reads(kc, s + 1, fb ^ 1, q)
                elif kc < 7:
                    e.bar()
                    fs(e, 4 + kc)
                    rl = reads(kc + 1, 0, fb ^ 1, q)
                else:
                    rl = []
                    e.bar()
                ml = mfmas(fb, kc == 0 and s == 0, q)
                for i, m in enumerate(ml):
                    e(m)
                    for l in rl[2*i:2*i+2]:
                        e(l)
            if kc == 3:
                cs(e, 4)
        cs(e, 5)

    e("s_cmp_eq_u32 s93, 0")
    e("s_cbranch_scc1 GEMM_Q")
    gemm(False)
    e("s_branch GEMM_DONE")
    e.label("GEMM_Q")
    e.nbar = 0
    gemm(True)
    e("v_and_b32 v14, 0xffffbfff, v160")
    e("v_or_b32 v15, 0x4000, v160")
    e("s_nop 5")
    for r in range(8):
        e(f"v_cvt_pk_bf16_f32 v{QACC+r}, v{QACC+2*r}, v{QACC+2*r+1}")
    e(f"ds_write_b128 v14, {vr(QACC,4)}")
    e(f"ds_write_b128 v15, {vr(QACC+4,4)}")
    e("s_waitcnt lgkmcnt(0)")
    e.label("GEMM_DONE")
    e(f"s_mov_b32 s60, {WS_KN}")
    e("buffer_load_dword v9, v3, s[48:51], s60 offen sc1")
    nb_ffn = e.nbar
    e.label("QJOIN")
    e.nbar = 0
    Q = 16; IDX = 8; C = 24; O = 40; S = [56, 72]; KF = [88, 92]; VF = [144, 152]
    e.bar()
    e(f"ds_read_b128 {vr(Q,4)}, v160")
    for r in range(16):
        e(f"v_mov_b32 v{144+r}, 0x3f803f80")
    for r in range(16):
        e(f"v_mov_b32 v{O+r}, 0")
    e("v_mov_b32 v13, v2")
    e("v_mov_b32 v11, 0")
    e("s_waitcnt lgkmcnt(0)")
    for i in range(4):
        e(f"v_dot2c_f32_bf16 v11, v{Q+i}, v{Q+i}")
    HP = 128
    e("s_cmp_ge_u32 s56, 14")
    e("s_cbranch_scc1 EPI_DONE")
    e("s_and_b32 s61, s30, 1")
    e("s_lshl_b32 s61, s61, 11")
    e("v_add_u32 v7, s61, v160")
    e("v_xor_b32 v5, 0x800, v7")
    e(f"s_mov_b32 s64, {fbits(-LOG2E)}")
    e(f"s_mov_b32 s65, {fbits(-LOG2E)}")
    e("s_mov_b32 s66, 1.0")
    e("s_mov_b32 s67, 1.0")
    for t in range(2):
        G = ACC + 16 * t
        U = ACC + 32 + 16 * t
        for r in range(0, 16, 2):
            e(f"v_pk_mul_f32 {vr(G+r,2)}, {vr(G+r,2)}, s[64:65]")
        for r in range(16):
            e(f"v_exp_f32 v{G+r}, v{G+r}")
        for r in range(0, 16, 2):
            e(f"v_pk_add_f32 {vr(G+r,2)}, {vr(G+r,2)}, s[66:67]")
        for r in range(16):
            e(f"v_rcp_f32 v{G+r}, v{G+r}")
        for r in range(0, 16, 2):
            e(f"v_pk_mul_f32 {vr(G+r,2)}, {vr(G+r,2)}, {vr(U+r,2)}")
        for r in range(8):
            e(f"v_cvt_pk_bf16_f32 v{HP+8*t+r}, v{G+2*r}, v{G+2*r+1}")
        a = (7, 5)[t]
        e(f"ds_write_b128 v{a}, {vr(HP+8*t,4)}")
        e(f"ds_write_b128 v{a}, {vr(HP+8*t+4,4)} offset:1024")
    e.label("EPI_DONE")
    cs(e, 6)
    for r in range(8):
        e(f"v_mov_b32 v{S[1]+8+r}, 0")
    e.wait_all()
    allreduce(e, "v_max_f32", 9, 12, 0, 6)
    allreduce(e, "v_add_f32", 11, 12, 5, 6)
    e(f"v_mul_f32 v9, {fbits(1.04)}, v9")
    e("v_mul_f32 v11, v11, v9")
    e("v_sqrt_f32 v11, v11")
    e(f"s_mov_b32 s60, {fbits(SAFE_BOUND)}")
    e("v_cmp_nle_f32 vcc, v11, s60")
    e("s_waitcnt lgkmcnt(0)")
    cs(e, 7)
    e.bar()
    e("s_nop 4")
    e("s_cbranch_vccz ATT_GO")
    e("v_mov_b32 v11, 0xff800000")
    e("v_mov_b32 v12, v2")
    e("s_mov_b32 s60, 64")
    e.label("MAXLOOP")
    e(f"ds_read_b128 {vr(KF[0],4)}, v12")
    e("v_add_u32 v12, 0x800, v12")
    e("s_waitcnt lgkmcnt(0)")
    e(f"v_mfma_f32_32x32x16_bf16 {vr(S[0],16)}, {vr(KF[0],4)}, {vr(Q,4)}, 0")
    e("s_nop 15")
    for r in range(8):
        e(f"v_max3_f32 v11, v11, v{S[0]+2*r}, v{S[0]+2*r+1}")
    e("s_sub_u32 s60, s60, 1")
    e("s_cmp_lg_u32 s60, 0")
    e("s_cbranch_scc1 MAXLOOP")
    allreduce(e, "v_max_f32", 11, 12, 5, 6)
    e.label("ATT_GO")

    def laddr(t):
        return ("v13", t * 2048)
    def rdK(t, b):
        a, o = laddr(t)
        e(f"ds_read_b128 {vr(KF[b],4)}, {a} offset:{o}")
    def rdV(t, b):
        a, o = laddr(t)
        e("s_mov_b64 exec, s[40:41]")
        e(f"ds_read_b128 {vr(VF[b],4)}, {a} offset:{o+1024}")
        e(f"ds_read_b128 {vr(VF[b]+4,4)}, {a} offset:{o+1280}")
        e("s_mov_b64 exec, -1")
    def qk(b):
        e(f"v_mfma_f32_32x32x16_bf16 {vr(S[b],16)}, {vr(KF[b],4)}, {vr(Q,4)}, {vr(C,16)}")
    def sp(b, half):
        e(f"v_smfmac_f32_32x32x32_bf16 {vr(O,16)}, {vr(VF[b]+4*half,4)}, {vr(S[b]+8*half,8)}, v{IDX}")
    def ex(b, lo, hi):
        for r in range(lo, hi):
            e(f"v_exp_f32 v{S[b]+r}, v{S[b]+r}")

    rdK(0, 0)
    rdV(0, 0)
    rdK(1, 1)
    for r in range(16):
        e(f"v_sub_f32 v{C+r}, 0, v11")
    cs(e, 8)
    e("s_waitcnt lgkmcnt(3)")
    qk(0)
    e("s_nop 15")
    UN = int(os.environ.get("UN", "8"))
    e(f"s_mov_b32 s60, {64 // UN}")
    e.raw(".p2align 6")
    e.label("ATT_LOOP")
    for t in range(UN):
        b = t & 1
        ex(b, 0, 2)
        sp(b ^ 1, 1)
        ex(b, 2, 6)
        e("s_waitcnt lgkmcnt(0)")
        qk(b ^ 1)
        ex(b, 6, 8)
        rdK(t + 2, b)
        ex(b, 8, 9)
        rdV(t + 1, b ^ 1)
        ex(b, 9, 11)
        sp(b, 0)
        if t == UN - 1:
            e(f"v_add_u32 v13, {UN * 2048}, v13")
            e("s_sub_u32 s60, s60, 1")
            e("s_cmp_lg_u32 s60, 0")
        ex(b, 11, 16)
    e("s_cbranch_scc1 ATT_LOOP")
    e("s_waitcnt lgkmcnt(0)")
    e("s_nop 1")
    sp(1, 1)
    WOB = 56
    OB = 120
    AC2 = 24
    e("s_lshl_b32 s34, s76, 1")
    e("s_and_b32 s61, s30, 1")
    e("s_add_u32 s34, s34, s61")
    e("s_lshl_b32 s34, s34, 5")
    e("s_and_b32 s60, s30, 2")
    e("s_lshl_b32 s60, s60, 3")
    e("s_add_u32 s34, s34, s60")
    e("s_lshr_b32 s60, s30, 2")
    e("s_add_u32 s34, s34, s60")
    e("s_lshl_b32 s34, s34, 10")
    e(f"s_add_u32 s34, s34, {WS_OF}")
    e("s_add_u32 s35, s34, 4096")
    e("s_add_u32 s36, s34, 8192")
    e("s_add_u32 s37, s34, 12288")
    cs(e, 9)
    e(f"v_rcp_f32 v11, v{O+8}")
    e(f"s_add_u32 s62, s96, {WS_OF}")
    for r in range(8):
        e(f"v_mul_f32 v{O+r}, v{O+r}, v11")
    for r in range(4):
        e(f"v_cvt_pk_bf16_f32 v{164+r}, v{O+2*r}, v{O+2*r+1}")
    e("buffer_store_dwordx4 v[164:167], v2, s[48:51], s62 offen sc1")

    def oload(k0):
        for k in range(k0, 8):
            e(f"buffer_load_dwordx4 {vr(OB+4*k,4)}, v2, s[48:51], s{34+(k>>1)} offen offset:{(k&1)*2048} sc1")
    def wread():
        for k in range(8):
            for m in range(2):
                for rho in range(2):
                    e(f"ds_read_b64_tr_b16 {vr(WOB+8*k+4*m+2*rho,2)}, v{161+m} offset:{k*2048 + rho*1024}")
    def ocheck():
        e(f"v_max_u32 v11, v{OB}, v{OB+1}")
        for r in range(1, 16):
            e(f"v_max3_u32 v11, v11, v{OB+2*r}, v{OB+2*r+1}")
        e("v_cmp_eq_u32 vcc, -1, v11")
    def addrs():
        e("v_and_b32 v10, 31, v1")
        e("v_lshlrev_b32 v12, 2, v10")
        e("s_lshl_b32 s60, s76, 8")
        e("s_bfe_u32 s61, s30, 0x10001")
        e("s_lshl_b32 s61, s61, 7")
        e("s_add_u32 s60, s60, s61")
        e(f"s_add_u32 s60, s60, {WS_G}")
        e("buffer_load_dword v9, v12, s[48:51], s60 offen sc1")
        e("v_lshrrev_b32 v11, 5, v1")
        e("v_lshlrev_b32 v6, 4, v10")
        e("v_lshl_add_u32 v6, v11, 10, v6")
        e("s_lshl_b32 s60, s30, 11")
        e("v_add_u32 v6, s60, v6")
        e("v_add_u32 v5, 0x18000, v6")
        e("v_lshlrev_b32 v10, 10, v10")
        e("v_lshl_add_u32 v10, v11, 4, v10")
        e("s_lshr_b32 s60, s30, 1")
        e("s_lshl_b32 s60, s60, 14")
        e("s_and_b32 s61, s30, 1")
        e("s_lshl_b32 s61, s61, 12")
        e("s_add_u32 s60, s60, s61")
        e("s_add_u32 s60, s60, 0x18000")
        e("v_add_u32 v7, s60, v2")
        e("s_lshl_b32 s63, s76, 16")
        e("s_bfe_u32 s61, s30, 0x10001")
        e("s_lshl_b32 s61, s61, 15")
        e("s_add_u32 s63, s63, s61")
        e("s_lshl_b32 s61, s77, 7")
        e("s_add_u32 s63, s63, s61")
        e("s_lshr_b32 s61, s30, 2")
        e("s_lshl_b32 s61, s61, 6")
        e("s_add_u32 s63, s63, s61")
        e("s_and_b32 s61, s30, 1")
        e("s_lshl_b32 s61, s61, 5")
        e("s_add_u32 s63, s63, s61")
    e("s_cmp_ge_u32 s30, 4")
    e("s_cbranch_scc1 TAIL_ODD")
    addrs()
    e("s_waitcnt vmcnt(0)")
    spin(e, lambda: oload(0), ocheck, 16)
    e("s_barrier")
    wread()
    e("s_waitcnt lgkmcnt(0)")
    e("s_barrier")
    e("s_branch TAIL_JOIN")
    e.label("TAIL_ODD")
    e.bar()
    addrs()
    if "oearly" in OPT:
        oload(0)
    e.bar()
    if "oearly" not in OPT:
        oload(0)
    wread()
    e("s_waitcnt lgkmcnt(0)")
    e.label("TAIL_JOIN")
    f2(e, 4)
    for k in range(8):
        e.label(f"OCHK{k}")
        e(f"s_waitcnt vmcnt({7-k})")
        e(f"v_max_u32 v11, v{OB+4*k}, v{OB+4*k+1}")
        e(f"v_max3_u32 v11, v11, v{OB+4*k+2}, v{OB+4*k+3}")
        e("v_cmp_eq_u32 vcc, -1, v11")
        e("s_nop 4")
        e(f"s_cbranch_vccnz ORETRY{k}")
        e.label(f"OGO{k}")
        if k == 7:
            cs(e, 10)
        for m in range(2):
            d = AC2 + 16 * m
            c = "0" if k == 0 else vr(d, 16)
            e(f"v_mfma_f32_32x32x16_bf16 {vr(d,16)}, {vr(WOB+8*k+4*m,4)}, {vr(OB+4*k,4)}, {c}")
    e("v_sub_f32 v8, 1.0, v9")
    e("s_nop 9")
    for m in range(2):
        for jq in range(4):
            e(f"ds_write_b128 v7, {vr(AC2+16*m+4*jq,4)} offset:{m*8192 + jq*1024}")
    e("s_waitcnt lgkmcnt(0)")
    f2(e, 5)
    e.bar()
    f2(e, 6); f2(e, 7)
    R = 56
    for p in range(8):
        a = 6 if p < 4 else 5
        for hh in range(2):
            e(f"ds_read_b128 {vr(R+8*p+4*hh,4)}, v{a} offset:{(p&3)*16384 + hh*512}")
    for p in (1, 2, 3, 5, 6, 7):
        e(f"s_waitcnt lgkmcnt({2*(7-p)})")
        base = R if p < 4 else R + 32
        for r in range(0, 8, 2):
            e(f"v_pk_add_f32 {vr(base+r,2)}, {vr(base+r,2)}, {vr(R+8*p+r,2)}")
        if p == 3:
            for r in range(8):
                e(f"v_mul_f32 v{R+r}, v{R+r}, v8")
    for r in range(8):
        e(f"v_fmac_f32 v{R+r}, v{R+32+r}, v9")
    for r in range(4):
        e(f"v_cvt_pk_bf16_f32 v{R+8+r}, v{R+2*r}, v{R+2*r+1}")
    e(f"buffer_store_dwordx4 {vr(R+8,4)}, v10, s[52:55], s63 offen")
    stamp(e, 11)
    if STAMP:
        e("s_waitcnt vmcnt(0)")
    stamp(e, 12); stamp(e, 13, True)
    stamp_flush(e, 14)
    e.label("K_END")
    e("s_endpgm")
    for k in range(8):
        e.label(f"ORETRY{k}")
        spin_guard(e, f"OGO{k}")
        e("s_waitcnt vmcnt(0)")
        e(f"s_sleep {int(os.environ.get('OSL', '1'))}")
        oload(k)
        e(f"s_branch OCHK{k}")
    return nb_ffn, e.nbar


def kd(name, vgpr, sgpr=102):
    acc = (vgpr + 3) // 4 * 4
    return f""".p2align 6
.amdhsa_kernel {name}
  .amdhsa_next_free_vgpr {vgpr}
  .amdhsa_next_free_sgpr {sgpr}
  .amdhsa_accum_offset {acc}
  .amdhsa_group_segment_fixed_size 0
  .amdhsa_kernarg_size 104
  .amdhsa_user_sgpr_count 2
  .amdhsa_user_sgpr_kernarg_segment_ptr 1
  .amdhsa_system_sgpr_workgroup_id_x 1
.end_amdhsa_kernel
"""


def main(out):
    ref = open(f"cdna_kernels/{NAME}.s.ref").read().split("\n")
    hdr = [l for l in ref if l.startswith(";") and "@launch" not in l and "Override" not in l and "grid=ceil" not in l]
    e = Asm()
    prologue(e)
    sp_start(e)
    n1 = loader(e)
    n2 = service(e)
    n3 = down(e)
    nf, nc = compute(e)
    n5 = sp_helper(e)
    n6 = sp_compute(e)
    e.label("CODE_END")
    assert n1 == n2 and n1 + n3 == nf + nc and n5 + n3 == n6 + nc, (n1, n2, n3, nf, nc, n5, n6)
    s = "\n".join(hdr) + "\n"
    s += f"; @launch grid=(256,1,1) block=(768,1,1) lds={LDS_TOTAL}\n"
    s += '.amdgcn_target "amdgcn-amd-amdhsa--gfx950"\n.text\n'
    s += e.text()
    s += '.section .rodata,"a"\n'
    s += kd(NAME + "_kernel", 168)
    open(out, "w").write(s)


if __name__ == "__main__":
    main(sys.argv[1] if len(sys.argv) > 1 else f"cdna_kernels/{NAME}.s")
```

```python
import sys, os, struct

NAME = "gated_mix__grouped_kv_mqa__glu_gated_glu__prompt"

WS_OF = 2 << 20
WS_KV = 4 << 20
WS_KN = WS_KV + 131072
WS_G = WS_KN + 4096
WS_FL = WS_G + 8192
WS_HF = 8 << 20
WS_ST = 15 << 20
WS_SIZE = 16 << 20
OOB = 0x7f000000

LOG2E = 1.4426950408889634
STAMP = os.environ.get("STAMP", "0") == "1"
OPT = set(os.environ.get("OPT", "").split(","))
FINE = "fine" in OPT
FINE2 = "fine2" in OPT


def fbits(x):
    return "0x%08x" % struct.unpack("<I", struct.pack("<f", x))[0]


class Asm:
    def __init__(self):
        self.lines = []
        self.vm = []
        self.uid = 0
        self.nbar = 0
    def __call__(self, s):
        self.lines.append("    " + s)
    def label(self, s):
        self.lines.append(s + ":")
    def raw(self, s):
        self.lines.append(s)
    def vmem(self, s, tag):
        self(s)
        self.vm.append(tag)
    def wait_vm(self, tag):
        idxs = [i for i, t in enumerate(self.vm) if t == tag]
        if not idxs:
            return
        idx = max(idxs)
        n = len(self.vm) - 1 - idx
        assert n <= 63
        self(f"s_waitcnt vmcnt({n})")
        self.vm = self.vm[idx + 1:]
    def wait_all(self):
        self("s_waitcnt vmcnt(0)")
        self.vm = []
    def bar(self):
        self("s_barrier")
        self.nbar += 1
    def newlabel(self, p):
        self.uid += 1
        return f"{p}_{self.uid}"
    def text(self):
        return "\n".join(self.lines) + "\n"


def stamp(e, i, real=False):
    if not STAMP:
        return
    if "amp" in OPT:
        if i not in (1, int(os.environ["AMP"])):
            return
        real = True
    if "rt" in OPT:
        real = True
    e(("s_memrealtime" if real else "s_memtime") + " s[78:79]")
    e("s_waitcnt lgkmcnt(0)")
    e(f"s_mov_b32 s{80+i}, s78")


def cs(e, i):
    if not FINE and not (FINE2 and i in (4, 5, 6, 7)):
        stamp(e, i)


def f2(e, i):
    if FINE2:
        stamp(e, i)


def fs(e, i):
    if FINE:
        stamp(e, i)


def stamp_flush(e, n):
    if not STAMP:
        return
    if "amp" in OPT:
        lab, lp = e.newlabel("AMPS"), e.newlabel("AMPL")
        i = int(os.environ["AMP"])
        e(f"s_cmp_lg_u32 s30, {int(os.environ.get('DBGW', '4'))}")
        e(f"s_cbranch_scc1 {lab}")
        e(("s_cmp_lt_u32" if "dbgsp" in OPT else "s_cmp_ge_u32") + " s56, 14")
        e(f"s_cbranch_scc1 {lab}")
        e(f"s_sub_u32 s60, s{80+i}, s81")
        e("s_mul_i32 s60, s60, 10")
        e("s_memrealtime s[62:63]")
        e("s_waitcnt lgkmcnt(0)")
        e.label(lp)
        e("s_memrealtime s[78:79]")
        e("s_waitcnt lgkmcnt(0)")
        e("s_sub_u32 s61, s78, s62")
        e("s_cmp_lt_u32 s61, s60")
        e(f"s_cbranch_scc1 {lp}")
        e.label(lab)
        return
    if "dbg" in OPT:
        lab = e.newlabel("DBGS")
        lo = int(os.environ.get("DBGW", "4"))
        e(f"s_sub_u32 s78, s30, {lo}")
        e("s_cmp_ge_u32 s78, 4")
        e(f"s_cbranch_scc1 {lab}")
        e(("s_cmp_lt_u32" if "dbgsp" in OPT else "s_cmp_ge_u32") + " s56, 14")
        e(f"s_cbranch_scc1 {lab}")
        srd(e, 72, 26, 256)
        e("v_mov_b32 v0, 0")
        e("s_mov_b64 exec, 1")
        for i in range(2, 13):
            e(f"s_sub_u32 s78, s{80+i}, s81")
            e("v_mov_b32 v1, s78")
            e(f"buffer_atomic_umax v1, v0, s[72:75], 0 offen offset:{4*i}")
        e("s_sub_u32 s78, s93, s80")
        e("v_mov_b32 v1, s78")
        e(f"buffer_atomic_umax v1, v0, s[72:75], 0 offen offset:52")
        e("s_mov_b64 exec, -1")
        e.label(lab)
        return
    e("s_lshl_b32 s78, s2, 4")
    e("s_add_u32 s78, s78, s30")
    e("s_lshl_b32 s78, s78, 6")
    e(f"s_add_u32 s78, s78, {WS_ST}")
    e("v_mov_b32 v0, 0")
    e("s_mov_b64 exec, 1")
    for i in range(n):
        e(f"v_mov_b32 v1, s{80+i}")
        e(f"buffer_store_dword v1, v0, s[48:51], s78 offen offset:{4*i}")
    e("s_mov_b64 exec, -1")


def vr(a, n=1):
    return f"v{a}" if n == 1 else f"v[{a}:{a+n-1}]"


def srd(e, d, base, size):
    e(f"s_mov_b32 s{d}, s{base}")
    e(f"s_mov_b32 s{d+1}, s{base+1}")
    e(f"s_mov_b32 s{d+2}, {size}")
    e(f"s_mov_b32 s{d+3}, 0x00020000")


def allreduce(e, op, x, t, lo=0, hi=6):
    dpp = ["quad_perm:[1,0,3,2]", "quad_perm:[2,3,0,1]", "row_half_mirror", "row_mirror"]
    for b in range(lo, min(hi, 4)):
        e("s_nop 1")
        e(f"{op}_dpp v{x}, v{x}, v{x} {dpp[b]} row_mask:0xf bank_mask:0xf")
    for b, ins in ((4, "v_permlane16_swap_b32"), (5, "v_permlane32_swap_b32")):
        if lo <= b < hi:
            e(f"v_mov_b32 v{t}, v{x}")
            e("s_nop 1")
            e(f"{ins} v{x}, v{t}")
            e("s_nop 1")
            e(f"{op} v{x}, v{x}, v{t}")


X_ST = 16384
W_BASE = 3 * X_ST
QS_BASE = 32768
X_BASE = [0, 16384, 147456]
LDS_TOTAL = 163840
def stage(kc):
    return (kc + 1) % 3
SAFE_BOUND = 48.0
WD_BASE = 131072
NBW = 4


def spin_guard(e, done):
    e("s_cmp_eq_u32 s100, 0")
    e(f"s_cbranch_scc1 {done}")
    e("s_sub_u32 s100, s100, 1")


def spin(e, load, check, sleep, preloaded=False):
    lo, chk, done = e.newlabel("SPIN"), e.newlabel("SPINC"), e.newlabel("SPIND")
    if preloaded:
        e(f"s_branch {chk}")
    e.label(lo)
    load()
    e.label(chk)
    e.wait_all()
    check()
    e("s_nop 4")
    e(f"s_cbranch_vccz {done}")
    spin_guard(e, done)
    e(f"s_sleep {sleep}")
    e(f"s_branch {lo}")
    e.label(done)


def tr_addr128(e, d0, d1, t0, t1):
    e(f"v_bfe_u32 v{t0}, v1, 2, 2")
    e(f"v_lshrrev_b32 v{t1}, 5, v1")
    e(f"v_lshl_add_u32 v{d0}, v{t1}, 2, v{t0}")
    e(f"v_lshlrev_b32 v{d0}, 7, v{d0}")
    e(f"v_bfe_u32 v{t1}, v1, 4, 1")
    e(f"v_lshl_add_u32 v{d0}, v{t1}, 5, v{d0}")
    e(f"v_and_b32 v{t1}, 3, v1")
    e(f"v_lshl_add_u32 v{d0}, v{t1}, 3, v{d0}")
    e(f"v_bfe_u32 v{t1}, v1, 3, 1")
    e(f"v_lshlrev_b32 v{t1}, 6, v{t1}")
    e(f"v_add_u32 v{d0}, v{d0}, v{t1}")
    e(f"v_xor_b32 v{d1}, 64, v{d0}")


def dma_voff128(e, d, t0, t1):
    e(f"v_lshrrev_b32 v{t0}, 3, v1")
    e(f"v_bfe_u32 v{t1}, v1, 4, 1")
    e(f"v_lshlrev_b32 v{t1}, 2, v{t1}")
    e(f"v_and_b32 v{d}, 7, v1")
    e(f"v_xor_b32 v{d}, v{d}, v{t1}")
    e(f"v_lshlrev_b32 v{d}, 4, v{d}")
    e(f"v_lshl_add_u32 v{d}, v{t0}, 10, v{d}")


def prologue(e):
    n = NAME + "_kernel"
    e.raw(f".globl {n}\n.p2align 8\n.type {n},@function\n{n}:")
    e("s_cmp_ge_u32 s2, 256")
    e("s_cbranch_scc1 K_END")
    stamp(e, 0, True); stamp(e, 1)
    e("s_load_dwordx16 s[4:19], s[0:1], 0")
    e("s_load_dwordx8 s[20:27], s[0:1], 64")
    e("s_load_dwordx2 s[28:29], s[0:1], 96")
    e("s_mov_b32 s100, %d" % (0 if "nospin" in OPT else 0x20000))
    e("v_lshrrev_b32 v2, 6, v0")
    e("v_and_b32 v1, 63, v0")
    e("v_readfirstlane_b32 s30, v2")
    e("v_lshlrev_b32 v2, 4, v1")
    e("v_lshlrev_b32 v3, 2, v1")
    e("v_lshrrev_b32 v6, 4, v1")
    e("s_and_b32 s57, s2, 7")
    e("s_lshr_b32 s59, s2, 3")
    e("s_and_b32 s94, s59, 7")
    e("s_lshr_b32 s95, s59, 3")
    e("s_and_b32 s31, s57, 1")
    e("s_lshl_b32 s31, s31, 3")
    e("s_add_u32 s31, s31, s94")
    e("s_lshr_b32 s56, s57, 1")
    e("s_xor_b32 s60, s95, 3")
    e("s_lshl_b32 s60, s60, 2")
    e("s_add_u32 s56, s56, s60")
    e("s_and_b32 s76, s57, 3")
    e("s_lshl_b32 s76, s76, 3")
    e("s_add_u32 s76, s76, s94")
    e("s_lshr_b32 s77, s57, 2")
    e("s_lshl_b32 s77, s77, 2")
    e("s_add_u32 s77, s77, s95")
    e("s_sub_u32 s3, s30, 8")
    rot = os.environ.get("ROT", "8")
    e("s_lshl_b32 s58, s95, 1")
    e("s_add_u32 s58, s58, s94")
    if rot == "4":
        e("s_and_b32 s58, s58, 6")
    elif rot == "2":
        e("s_add_u32 s58, s94, s95")
        e("s_and_b32 s58, s58, 1")
        e("s_lshl_b32 s58, s58, 2")
    elif rot == "1":
        e("s_mov_b32 s58, 0")
    e("s_cmp_ge_u32 s56, 14")
    e("s_cbranch_scc1 SP_START")
    e("s_cmp_lt_u32 s30, 8")
    e("s_cbranch_scc1 COMPUTE")
    e("s_cmp_eq_u32 s3, 3")
    e("s_cbranch_scc1 SERVICE")
    e("s_branch LOADER")


def x_dma_voff(e):
    e("v_and_b32 v8, 7, v1")
    e("v_xor_b32 v7, v6, v8")
    e("v_lshrrev_b32 v8, 3, v1")
    e("v_lshlrev_b32 v8, 10, v8")
    e("v_lshl_add_u32 v4, v7, 4, v8")
    e("v_xor_b32 v5, 64, v4")


def kv_piece(e, tab):
    e(f"s_mov_b32 s59, {sum(t << (8 * i) for i, t in enumerate(tab)):#x}")
    e("s_lshl_b32 s62, s3, 3")
    e("s_lshr_b32 s59, s59, s62")
    e("s_and_b32 s59, s59, 15")
    e("s_add_u32 s62, s59, s94")
    e("s_and_b32 s62, s62, 7")
    e("s_lshl_b32 s62, s62, 14")
    e(f"s_add_u32 s62, s62, {WS_KV}")
    e("s_lshl_b32 s59, s59, 14")
    for n in range(16):
        if n % 4 == 0:
            e(f"s_add_u32 m0, s59, {n * 1024}")
            e(f"s_add_u32 s64, s62, {n * 1024}")
        e.vmem(f"buffer_load_dwordx4 v2, s[48:51], s64 offen offset:{(n & 3) * 1024} sc1 lds", "kvl")


def cnt_spin(e, off):
    e("v_mov_b32 v17, 0")
    spin(e, lambda: e(f"buffer_load_dword v20, v17, s[72:75], 0 offen offset:{off} sc1"),
         lambda: e("v_cmp_gt_u32 vcc, 32, v20"), 32)


def cnt_arrive(e, off):
    e("v_mov_b32 v21, 1")
    e("v_mov_b32 v17, 0")
    e("s_mov_b64 exec, 1")
    e(f"buffer_atomic_add v21, v17, s[72:75], 0 offen offset:{off} sc1")
    e("s_mov_b64 exec, -1")


def loader(e):
    e.label("LOADER")
    e.vm = []
    e.nbar = 0
    e("s_lshl_b32 s63, s56, 8")
    e("v_mul_u32_u24 v8, 3584, v6")
    e("v_lshlrev_b32 v7, 2, v6")
    e("v_and_b32 v10, 15, v1")
    e("v_xor_b32 v7, v7, v10")
    e("v_lshl_add_u32 v4, v7, 4, v8")
    e("v_mov_b32 v5, v4")
    e(f"s_mov_b32 s65, {4 * 3584}")
    e(f"s_mov_b32 s66, {64 * 3584}")
    e("s_lshl_b32 s67, s3, 14")
    e(f"s_add_u32 s67, s67, {W_BASE - 16384}")
    e("s_add_u32 s69, s67, 32768")
    e("s_add_u32 s70, s69, 32768")
    e("s_mov_b32 s34, %d" % (512 * 3584))
    e("s_cmp_lg_u32 s3, 0")
    e("s_cbranch_scc1 LD_W")
    x_dma_voff(e)
    e("s_lshl_b32 s63, s31, 17")
    e("s_mov_b32 s65, 8192")
    e("s_mov_b32 s66, 128")
    e("s_mov_b32 s67, 0")
    e(f"s_mov_b32 s69, {X_BASE[1]}")
    e(f"s_mov_b32 s70, {X_BASE[2]}")
    e("s_mov_b32 s34, %d" % (2048 * 1024))
    e.label("LD_W")
    e("s_mov_b32 s35, 0x00020000")
    e("s_waitcnt lgkmcnt(0)")
    stamp(e, 2)
    e("s_cmp_eq_u32 s3, 1")
    e("s_cselect_b32 s32, s16, s18")
    e("s_cselect_b32 s33, s17, s19")
    e("s_cmp_eq_u32 s3, 0")
    e("s_cselect_b32 s32, s4, s32")
    e("s_cselect_b32 s33, s5, s33")

    def dma(kc, n0=0, n1=16):
        sb = (67, 69, 70)[stage(kc)]
        so = 60 + (kc & 1)
        if n0 == 0:
            e(f"s_add_u32 s59, s58, {kc}")
            e("s_and_b32 s59, s59, 7")
            e(f"s_mul_i32 s{so}, s66, s59")
            e(f"s_add_u32 s{so}, s{so}, s63")
        for n in range(n0, n1):
            e(f"s_add_u32 m0, s{sb}, {n * 1024}")
            if n > 0:
                e(f"s_add_u32 s{so}, s{so}, s65")
            else:
                e("s_nop 0")
            e.vmem(f"buffer_load_dwordx4 v{4 + (n & 1)}, s[32:35], s{so} offen lds", f"c{kc}")

    LA = int(os.environ.get("LA", "6"))
    dma(0)
    dma(1, 0, LA)
    srd(e, 48, 28, WS_SIZE)
    e.wait_vm("c0")
    e.bar()
    stamp(e, 3)
    for kc in range(7):
        dma(kc + 1, LA, 16)
        if kc + 2 < 8:
            dma(kc + 2, 0, LA)
        if kc == 6:
            kv_piece(e, (0, 3, 4))
        e.wait_vm(f"c{kc+1}")
        fs(e, 4 + kc)
        e.bar()
        if kc == 3:
            cs(e, 4)
    kv_piece(e, (1, 5, 6))
    e.bar()
    cs(e, 5)
    e.bar()
    e("s_cmp_eq_u32 s3, 2")
    e("s_cbranch_scc1 KVP_SKIP")
    kv_piece(e, (7, 2, 2))
    e.label("KVP_SKIP")
    e.wait_all()
    cs(e, 6)
    e.bar()
    cs(e, 7)
    e("s_branch DOWN")
    return e.nbar


def wq_voff(e):
    e("v_lshrrev_b32 v7, 2, v1")
    e("v_and_b32 v8, 3, v1")
    e("v_lshlrev_b32 v8, 4, v8")
    e("v_lshl_add_u32 v4, v7, 10, v8")


def service(e):
    e.label("SERVICE")
    e.vm = []
    e.nbar = 0
    wq_voff(e)
    e("s_lshl_b32 s63, s56, 6")
    e("s_waitcnt lgkmcnt(0)")
    stamp(e, 2)
    srd(e, 32, 6, 512 * 1024)

    def dma(kc):
        e(f"s_add_u32 s59, s58, {kc}")
        e("s_and_b32 s59, s59, 7")
        e("s_lshl_b32 s60, s59, 16")
        e("s_add_u32 s60, s60, s63")
        for n in range(4):
            e(f"s_mov_b32 m0, {QS_BASE + stage(kc) * 4096 + n * 1024}")
            e("s_add_u32 s60, s60, 16384" if n else "s_nop 0")
            e.vmem("buffer_load_dwordx4 v4, s[32:35], s60 offen lds", f"c{kc}")
    dma(0)
    dma(1)
    srd(e, 48, 28, WS_SIZE)
    srd(e, 72, 26, 0 if "noflag" in OPT else 256)
    e.wait_vm("c0")
    e.bar()
    stamp(e, 3)
    for kc in range(7):
        if kc + 2 < 8:
            dma(kc + 2)
        if kc == 5:
            cnt_spin(e, 0)
        e.wait_vm(f"c{kc+1}")
        fs(e, 4 + kc)
        e.bar()
        if kc == 3:
            cs(e, 4)
    e.bar()
    cs(e, 5)
    e.bar()
    cnt_spin(e, 128)
    cs(e, 6)
    e.bar()
    cs(e, 7)
    return e.nbar


def down(e):
    e.label("DOWN")
    e.vm = []
    e.nbar = 0
    srd(e, 44, 20, 1792 * 1024)
    e("s_mul_i32 s32, s76, 224")
    e("s_mul_i32 s60, s3, 28")
    e("s_add_u32 s32, s32, s60")
    e("s_lshl_b32 s32, s32, 10")
    e(f"s_add_u32 s32, s32, {WS_HF}")
    e(f"s_add_u32 s33, s32, {112*1024}")
    e("s_lshl_b32 s36, s60, 14")
    e("s_lshl_b32 s61, s77, 7")
    e("s_add_u32 s36, s36, s61")
    e(f"s_mul_i32 s37, s3, {NBW * 2048}")
    e(f"s_add_u32 s37, s37, {WD_BASE}")
    e("s_setprio 2")
    dma_voff128(e, 4, 7, 8)
    tr_addr128(e, 9, 10, 7, 8)
    e("v_add_u32 v9, s37, v9")
    e("v_add_u32 v10, s37, v10")
    e("s_lshl_b32 s62, s76, 9")
    e("s_lshl_b32 s60, s3, 7")
    e("s_add_u32 s62, s62, s60")
    e(f"s_add_u32 s62, s62, {WS_FL}")
    DAC = 24
    WB = 88
    HB = 104
    NBH = 8

    def wload(ks):
        for u in range(2):
            e(f"s_add_u32 m0, s37, {(ks % NBW) * 2048 + u * 1024}")
            e(f"s_add_u32 s60, s36, {ks * 16384 + u * 8192}")
            e.vmem("buffer_load_dwordx4 v4, s[44:47], s60 offen lds", f"w{ks}")
    def hload(ks):
        f = HB + 8 * (ks % NBH)
        for t in range(2):
            e(f"s_add_u32 s60, s{32+t}, {ks*1024}")
            e.vmem(f"buffer_load_dwordx4 {vr(f+4*t,4)}, v2, s[48:51], s60 offen sc1", f"h{ks}")
    def wread(ks):
        f = WB + 8 * (ks & 1)
        for m in range(2):
            for rho in range(2):
                e(f"ds_read_b64_tr_b16 {vr(f+4*m+2*rho,2)}, v{9+m} offset:{(ks % NBW) * 2048 + rho * 1024}")

    e("s_cmp_ge_u32 s56, 14")
    e("s_cbranch_scc1 H_SKIP")
    e("v_add_u32 v7, s37, v2")
    for n in range(8):
        e(f"ds_read_b128 {vr(HB+4*n,4)}, v7 offset:{n*1024}")
    e("s_lshl_b32 s64, s31, 2")
    e("s_and_b32 s60, s3, 2")
    e("s_add_u32 s64, s64, s60")
    e("s_mul_i32 s64, s64, 112")
    e("s_lshl_b32 s60, s56, 1")
    e("s_and_b32 s61, s3, 1")
    e("s_add_u32 s66, s60, s61")
    e("s_lshl_b32 s60, s66, 2")
    e("s_add_u32 s64, s64, s60")
    e("s_lshl_b32 s64, s64, 10")
    e(f"s_add_u32 s64, s64, {WS_HF}")
    e(f"s_add_u32 s65, s64, {112*1024}")
    e("s_mul_i32 s60, s66, 37")
    e("s_lshr_b32 s60, s60, 8")
    e("s_mul_i32 s61, s60, 25")
    e("s_add_u32 s66, s66, s61")
    e("s_lshl_b32 s66, s66, 2")
    e("s_lshl_b32 s60, s31, 10")
    e("s_add_u32 s66, s66, s60")
    e("s_and_b32 s60, s3, 2")
    e("s_lshl_b32 s60, s60, 8")
    e("s_add_u32 s66, s66, s60")
    e(f"s_add_u32 s66, s66, {WS_FL}")
    e("s_waitcnt lgkmcnt(0)")
    for n in range(8):
        u, t, k = n >> 2, (n >> 1) & 1, n & 1
        e(f"buffer_store_dwordx4 {vr(HB+4*n,4)}, v2, s[48:51], s{64+t} offen offset:{(2*u+k)*1024} sc1")
        HT = int(os.environ.get("HT", "63"))
        if HT < 63:
            e(f"s_waitcnt vmcnt({HT})")
    f2(e, 4)
    e("v_mov_b32 v12, 1")
    e("v_mov_b32 v11, 0")
    e("s_waitcnt vmcnt(0)")
    f2(e, 5)
    e("s_mov_b64 exec, 1")
    e("buffer_store_dword v12, v11, s[48:51], s66 offen sc1")
    e("s_mov_b64 exec, -1")
    e.label("H_SKIP")
    f2(e, 6); f2(e, 7)
    for ks in range(NBW):
        wload(ks)

    def fl_ld():
        e("s_mov_b64 exec, 0x7f")
        e("buffer_load_dword v20, v3, s[48:51], s62 offen sc1")
        e("s_mov_b64 exec, -1")
    def fl_ck():
        e("s_mov_b64 exec, 0x7f")
        e("v_cmp_ne_u32 vcc, 1, v20")
        e("s_mov_b64 exec, -1")
    if "slp" in OPT:
        e("s_sleep 100")
    spin(e, fl_ld, fl_ck, 16)
    e("s_setprio 0")
    cs(e, 8)
    HA = int(os.environ.get("HA", "4"))
    for ks in range(HA):
        hload(ks)
    wread(0)
    for ks in range(28):
        e("s_waitcnt lgkmcnt(0)")
        if ks + NBW < 28:
            wload(ks + NBW)
        if ks + HA < 28:
            hload(ks + HA)
        if ks + 1 < 28:
            e.wait_vm(f"w{ks+1}")
            wread(ks + 1)
        e.wait_vm(f"h{ks}")
        f = WB + 8 * (ks & 1)
        h = HB + 8 * (ks % NBH)
        for m in range(2):
            for t in range(2):
                d = DAC + 32 * m + 16 * t
                c = "0" if ks == 0 else vr(d, 16)
                e(f"v_mfma_f32_32x32x16_bf16 {vr(d,16)}, {vr(f+4*m,4)}, {vr(h+4*t,4)}, {c}")
    cs(e, 9)
    e("s_setprio 2")
    srd(e, 44, 12, 512 * 1024)
    e("s_lshl_b32 s36, s3, 17")
    e("s_lshl_b32 s61, s77, 7")
    e("s_add_u32 s36, s36, s61")
    for n in range(16):
        e(f"s_add_u32 s60, s36, {n * 8192}")
        e(f"buffer_load_dwordx4 {vr(HB + 4 * n, 4)}, v4, s[44:47], s60 offen")
    e("s_lshl_b32 s60, s3, 14")
    e("v_add_u32 v6, s60, v2")
    e("v_add_u32 v8, s37, v2")
    e("v_subrev_u32 v7, 0x10000, v8")
    e("s_waitcnt vmcnt(0)")
    for n in range(16):
        if (n >> 1) & 1 == 0:
            e(f"ds_write_b128 v8, {vr(HB+4*n,4)} offset:{((n>>2)*2 + (n&1))*1024}")
    e("s_waitcnt lgkmcnt(0)")
    e.bar()
    cs(e, 10)
    for n in range(16):
        if (n >> 1) & 1 == 1:
            e(f"ds_write_b128 v7, {vr(HB+4*n,4)} offset:{((n>>2)*2 + (n&1))*1024}")
    e("s_waitcnt lgkmcnt(0)")
    e.bar()
    for q in range(16):
        e(f"ds_write_b128 v6, {vr(DAC+4*q,4)} offset:{q*1024}")
    e("s_waitcnt lgkmcnt(0)")
    e.bar()
    stamp(e, 11); stamp(e, 12); stamp(e, 13, True)
    stamp_flush(e, 14)
    e("s_endpgm")
    return e.nbar


SP_XB = 65536
SP_WQ = 131072


def sp_xload(e, rows_sgpr, lds_sgpr, chunk_sgpr):
    e(f"s_lshl_b32 s60, s{chunk_sgpr}, 7")
    e(f"s_add_u32 s60, s60, s{rows_sgpr}")
    e(f"s_lshl_b32 s61, s{chunk_sgpr}, 13")
    e(f"s_add_u32 s61, s61, {lds_sgpr}")
    for n in range(8):
        e(f"s_add_u32 m0, s61, {n * 1024}")
        e("s_add_u32 s60, s60, 8192" if n else "s_nop 0")
        e(f"buffer_load_dwordx4 v{4 + (n & 1)}, s[32:35], s60 offen lds")


def sp_start(e):
    e.label("SP_START")
    e("s_lshl_b32 s60, s31, 1")
    e("s_add_u32 s60, s60, s56")
    e("s_sub_u32 s97, s60, 14")
    e("s_lshl_b32 s63, s97, 16")
    x_dma_voff(e)
    e("s_waitcnt lgkmcnt(0)")
    srd(e, 32, 4, 2048 * 1024)
    e("s_cmp_ge_u32 s30, 8")
    e("s_cbranch_scc1 SP_START_H")
    sp_xload(e, 63, 0, 30)
    e("s_branch COMPUTE")
    e.label("SP_START_H")
    e("s_cmp_lt_u32 s3, 2")
    e("s_cselect_b32 s36, s8, s10")
    e("s_cselect_b32 s37, s9, s11")
    e("s_mov_b32 s38, 16384")
    e("s_mov_b32 s39, 0x00020000")
    e("s_lshl_b32 s61, s3, 13")
    e("s_and_b32 s62, s61, 0x2000")
    for n in range(8):
        if n % 4 == 0:
            e(f"s_add_u32 m0, s61, {SP_XB + n * 1024}")
            e(f"s_add_u32 s60, s62, {n * 1024}")
        e(f"buffer_load_dwordx4 v2, s[36:39], s60 offen offset:{(n & 3) * 1024} lds")
    e("s_branch SP_HELPER")


def sp_helper(e):
    e.label("SP_HELPER")
    e.vm = []
    e.nbar = 0
    e("v_mov_b32 v16, 0")
    stamp(e, 2)
    srd(e, 48, 28, WS_SIZE)
    srd(e, 72, 26, 0 if "noflag" in OPT else 256)
    e.wait_all()
    e.bar()
    stamp(e, 3)
    srd(e, 36, 22, 1024)
    e(f"s_mov_b32 m0, {SP_XB + 32768}")
    e("v_lshrrev_b32 v7, 2, v1")
    e("buffer_load_dwordx4 v2, s[36:39], 0 offen lds")
    e("v_and_b32 v8, 3, v1")
    e("v_lshlrev_b32 v8, 4, v8")
    e("v_lshl_add_u32 v9, v7, 10, v8")
    srd(e, 40, 6, 512 * 1024)
    e("s_lshl_b32 s60, s3, 17")
    e("s_lshl_b32 s62, s56, 6")
    e("s_add_u32 s60, s60, s62")
    e("s_lshl_b32 s61, s3, 13")
    for n in range(8):
        e(f"s_add_u32 m0, s61, {SP_WQ + n * 1024}")
        e("s_add_u32 s60, s60, 16384" if n else "s_nop 0")
        e("buffer_load_dwordx4 v9, s[40:43], s60 offen lds")
    e("s_lshl_b32 s60, s97, 9")
    e("s_lshl_b32 s61, s3, 7")
    e("s_add_u32 s60, s60, s61")
    e(f"s_add_u32 s60, s60, {WS_FL}")
    e("s_mov_b64 exec, 0xff")
    e("buffer_store_dword v16, v3, s[48:51], s60 offen sc1")
    e("s_mov_b64 exec, -1")
    for r in range(4):
        e(f"v_mov_b32 v{12+r}, -1")
    e("s_xor_b32 s63, s97, 1")
    e("s_lshl_b32 s63, s63, 16")
    e.wait_all()
    e.bar()
    cs(e, 4)
    e("s_cmp_lg_u32 s3, 3")
    e("s_cbranch_scc1 SPH_A")
    cnt_arrive(e, 0)
    e.label("SPH_A")
    e("s_lshl_b32 s60, s97, 16")
    e("s_lshl_b32 s61, s3, 14")
    e("s_add_u32 s60, s60, s61")
    e(f"s_add_u32 s60, s60, {WS_OF}")
    for n in range(16):
        if n % 4 == 0:
            e(f"s_add_u32 s61, s60, {n * 1024}")
        e(f"buffer_store_dwordx4 v[12:15], v2, s[48:51], s61 offen offset:{(n & 3) * 1024} sc1")
    e.bar()
    for u in range(2):
        e("s_lshl_b32 s62, s3, 1")
        e(f"s_add_u32 s62, s62, {u}")
        sp_xload(e, 63, SP_XB, 62)
    e.wait_all()
    e.bar()
    cs(e, 5)
    e("s_cmp_lg_u32 s3, 3")
    e("s_cbranch_scc1 SPH_C")
    cnt_arrive(e, 128)
    e.label("SPH_C")
    e("s_cmp_lg_u32 s3, 3")
    e("s_cbranch_scc1 SPH_B")
    cnt_spin(e, 0)
    e.label("SPH_B")
    e.wait_all()
    e.bar()
    e.bar()
    kv_piece(e, (0, 1, 2, 3))
    kv_piece(e, (4, 5, 6, 7))
    e("s_cmp_lg_u32 s3, 3")
    e("s_cbranch_scc1 SPH_D")
    cnt_spin(e, 128)
    e.label("SPH_D")
    e.wait_all()
    cs(e, 6)
    e.bar()
    cs(e, 7)
    e("s_branch DOWN")
    return e.nbar


def sp_compute(e):
    e.label("SP_COMPUTE")
    e.vm = []
    e.nbar = 0
    A = 64
    srd(e, 48, 28, WS_SIZE)
    srd(e, 52, 24, 2048 * 1024)
    e("v_mov_b32 v8, 0xdddd")
    stamp(e, 2)

    def xaddr(base):
        e("v_and_b32 v14, 31, v1")
        e("v_lshrrev_b32 v15, 5, v1")
        e("v_bfe_u32 v16, v1, 1, 3")
        e("v_xor_b32 v16, v16, v15")
        e("s_and_b32 s60, s30, 1")
        e("s_lshl_b32 s60, s60, 12")
        e(f"s_add_u32 s60, s60, {base}")
        e("v_lshlrev_b32 v17, 7, v14")
        e("v_add_u32 v17, s60, v17")
        for s in range(4):
            e(f"v_xor_b32 v18, {2*s}, v16")
            e(f"v_lshl_add_u32 v{10+s}, v18, 4, v17")
        e("v_bfe_u32 v16, v1, 2, 2")
        e("v_lshl_add_u32 v17, v15, 3, v16")
        e("v_and_b32 v18, 3, v1")
        e("v_lshlrev_b32 v18, 3, v18")
        for r in range(16):
            e(f"v_mov_b32 v{A+r}, 0")

    def chain(kind):
        lab = e.newlabel("CH")
        rs = {"K": 32, "V": 32, "Q": 64, "G": 2}[kind]
        if kind in "KV":
            e("v_lshl_add_u32 v14, v17, 5, v18")
            e(f"v_add_u32 v14, {SP_XB + (16384 if kind == 'V' else 0)}, v14")
        elif kind == "Q":
            e("v_lshl_add_u32 v14, v17, 6, v18")
            e("v_bfe_u32 v19, v1, 4, 1")
            e("v_lshl_add_u32 v14, v19, 5, v14")
            e(f"v_add_u32 v14, {SP_WQ}, v14")
        else:
            e("v_lshlrev_b32 v14, 4, v15")
            e(f"v_add_u32 v14, {SP_XB + 32768}, v14")
        def rd(s):
            e(f"ds_read_b128 {vr(24+4*s,4)}, v{10+s}")
            if kind == "G":
                e(f"ds_read_b128 {vr(40+4*s,4)}, v14 offset:{s*32}")
            else:
                for rho in range(2):
                    e(f"ds_read_b64_tr_b16 {vr(40+4*s+2*rho,2)}, v14 offset:{(16*s+4*rho)*rs}")
            e(f"v_add_u32 v{10+s}, 0x2000, v{10+s}")
            if s == 3:
                e(f"v_add_u32 v14, {64*rs}, v14")
        nrd = 2 if kind == "G" else 3
        for s in range(4):
            rd(s)
        e("s_mov_b32 s60, 8")
        e.label(lab)
        for s in range(4):
            e(f"s_waitcnt lgkmcnt({3 * nrd})")
            a, b = vr(40+4*s, 4), vr(24+4*s, 4)
            if kind == "V":
                a, b = b, a
            e(f"v_mfma_f32_32x32x16_bf16 {vr(A,16)}, {a}, {b}, {vr(A,16)}")
            rd(s)
        e("s_sub_u32 s60, s60, 1")
        e("s_cmp_lg_u32 s60, 0")
        e(f"s_cbranch_scc1 {lab}")
        e("s_waitcnt lgkmcnt(0)")

    xaddr(0)
    e("s_lshl_b32 s98, s97, 1")
    e("s_and_b32 s60, s30, 1")
    e("s_add_u32 s98, s98, s60")
    e.wait_all()
    e.bar()
    stamp(e, 3)
    e("s_lshr_b32 s99, s30, 1")
    e("s_cmp_eq_u32 s99, 1")
    e("s_cbranch_scc1 SPC_V")
    e("s_cmp_eq_u32 s99, 2")
    e("s_cbranch_scc1 SPC_G")
    e("s_cmp_eq_u32 s99, 3")
    e("s_cbranch_scc1 SPC_Q")
    chain("K")
    e(f"s_mov_b32 s60, {fbits(0.25 * LOG2E)}")
    e("v_and_b32 v14, 0x33, v1")
    e("v_bfe_u32 v15, v1, 2, 1")
    e("v_lshl_add_u32 v14, v15, 3, v14")
    e("v_bfe_u32 v15, v1, 3, 1")
    e("v_lshl_add_u32 v14, v15, 2, v14")
    e("v_lshlrev_b32 v14, 4, v14")
    e("s_nop 4")
    for r in range(8):
        e(f"v_mul_f32 v{A+r}, s60, v{A+r}")
    e(f"v_mul_f32 v18, v{A}, v{A}")
    for r in range(1, 8):
        e(f"v_fmac_f32 v18, v{A+r}, v{A+r}")
    for r in range(4):
        e(f"v_cvt_pk_bf16_f32 v{A+8+r}, v{A+2*r}, v{A+2*r+1}")
    e("s_lshl_b32 s60, s98, 11")
    e(f"s_add_u32 s60, s60, {WS_KV}")
    e(f"buffer_store_dwordx4 {vr(A+8,4)}, v14, s[48:51], s60 offen sc1")
    allreduce(e, "v_add_f32", 18, 19, 5, 6)
    allreduce(e, "v_max_f32", 18, 19, 0, 5)
    e("s_lshl_b32 s60, s98, 2")
    e(f"s_add_u32 s60, s60, {WS_KN}")
    e("s_mov_b64 exec, 1")
    e("buffer_store_dword v18, v3, s[48:51], s60 offen sc1")
    e("s_mov_b64 exec, -1")
    e("s_branch SPC_KV_DONE")
    e.label("SPC_V")
    chain("V")
    e("s_nop 9")
    for r in range(8):
        e(f"v_cvt_pk_bf16_f32 v{A+r}, v{A+2*r}, v{A+2*r+1}")
    e("s_lshl_b32 s60, s98, 11")
    e(f"s_add_u32 s60, s60, {WS_KV + 1024}")
    e("s_mov_b32 exec_lo, 0xffff")
    e("s_mov_b32 exec_hi, 0xffff")
    e(f"buffer_store_dwordx4 {vr(A,4)}, v2, s[48:51], s60 offen sc1")
    e(f"buffer_store_dwordx4 {vr(A+4,4)}, v2, s[48:51], s60 offen offset:256 sc1")
    e("s_mov_b64 exec, -1")
    e.label("SPC_KV_DONE")
    e("s_waitcnt vmcnt(0)")
    e("s_barrier")
    e("s_barrier")
    e("s_barrier")
    e("s_barrier")
    e("s_branch SPC_JOIN")
    e.label("SPC_G")
    e("s_barrier")
    chain("G")
    e("s_barrier")
    e("s_nop 9")
    e(f"v_mul_f32 v18, {fbits(-LOG2E)}, v{A}")
    e("v_exp_f32 v18, v18")
    e("s_lshl_b32 s60, s98, 7")
    e("v_add_f32 v18, 1.0, v18")
    e("v_rcp_f32 v20, v18")
    e(f"s_add_u32 s60, s60, {WS_G}")
    e("s_mov_b32 exec_hi, 0")
    e("buffer_store_dword v20, v3, s[48:51], s60 offen sc1")
    e("s_mov_b64 exec, -1")
    xaddr(SP_XB)
    e("s_xor_b32 s98, s98, 2")
    e("s_waitcnt vmcnt(0)")
    e("s_barrier")
    chain("Q")
    e("s_branch SPC_QW")
    e.label("SPC_Q")
    e.bar()
    chain("Q")
    e.bar()
    e.bar()
    e.label("SPC_QW")
    e.bar()
    e("s_and_b32 s60, s98, 3")
    e("s_nop 2")
    e("s_lshl_b32 s60, s60, 12")
    e(f"s_add_u32 s60, s60, {WD_BASE}")
    e("v_add_u32 v14, s60, v2")
    e("v_xor_b32 v15, 0x4000, v14")
    e("s_nop 3")
    for r in range(8):
        e(f"v_cvt_pk_bf16_f32 v{A+r}, v{A+2*r}, v{A+2*r+1}")
    e(f"ds_write_b128 v14, {vr(A,4)}")
    e(f"ds_write_b128 v15, {vr(A+4,4)}")
    e("s_waitcnt lgkmcnt(0)")
    e.label("SPC_JOIN")
    cs(e, 4); cs(e, 5)
    e(f"s_mov_b32 s60, {WS_KN}")
    e("buffer_load_dword v9, v3, s[48:51], s60 offen sc1")
    e("s_branch QJOIN")
    return e.nbar


def compute(e):
    e.label("COMPUTE")
    e("s_lshr_b32 s60, s30, 2")
    e("s_lshl_b32 s96, s31, 2")
    e("s_and_b32 s61, s30, 3")
    e("s_add_u32 s96, s96, s61")
    e("s_lshl_b32 s96, s96, 4")
    e("s_add_u32 s96, s96, s56")
    e("s_lshl_b32 s96, s96, 1")
    e("s_add_u32 s96, s96, s60")
    e("s_lshl_b32 s96, s96, 10")
    e("s_lshr_b32 s61, s30, 1")
    e("s_xor_b32 s61, s61, s60")
    e("s_and_b32 s93, s61, 1")
    e("s_mov_b32 s40, 0xffff")
    e("s_mov_b32 s41, 0xffff")
    tr_addr128(e, 161, 162, 16, 17)
    e("s_bfe_u32 s60, s30, 0x10001")
    e("s_lshl_b32 s60, s60, 14")
    e("s_lshr_b32 s61, s30, 2")
    e("s_lshl_b32 s61, s61, 16")
    e(f"s_add_u32 s60, s60, {WD_BASE}")
    e("s_sub_u32 s60, s60, s61")
    e("v_add_u32 v161, s60, v161")
    e("v_add_u32 v162, s60, v162")
    e("s_lshl_b32 s62, s30, 12")
    e(f"s_add_u32 s62, s62, {WD_BASE}")
    e("v_add_u32 v160, s62, v2")
    e("s_cmp_ge_u32 s56, 14")
    e("s_cbranch_scc1 SP_COMPUTE")
    e.vm = []
    e.nbar = 0
    if "nopf" not in OPT:
        e("s_getpc_b64 s[44:45]")
        e.label("PC_REF")
        e(f"s_sub_u32 s44, s44, PC_REF-{NAME}_kernel")
        e("s_subb_u32 s45, s45, 0")
        e("s_and_b32 s60, s94, 3")
        e("s_lshl_b32 s60, s60, 3")
        e("s_add_u32 s60, s60, s30")
        e("s_lshl_b32 s60, s60, 10")
        e(f"s_min_u32 s60, s60, CODE_END-{NAME}_kernel-1024")
        e("v_add_u32 v24, s60, v2")
        e("global_load_dwordx4 v[24:27], v24, s[44:45]")
    XA = 128
    e("v_and_b32 v14, 31, v1")
    e("v_lshrrev_b32 v15, 5, v1")
    e("v_bfe_u32 v16, v1, 1, 3")
    e("v_xor_b32 v16, v16, v15")
    e("s_lshr_b32 s60, s30, 2")
    e("s_lshl_b32 s60, s60, 13")
    e("s_and_b32 s61, s30, 1")
    e("s_lshl_b32 s61, s61, 12")
    e("s_add_u32 s60, s60, s61")
    e("v_lshlrev_b32 v17, 7, v14")
    e("v_add_u32 v17, s60, v17")
    for s in range(4):
        e(f"v_xor_b32 v18, {2*s}, v16")
        e(f"v_lshl_add_u32 v{XA+s}, v18, 4, v17")
        e(f"v_xor_b32 v{XA+4+s}, 0x1000, v{XA+s}")
        e(f"v_add_u32 v{XA+8+s}, {X_BASE[2]}, v{XA+s}")
        e(f"v_add_u32 v{XA+12+s}, {X_BASE[2]}, v{XA+4+s}")
    e("v_bfe_u32 v16, v1, 2, 2")
    e("v_lshl_add_u32 v17, v15, 3, v16")
    e("v_bfe_u32 v18, v1, 4, 1")
    e("v_and_b32 v19, 3, v1")
    e("v_lshlrev_b32 v4, 6, v17")
    e("v_lshl_add_u32 v4, v18, 5, v4")
    e("v_lshl_add_u32 v4, v19, 3, v4")
    e("v_bfe_u32 v19, v1, 1, 1")
    e("v_lshl_add_u32 v18, v18, 1, v19")
    e("s_and_b32 s60, s30, 3")
    e("s_lshl_b32 s60, s60, 2")
    e("v_add_u32 v18, s60, v18")
    e("v_lshlrev_b32 v19, 2, v16")
    e("v_xor_b32 v18, v18, v19")
    e("v_lshlrev_b32 v18, 4, v18")
    e("v_lshl_add_u32 v14, v17, 8, v18")
    e("v_and_b32 v19, 1, v1")
    e("v_lshl_add_u32 v14, v19, 3, v14")
    e(f"v_add_u32 v14, {W_BASE}, v14")
    e("v_add_u32 v15, 0x10000, v14")
    e("v_mov_b32 v8, 0xdddd")
    e("s_waitcnt lgkmcnt(0)")
    srd(e, 48, 28, WS_SIZE)
    srd(e, 52, 24, 2048 * 1024)
    e("s_waitcnt vmcnt(0)")
    stamp(e, 2)

    ACC = 64
    QACC = 144
    FR = [24, 44]

    def reads(kc, s, fb, q):
        st = stage(kc)
        f = FR[fb]
        L = []
        for t in range(2):
            if st < 2:
                L.append(f"ds_read_b128 {vr(f + 8 + 4*t, 4)}, v{XA+4*t+s} offset:{X_BASE[st]}")
            else:
                L.append(f"ds_read_b128 {vr(f + 8 + 4*t, 4)}, v{XA+8+4*t+s}")
        for m in range(2):
            for rho in range(2):
                off = st * 32768 + m * 16384 + (16 * s + 4 * rho) * 256
                a = 14
                if off >= 65536:
                    off -= 65536
                    a = 15
                L.append(f"ds_read_b64_tr_b16 {vr(f + 4*m + 2*rho, 2)}, v{a} offset:{off}")
        if q:
            for rho in range(2):
                L.append(f"ds_read_b64_tr_b16 {vr(f + 16 + 2*rho, 2)}, v4 offset:{QS_BASE + st * 4096 + (16 * s + 4 * rho) * 64}")
        return L

    def mfmas(fb, first, q):
        f = FR[fb]
        L = []
        if q:
            c = "0" if first else vr(QACC, 16)
            L.append(f"v_mfma_f32_32x32x16_bf16 {vr(QACC,16)}, {vr(f+16,4)}, {vr(f+8,4)}, {c}")
        for m in range(2):
            for t in range(2):
                d = ACC + 32 * m + 16 * t
                c = "0" if first else vr(d, 16)
                L.append(f"v_mfma_f32_32x32x16_bf16 {vr(d,16)}, {vr(f+4*m,4)}, {vr(f+8+4*t,4)}, {c}")
        return L

    def gemm(q):
        e.bar()
        stamp(e, 3)
        for l in reads(0, 0, 0, q):
            e(l)
        for kc in range(8):
            for s in range(4):
                fb = s & 1
                e("s_waitcnt lgkmcnt(0)")
                if s < 3:
                    rl = reads(kc, s + 1, fb ^ 1, q)
                elif kc < 7:
                    e.bar()
                    fs(e, 4 + kc)
                    rl = reads(kc + 1, 0, fb ^ 1, q)
                else:
                    rl = []
                    e.bar()
                ml = mfmas(fb, kc == 0 and s == 0, q)
                for i, m in enumerate(ml):
                    e(m)
                    for l in rl[2*i:2*i+2]:
                        e(l)
            if kc == 3:
                cs(e, 4)
        cs(e, 5)

    e("s_cmp_eq_u32 s93, 0")
    e("s_cbranch_scc1 GEMM_Q")
    gemm(False)
    e("s_branch GEMM_DONE")
    e.label("GEMM_Q")
    e.nbar = 0
    gemm(True)
    e("v_and_b32 v14, 0xffffbfff, v160")
    e("v_or_b32 v15, 0x4000, v160")
    e("s_nop 5")
    for r in range(8):
        e(f"v_cvt_pk_bf16_f32 v{QACC+r}, v{QACC+2*r}, v{QACC+2*r+1}")
    e(f"ds_write_b128 v14, {vr(QACC,4)}")
    e(f"ds_write_b128 v15, {vr(QACC+4,4)}")
    e("s_waitcnt lgkmcnt(0)")
    e.label("GEMM_DONE")
    e(f"s_mov_b32 s60, {WS_KN}")
    e("buffer_load_dword v9, v3, s[48:51], s60 offen sc1")
    nb_ffn = e.nbar
    e.label("QJOIN")
    e.nbar = 0
    Q = 16; IDX = 8; C = 24; O = 40; S = [56, 72]; KF = [88, 92]; VF = [144, 152]
    e.bar()
    e(f"ds_read_b128 {vr(Q,4)}, v160")
    if "allones" in OPT:
        for r in range(16):
            e(f"v_mov_b32 v{144+r}, 0x3f803f80")
    else:
        e("v_and_b32 v12, 27, v1")
        e("v_cmp_eq_u32 vcc, 16, v12")
        e("v_mov_b32 v12, 0x3f803f80")
        e("s_nop 0")
        e("v_cndmask_b32 v144, 0, v12, vcc")
        for r in range(1, 16):
            e(f"v_mov_b32 v{144+r}, v144")
    for r in range(16):
        e(f"v_mov_b32 v{O+r}, 0")
    e("v_mov_b32 v13, v2")
    e("v_mov_b32 v11, 0")
    e("s_waitcnt lgkmcnt(0)")
    for i in range(4):
        e(f"v_dot2c_f32_bf16 v11, v{Q+i}, v{Q+i}")
    HP = 128
    e("s_cmp_ge_u32 s56, 14")
    e("s_cbranch_scc1 EPI_DONE")
    e("s_and_b32 s61, s30, 1")
    e("s_lshl_b32 s61, s61, 11")
    e("v_add_u32 v7, s61, v160")
    e("v_xor_b32 v5, 0x800, v7")
    e(f"s_mov_b32 s64, {fbits(-LOG2E)}")
    e(f"s_mov_b32 s65, {fbits(-LOG2E)}")
    e("s_mov_b32 s66, 1.0")
    e("s_mov_b32 s67, 1.0")
    for t in range(2):
        G = ACC + 16 * t
        U = ACC + 32 + 16 * t
        for r in range(0, 16, 2):
            e(f"v_pk_mul_f32 {vr(G+r,2)}, {vr(G+r,2)}, s[64:65]")
        for r in range(16):
            e(f"v_exp_f32 v{G+r}, v{G+r}")
        for r in range(0, 16, 2):
            e(f"v_pk_add_f32 {vr(G+r,2)}, {vr(G+r,2)}, s[66:67]")
        for r in range(16):
            e(f"v_rcp_f32 v{G+r}, v{G+r}")
        for r in range(0, 16, 2):
            e(f"v_pk_mul_f32 {vr(G+r,2)}, {vr(G+r,2)}, {vr(U+r,2)}")
        for r in range(8):
            e(f"v_cvt_pk_bf16_f32 v{HP+8*t+r}, v{G+2*r}, v{G+2*r+1}")
        a = (7, 5)[t]
        e(f"ds_write_b128 v{a}, {vr(HP+8*t,4)}")
        e(f"ds_write_b128 v{a}, {vr(HP+8*t+4,4)} offset:1024")
    e.label("EPI_DONE")
    cs(e, 6)
    for r in range(8):
        e(f"v_mov_b32 v{S[1]+8+r}, 0")
    e.wait_all()
    allreduce(e, "v_max_f32", 9, 12, 0, 6)
    allreduce(e, "v_add_f32", 11, 12, 5, 6)
    e(f"v_mul_f32 v9, {fbits(1.04)}, v9")
    e("v_mul_f32 v11, v11, v9")
    e("v_sqrt_f32 v11, v11")
    e(f"s_mov_b32 s60, {fbits(SAFE_BOUND)}")
    e("v_cmp_nle_f32 vcc, v11, s60")
    e("s_waitcnt lgkmcnt(0)")
    cs(e, 7)
    e.bar()
    e("s_nop 4")
    e("s_cbranch_vccz ATT_GO")
    e("v_mov_b32 v11, 0xff800000")
    e("v_mov_b32 v12, v2")
    e("s_mov_b32 s60, 64")
    e.label("MAXLOOP")
    e(f"ds_read_b128 {vr(KF[0],4)}, v12")
    e("v_add_u32 v12, 0x800, v12")
    e("s_waitcnt lgkmcnt(0)")
    e(f"v_mfma_f32_32x32x16_bf16 {vr(S[0],16)}, {vr(KF[0],4)}, {vr(Q,4)}, 0")
    e("s_nop 15")
    for r in range(8):
        e(f"v_max3_f32 v11, v11, v{S[0]+2*r}, v{S[0]+2*r+1}")
    e("s_sub_u32 s60, s60, 1")
    e("s_cmp_lg_u32 s60, 0")
    e("s_cbranch_scc1 MAXLOOP")
    allreduce(e, "v_max_f32", 11, 12, 5, 6)
    e.label("ATT_GO")

    def laddr(t):
        return ("v13", t * 2048)
    def rdK(t, b):
        a, o = laddr(t)
        e(f"ds_read_b128 {vr(KF[b],4)}, {a} offset:{o}")
    def rdV(t, b):
        a, o = laddr(t)
        e("s_mov_b64 exec, s[40:41]")
        e(f"ds_read_b128 {vr(VF[b],4)}, {a} offset:{o+1024}")
        e(f"ds_read_b128 {vr(VF[b]+4,4)}, {a} offset:{o+1280}")
        e("s_mov_b64 exec, -1")
    def qk(b):
        e(f"v_mfma_f32_32x32x16_bf16 {vr(S[b],16)}, {vr(KF[b],4)}, {vr(Q,4)}, {vr(C,16)}")
    def sp(b, half):
        e(f"v_smfmac_f32_32x32x32_bf16 {vr(O,16)}, {vr(VF[b]+4*half,4)}, {vr(S[b]+8*half,8)}, v{IDX}")
    def ex(b, lo, hi):
        for r in range(lo, hi):
            e(f"v_exp_f32 v{S[b]+r}, v{S[b]+r}")

    rdK(0, 0)
    rdV(0, 0)
    rdK(1, 1)
    for r in range(16):
        e(f"v_sub_f32 v{C+r}, 0, v11")
    cs(e, 8)
    e("s_waitcnt lgkmcnt(3)")
    qk(0)
    e("s_nop 15")
    UN = int(os.environ.get("UN", "8"))
    e(f"s_mov_b32 s60, {64 // UN}")
    e.raw(".p2align 6")
    e.label("ATT_LOOP")
    for t in range(UN):
        b = t & 1
        ex(b, 0, 2)
        sp(b ^ 1, 1)
        ex(b, 2, 6)
        e("s_waitcnt lgkmcnt(0)")
        qk(b ^ 1)
        ex(b, 6, 8)
        rdK(t + 2, b)
        ex(b, 8, 9)
        rdV(t + 1, b ^ 1)
        ex(b, 9, 11)
        sp(b, 0)
        if t == UN - 1:
            e(f"v_add_u32 v13, {UN * 2048}, v13")
            e("s_sub_u32 s60, s60, 1")
            e("s_cmp_lg_u32 s60, 0")
        ex(b, 11, 16)
    e("s_cbranch_scc1 ATT_LOOP")
    e("s_waitcnt lgkmcnt(0)")
    e("s_nop 1")
    sp(1, 1)
    WOB = 56
    OB = 120
    AC2 = 24
    e("s_lshl_b32 s34, s76, 1")
    e("s_and_b32 s61, s30, 1")
    e("s_add_u32 s34, s34, s61")
    e("s_lshl_b32 s34, s34, 5")
    e("s_and_b32 s60, s30, 2")
    e("s_lshl_b32 s60, s60, 3")
    e("s_add_u32 s34, s34, s60")
    e("s_lshr_b32 s60, s30, 2")
    e("s_add_u32 s34, s34, s60")
    e("s_lshl_b32 s34, s34, 10")
    e(f"s_add_u32 s34, s34, {WS_OF}")
    e("s_add_u32 s35, s34, 4096")
    e("s_add_u32 s36, s34, 8192")
    e("s_add_u32 s37, s34, 12288")
    cs(e, 9)
    e(f"v_rcp_f32 v11, v{O+8}")
    e(f"s_add_u32 s62, s96, {WS_OF}")
    for r in range(8):
        e(f"v_mul_f32 v{O+r}, v{O+r}, v11")
    for r in range(4):
        e(f"v_cvt_pk_bf16_f32 v{164+r}, v{O+2*r}, v{O+2*r+1}")
    e("buffer_store_dwordx4 v[164:167], v2, s[48:51], s62 offen sc1")

    def oload(k0):
        for k in range(k0, 8):
            e(f"buffer_load_dwordx4 {vr(OB+4*k,4)}, v2, s[48:51], s{34+(k>>1)} offen offset:{(k&1)*2048} sc1")
    def wread():
        for k in range(8):
            for m in range(2):
                for rho in range(2):
                    e(f"ds_read_b64_tr_b16 {vr(WOB+8*k+4*m+2*rho,2)}, v{161+m} offset:{k*2048 + rho*1024}")
    def ocheck():
        e(f"v_max_u32 v11, v{OB}, v{OB+1}")
        for r in range(1, 16):
            e(f"v_max3_u32 v11, v11, v{OB+2*r}, v{OB+2*r+1}")
        e("v_cmp_eq_u32 vcc, -1, v11")
    def addrs():
        e("v_and_b32 v10, 31, v1")
        e("v_lshlrev_b32 v12, 2, v10")
        e("s_lshl_b32 s60, s76, 8")
        e("s_bfe_u32 s61, s30, 0x10001")
        e("s_lshl_b32 s61, s61, 7")
        e("s_add_u32 s60, s60, s61")
        e(f"s_add_u32 s60, s60, {WS_G}")
        e("buffer_load_dword v9, v12, s[48:51], s60 offen sc1")
        e("v_lshrrev_b32 v11, 5, v1")
        e("v_lshlrev_b32 v6, 4, v10")
        e("v_lshl_add_u32 v6, v11, 10, v6")
        e("s_lshl_b32 s60, s30, 11")
        e("v_add_u32 v6, s60, v6")
        e("v_add_u32 v5, 0x18000, v6")
        e("v_lshlrev_b32 v10, 10, v10")
        e("v_lshl_add_u32 v10, v11, 4, v10")
        e("s_lshr_b32 s60, s30, 1")
        e("s_lshl_b32 s60, s60, 14")
        e("s_and_b32 s61, s30, 1")
        e("s_lshl_b32 s61, s61, 12")
        e("s_add_u32 s60, s60, s61")
        e("s_add_u32 s60, s60, 0x18000")
        e("v_add_u32 v7, s60, v2")
        e("s_lshl_b32 s63, s76, 16")
        e("s_bfe_u32 s61, s30, 0x10001")
        e("s_lshl_b32 s61, s61, 15")
        e("s_add_u32 s63, s63, s61")
        e("s_lshl_b32 s61, s77, 7")
        e("s_add_u32 s63, s63, s61")
        e("s_lshr_b32 s61, s30, 2")
        e("s_lshl_b32 s61, s61, 6")
        e("s_add_u32 s63, s63, s61")
        e("s_and_b32 s61, s30, 1")
        e("s_lshl_b32 s61, s61, 5")
        e("s_add_u32 s63, s63, s61")
    e("s_cmp_ge_u32 s30, 4")
    e("s_cbranch_scc1 TAIL_ODD")
    addrs()
    e("s_waitcnt vmcnt(0)")
    spin(e, lambda: oload(0), ocheck, 16)
    e("s_barrier")
    wread()
    e("s_waitcnt lgkmcnt(0)")
    e("s_barrier")
    e("s_branch TAIL_JOIN")
    e.label("TAIL_ODD")
    e.bar()
    addrs()
    if "oearly" in OPT:
        oload(0)
    e.bar()
    if "oearly" not in OPT:
        oload(0)
    wread()
    e("s_waitcnt lgkmcnt(0)")
    e.label("TAIL_JOIN")
    f2(e, 4)
    for k in range(8):
        e.label(f"OCHK{k}")
        e(f"s_waitcnt vmcnt({7-k})")
        e(f"v_max_u32 v11, v{OB+4*k}, v{OB+4*k+1}")
        e(f"v_max3_u32 v11, v11, v{OB+4*k+2}, v{OB+4*k+3}")
        e("v_cmp_eq_u32 vcc, -1, v11")
        e("s_nop 4")
        e(f"s_cbranch_vccnz ORETRY{k}")
        e.label(f"OGO{k}")
        if k == 7:
            cs(e, 10)
        for m in range(2):
            d = AC2 + 16 * m
            c = "0" if k == 0 else vr(d, 16)
            e(f"v_mfma_f32_32x32x16_bf16 {vr(d,16)}, {vr(WOB+8*k+4*m,4)}, {vr(OB+4*k,4)}, {c}")
    e("v_sub_f32 v8, 1.0, v9")
    e("s_nop 9")
    for m in range(2):
        for jq in range(4):
            e(f"ds_write_b128 v7, {vr(AC2+16*m+4*jq,4)} offset:{m*8192 + jq*1024}")
    e("s_waitcnt lgkmcnt(0)")
    f2(e, 5)
    e.bar()
    f2(e, 6); f2(e, 7)
    R = 56
    for p in range(8):
        a = 6 if p < 4 else 5
        for hh in range(2):
            e(f"ds_read_b128 {vr(R+8*p+4*hh,4)}, v{a} offset:{(p&3)*16384 + hh*512}")
    for p in (1, 2, 3, 5, 6, 7):
        e(f"s_waitcnt lgkmcnt({2*(7-p)})")
        base = R if p < 4 else R + 32
        for r in range(0, 8, 2):
            e(f"v_pk_add_f32 {vr(base+r,2)}, {vr(base+r,2)}, {vr(R+8*p+r,2)}")
        if p == 3:
            for r in range(8):
                e(f"v_mul_f32 v{R+r}, v{R+r}, v8")
    for r in range(8):
        e(f"v_fmac_f32 v{R+r}, v{R+32+r}, v9")
    for r in range(4):
        e(f"v_cvt_pk_bf16_f32 v{R+8+r}, v{R+2*r}, v{R+2*r+1}")
    e(f"buffer_store_dwordx4 {vr(R+8,4)}, v10, s[52:55], s63 offen")
    stamp(e, 11)
    if STAMP:
        e("s_waitcnt vmcnt(0)")
    stamp(e, 12); stamp(e, 13, True)
    stamp_flush(e, 14)
    e.label("K_END")
    e("s_endpgm")
    for k in range(8):
        e.label(f"ORETRY{k}")
        spin_guard(e, f"OGO{k}")
        e("s_waitcnt vmcnt(0)")
        e(f"s_sleep {int(os.environ.get('OSL', '1'))}")
        oload(k)
        e(f"s_branch OCHK{k}")
    return nb_ffn, e.nbar


def kd(name, vgpr, sgpr=102):
    acc = (vgpr + 3) // 4 * 4
    return f""".p2align 6
.amdhsa_kernel {name}
  .amdhsa_next_free_vgpr {vgpr}
  .amdhsa_next_free_sgpr {sgpr}
  .amdhsa_accum_offset {acc}
  .amdhsa_group_segment_fixed_size 0
  .amdhsa_kernarg_size 104
  .amdhsa_user_sgpr_count 2
  .amdhsa_user_sgpr_kernarg_segment_ptr 1
  .amdhsa_system_sgpr_workgroup_id_x 1
.end_amdhsa_kernel
"""


def main(out):
    ref = open(f"cdna_kernels/{NAME}.s.ref").read().split("\n")
    hdr = [l for l in ref if l.startswith(";") and "@launch" not in l and "Override" not in l and "grid=ceil" not in l]
    e = Asm()
    prologue(e)
    sp_start(e)
    n1 = loader(e)
    n2 = service(e)
    n3 = down(e)
    nf, nc = compute(e)
    n5 = sp_helper(e)
    n6 = sp_compute(e)
    e.label("CODE_END")
    assert n1 == n2 and n1 + n3 == nf + nc and n5 + n3 == n6 + nc, (n1, n2, n3, nf, nc, n5, n6)
    s = "\n".join(hdr) + "\n"
    s += f"; @launch grid=(256,1,1) block=(768,1,1) lds={LDS_TOTAL}\n"
    s += '.amdgcn_target "amdgcn-amd-amdhsa--gfx950"\n.text\n'
    s += e.text()
    s += '.section .rodata,"a"\n'
    s += kd(NAME + "_kernel", 168)
    open(out, "w").write(s)


if __name__ == "__main__":
    main(sys.argv[1] if len(sys.argv) > 1 else f"cdna_kernels/{NAME}.s")
```

```python
import sys, os, struct

NAME = "gated_mix__grouped_kv_mqa__glu_gated_glu__prompt"

WS_OF = 2 << 20
WS_KV = 4 << 20
WS_KN = WS_KV + 131072
WS_G = WS_KN + 4096
WS_FL = WS_G + 8192
WS_HF = 8 << 20
WS_ST = 15 << 20
WS_SIZE = 16 << 20
OOB = 0x7f000000

LOG2E = 1.4426950408889634
STAMP = os.environ.get("STAMP", "0") == "1"
OPT = set(os.environ.get("OPT", "").split(","))
FINE = "fine" in OPT
FINE2 = "fine2" in OPT


def fbits(x):
    return "0x%08x" % struct.unpack("<I", struct.pack("<f", x))[0]


class Asm:
    def __init__(self):
        self.lines = []
        self.vm = []
        self.uid = 0
        self.nbar = 0
    def __call__(self, s):
        self.lines.append("    " + s)
    def label(self, s):
        self.lines.append(s + ":")
    def raw(self, s):
        self.lines.append(s)
    def vmem(self, s, tag):
        self(s)
        self.vm.append(tag)
    def wait_vm(self, tag):
        idxs = [i for i, t in enumerate(self.vm) if t == tag]
        if not idxs:
            return
        idx = max(idxs)
        n = len(self.vm) - 1 - idx
        assert n <= 63
        self(f"s_waitcnt vmcnt({n})")
        self.vm = self.vm[idx + 1:]
    def wait_all(self):
        self("s_waitcnt vmcnt(0)")
        self.vm = []
    def bar(self):
        self("s_barrier")
        self.nbar += 1
    def newlabel(self, p):
        self.uid += 1
        return f"{p}_{self.uid}"
    def text(self):
        return "\n".join(self.lines) + "\n"


def stamp(e, i, real=False):
    if not STAMP:
        return
    if "amp" in OPT:
        if i not in (1, int(os.environ["AMP"])):
            return
        real = True
    if "rt" in OPT:
        real = True
    e(("s_memrealtime" if real else "s_memtime") + " s[78:79]")
    e("s_waitcnt lgkmcnt(0)")
    e(f"s_mov_b32 s{80+i}, s78")


def cs(e, i):
    if not FINE and not (FINE2 and i in (4, 5, 6, 7)):
        stamp(e, i)


def f2(e, i):
    if FINE2:
        stamp(e, i)


def fs(e, i):
    if FINE:
        stamp(e, i)


def stamp_flush(e, n):
    if not STAMP:
        return
    if "amp" in OPT:
        lab, lp = e.newlabel("AMPS"), e.newlabel("AMPL")
        i = int(os.environ["AMP"])
        e(f"s_cmp_lg_u32 s30, {int(os.environ.get('DBGW', '4'))}")
        e(f"s_cbranch_scc1 {lab}")
        e(("s_cmp_lt_u32" if "dbgsp" in OPT else "s_cmp_ge_u32") + " s56, 14")
        e(f"s_cbranch_scc1 {lab}")
        e(f"s_sub_u32 s60, s{80+i}, s81")
        e("s_mul_i32 s60, s60, 10")
        e("s_memrealtime s[62:63]")
        e("s_waitcnt lgkmcnt(0)")
        e.label(lp)
        e("s_memrealtime s[78:79]")
        e("s_waitcnt lgkmcnt(0)")
        e("s_sub_u32 s61, s78, s62")
        e("s_cmp_lt_u32 s61, s60")
        e(f"s_cbranch_scc1 {lp}")
        e.label(lab)
        return
    if "dbg" in OPT:
        lab = e.newlabel("DBGS")
        lo = int(os.environ.get("DBGW", "4"))
        e(f"s_sub_u32 s78, s30, {lo}")
        e("s_cmp_ge_u32 s78, 4")
        e(f"s_cbranch_scc1 {lab}")
        e(("s_cmp_lt_u32" if "dbgsp" in OPT else "s_cmp_ge_u32") + " s56, 14")
        e(f"s_cbranch_scc1 {lab}")
        srd(e, 72, 26, 256)
        e("v_mov_b32 v0, 0")
        e("s_mov_b64 exec, 1")
        for i in range(2, 13):
            e(f"s_sub_u32 s78, s{80+i}, s81")
            e("v_mov_b32 v1, s78")
            e(f"buffer_atomic_umax v1, v0, s[72:75], 0 offen offset:{4*i}")
        e("s_sub_u32 s78, s93, s80")
        e("v_mov_b32 v1, s78")
        e(f"buffer_atomic_umax v1, v0, s[72:75], 0 offen offset:52")
        e("s_mov_b64 exec, -1")
        e.label(lab)
        return
    e("s_lshl_b32 s78, s2, 4")
    e("s_add_u32 s78, s78, s30")
    e("s_lshl_b32 s78, s78, 6")
    e(f"s_add_u32 s78, s78, {WS_ST}")
    e("v_mov_b32 v0, 0")
    e("s_mov_b64 exec, 1")
    for i in range(n):
        e(f"v_mov_b32 v1, s{80+i}")
        e(f"buffer_store_dword v1, v0, s[48:51], s78 offen offset:{4*i}")
    e("s_mov_b64 exec, -1")


def vr(a, n=1):
    return f"v{a}" if n == 1 else f"v[{a}:{a+n-1}]"


def srd(e, d, base, size):
    e(f"s_mov_b32 s{d}, s{base}")
    e(f"s_mov_b32 s{d+1}, s{base+1}")
    e(f"s_mov_b32 s{d+2}, {size}")
    e(f"s_mov_b32 s{d+3}, 0x00020000")


def allreduce(e, op, x, t, lo=0, hi=6):
    dpp = ["quad_perm:[1,0,3,2]", "quad_perm:[2,3,0,1]", "row_half_mirror", "row_mirror"]
    for b in range(lo, min(hi, 4)):
        e("s_nop 1")
        e(f"{op}_dpp v{x}, v{x}, v{x} {dpp[b]} row_mask:0xf bank_mask:0xf")
    for b, ins in ((4, "v_permlane16_swap_b32"), (5, "v_permlane32_swap_b32")):
        if lo <= b < hi:
            e(f"v_mov_b32 v{t}, v{x}")
            e("s_nop 1")
            e(f"{ins} v{x}, v{t}")
            e("s_nop 1")
            e(f"{op} v{x}, v{x}, v{t}")


X_ST = 16384
W_BASE = 3 * X_ST
QS_BASE = 32768
X_BASE = [0, 16384, 147456]
LDS_TOTAL = 163840
def stage(kc):
    return (kc + 1) % 3
SAFE_BOUND = 48.0
WD_BASE = 131072
NBW = 4


def spin_guard(e, done):
    e("s_cmp_eq_u32 s100, 0")
    e(f"s_cbranch_scc1 {done}")
    e("s_sub_u32 s100, s100, 1")


def spin(e, load, check, sleep, preloaded=False):
    lo, chk, done = e.newlabel("SPIN"), e.newlabel("SPINC"), e.newlabel("SPIND")
    if preloaded:
        e(f"s_branch {chk}")
    e.label(lo)
    load()
    e.label(chk)
    e.wait_all()
    check()
    e("s_nop 4")
    e(f"s_cbranch_vccz {done}")
    spin_guard(e, done)
    e(f"s_sleep {sleep}")
    e(f"s_branch {lo}")
    e.label(done)


def tr_addr128(e, d0, d1, t0, t1):
    e(f"v_bfe_u32 v{t0}, v1, 2, 2")
    e(f"v_lshrrev_b32 v{t1}, 5, v1")
    e(f"v_lshl_add_u32 v{d0}, v{t1}, 2, v{t0}")
    e(f"v_lshlrev_b32 v{d0}, 7, v{d0}")
    e(f"v_bfe_u32 v{t1}, v1, 4, 1")
    e(f"v_lshl_add_u32 v{d0}, v{t1}, 5, v{d0}")
    e(f"v_and_b32 v{t1}, 3, v1")
    e(f"v_lshl_add_u32 v{d0}, v{t1}, 3, v{d0}")
    e(f"v_bfe_u32 v{t1}, v1, 3, 1")
    e(f"v_lshlrev_b32 v{t1}, 6, v{t1}")
    e(f"v_add_u32 v{d0}, v{d0}, v{t1}")
    e(f"v_xor_b32 v{d1}, 64, v{d0}")


def dma_voff128(e, d, t0, t1):
    e(f"v_lshrrev_b32 v{t0}, 3, v1")
    e(f"v_bfe_u32 v{t1}, v1, 4, 1")
    e(f"v_lshlrev_b32 v{t1}, 2, v{t1}")
    e(f"v_and_b32 v{d}, 7, v1")
    e(f"v_xor_b32 v{d}, v{d}, v{t1}")
    e(f"v_lshlrev_b32 v{d}, 4, v{d}")
    e(f"v_lshl_add_u32 v{d}, v{t0}, 10, v{d}")


def prologue(e):
    n = NAME + "_kernel"
    e.raw(f".globl {n}\n.p2align 8\n.type {n},@function\n{n}:")
    e("s_cmp_ge_u32 s2, 256")
    e("s_cbranch_scc1 K_END")
    stamp(e, 0, True); stamp(e, 1)
    e("s_load_dwordx16 s[4:19], s[0:1], 0")
    e("s_load_dwordx8 s[20:27], s[0:1], 64")
    e("s_load_dwordx2 s[28:29], s[0:1], 96")
    e("s_mov_b32 s100, %d" % (0 if "nospin" in OPT else 0x20000))
    e("v_lshrrev_b32 v2, 6, v0")
    e("v_and_b32 v1, 63, v0")
    e("v_readfirstlane_b32 s30, v2")
    e("v_lshlrev_b32 v2, 4, v1")
    e("v_lshlrev_b32 v3, 2, v1")
    e("v_lshrrev_b32 v6, 4, v1")
    e("s_and_b32 s57, s2, 7")
    e("s_lshr_b32 s59, s2, 3")
    e("s_and_b32 s94, s59, 7")
    e("s_lshr_b32 s95, s59, 3")
    e("s_and_b32 s31, s57, 1")
    e("s_lshl_b32 s31, s31, 3")
    e("s_add_u32 s31, s31, s94")
    e("s_lshr_b32 s56, s57, 1")
    e("s_xor_b32 s60, s95, 3")
    e("s_lshl_b32 s60, s60, 2")
    e("s_add_u32 s56, s56, s60")
    if "nospread" not in OPT:
        e("s_and_b32 s60, s59, 25")
        e("s_cmp_eq_u32 s60, 1")
        e("s_cselect_b32 s60, 2, 0")
        e("s_xor_b32 s56, s56, s60")
    e("s_and_b32 s76, s57, 3")
    e("s_lshl_b32 s76, s76, 3")
    e("s_add_u32 s76, s76, s94")
    e("s_lshr_b32 s77, s57, 2")
    e("s_lshl_b32 s77, s77, 2")
    e("s_add_u32 s77, s77, s95")
    e("s_sub_u32 s3, s30, 8")
    rot = os.environ.get("ROT", "4")
    e("s_lshl_b32 s58, s95, 1")
    e("s_add_u32 s58, s58, s94")
    if rot == "4":
        e("s_and_b32 s58, s58, 6")
    elif rot == "2":
        e("s_add_u32 s58, s94, s95")
        e("s_and_b32 s58, s58, 1")
        e("s_lshl_b32 s58, s58, 2")
    elif rot == "1":
        e("s_mov_b32 s58, 0")
    e("s_cmp_ge_u32 s56, 14")
    e("s_cbranch_scc1 SP_START")
    e("s_cmp_lt_u32 s30, 8")
    e("s_cbranch_scc1 COMPUTE")
    e("s_cmp_eq_u32 s3, 3")
    e("s_cbranch_scc1 SERVICE")
    e("s_branch LOADER")


def x_dma_voff(e):
    e("v_and_b32 v8, 7, v1")
    e("v_xor_b32 v7, v6, v8")
    e("v_lshrrev_b32 v8, 3, v1")
    e("v_lshlrev_b32 v8, 10, v8")
    e("v_lshl_add_u32 v4, v7, 4, v8")
    e("v_xor_b32 v5, 64, v4")


def kv_piece(e, tab):
    e(f"s_mov_b32 s59, {sum(t << (8 * i) for i, t in enumerate(tab)):#x}")
    e("s_lshl_b32 s62, s3, 3")
    e("s_lshr_b32 s59, s59, s62")
    e("s_and_b32 s59, s59, 15")
    e("s_add_u32 s62, s59, s94")
    e("s_and_b32 s62, s62, 7")
    e("s_lshl_b32 s62, s62, 14")
    e(f"s_add_u32 s62, s62, {WS_KV}")
    e("s_lshl_b32 s59, s59, 14")
    for n in range(16):
        if n % 4 == 0:
            e(f"s_add_u32 m0, s59, {n * 1024}")
            e(f"s_add_u32 s64, s62, {n * 1024}")
        e.vmem(f"buffer_load_dwordx4 v2, s[48:51], s64 offen offset:{(n & 3) * 1024} sc1 lds", "kvl")


def cnt_spin(e, which):
    e("v_mov_b32 v17, 0")
    spin(e, lambda: e(f"buffer_load_dword v20, v17, s[72:75], 0 offen offset:{128 + 64 * which} sc1"),
         lambda: e("v_cmp_eq_u32 vcc, 0, v20"), 4)


def cnt_arrive(e, which):
    lab = e.newlabel("ARR")
    e("v_mov_b32 v21, 1")
    e("v_mov_b32 v17, 0")
    e("s_mov_b64 exec, 1")
    e(f"buffer_atomic_add v21, v17, s[72:75], 0 offen offset:{64 * which} sc0 sc1")
    e("s_waitcnt vmcnt(0)")
    e("v_readfirstlane_b32 s60, v21")
    e("s_nop 3")
    e("s_cmp_lt_u32 s60, 31")
    e(f"s_cbranch_scc1 {lab}")
    e(f"buffer_store_dword v21, v17, s[72:75], 0 offen offset:{128 + 64 * which} sc1")
    e.label(lab)
    e("s_mov_b64 exec, -1")


def loader(e):
    e.label("LOADER")
    e.vm = []
    e.nbar = 0
    e("s_lshl_b32 s63, s56, 8")
    e("v_mul_u32_u24 v8, 3584, v6")
    e("v_lshlrev_b32 v7, 1, v6")
    e("v_and_b32 v10, 15, v1")
    e("v_xor_b32 v7, v7, v10")
    e("v_lshl_add_u32 v4, v7, 4, v8")
    e("v_mov_b32 v5, v4")
    e("v_xor_b32 v7, 8, v7")
    e("v_lshl_add_u32 v9, v7, 4, v8")
    e("v_mov_b32 v10, v9")
    e(f"s_mov_b32 s65, {4 * 3584}")
    e(f"s_mov_b32 s66, {64 * 3584}")
    e("s_lshl_b32 s67, s3, 14")
    e(f"s_add_u32 s67, s67, {W_BASE - 16384}")
    e("s_add_u32 s69, s67, 32768")
    e("s_add_u32 s70, s69, 32768")
    e("s_mov_b32 s34, %d" % (512 * 3584))
    e("s_cmp_lg_u32 s3, 0")
    e("s_cbranch_scc1 LD_W")
    x_dma_voff(e)
    e("v_mov_b32 v9, v4")
    e("v_mov_b32 v10, v5")
    e("s_lshl_b32 s63, s31, 17")
    e("s_mov_b32 s65, 8192")
    e("s_mov_b32 s66, 128")
    e("s_mov_b32 s67, 0")
    e(f"s_mov_b32 s69, {X_BASE[1]}")
    e(f"s_mov_b32 s70, {X_BASE[2]}")
    e("s_mov_b32 s34, %d" % (2048 * 1024))
    e.label("LD_W")
    e("s_mov_b32 s35, 0x00020000")
    e("s_waitcnt lgkmcnt(0)")
    stamp(e, 2)
    e("s_cmp_eq_u32 s3, 1")
    e("s_cselect_b32 s32, s16, s18")
    e("s_cselect_b32 s33, s17, s19")
    e("s_cmp_eq_u32 s3, 0")
    e("s_cselect_b32 s32, s4, s32")
    e("s_cselect_b32 s33, s5, s33")

    def dma(kc, n0=0, n1=16):
        sb = (67, 69, 70)[stage(kc)]
        so = 60 + (kc & 1)
        if n0 == 0:
            e(f"s_add_u32 s59, s58, {kc}")
            e("s_and_b32 s59, s59, 7")
            e(f"s_mul_i32 s{so}, s66, s59")
            e(f"s_add_u32 s{so}, s{so}, s63")
        for n in range(n0, n1):
            e(f"s_add_u32 m0, s{sb}, {n * 1024}")
            if n > 0:
                e(f"s_add_u32 s{so}, s{so}, s65")
            else:
                e("s_nop 0")
            e.vmem(f"buffer_load_dwordx4 v{(4, 5, 9, 10)[n & 3]}, s[32:35], s{so} offen lds", f"c{kc}")

    LA = int(os.environ.get("LA", "11"))
    dma(0)
    dma(1, 0, LA)
    srd(e, 48, 28, WS_SIZE)
    e.wait_vm("c0")
    e.bar()
    stamp(e, 3)
    for kc in range(7):
        dma(kc + 1, LA, 16)
        if kc + 2 < 8:
            dma(kc + 2, 0, LA)
        if kc == 6:
            kv_piece(e, (0, 3, 4))
        e.wait_vm(f"c{kc+1}")
        fs(e, 4 + kc)
        e.bar()
        if kc == 3:
            cs(e, 4)
    kv_piece(e, (1, 5, 6))
    e.bar()
    cs(e, 5)
    e("s_cmp_eq_u32 s3, 2")
    e("s_cbranch_scc1 KVP_SKIP")
    kv_piece(e, (7, 2, 2))
    e.label("KVP_SKIP")
    e.wait_all()
    cs(e, 6)
    e.bar()
    cs(e, 7)
    e("s_branch DOWN")
    return e.nbar


def wq_voff(e):
    e("v_lshrrev_b32 v7, 2, v1")
    e("v_and_b32 v8, 3, v1")
    e("v_lshlrev_b32 v8, 4, v8")
    e("v_lshl_add_u32 v4, v7, 10, v8")
    e("v_and_b32 v7, 32, v1")
    e("v_xor_b32 v4, v4, v7")


def service(e):
    e.label("SERVICE")
    e.vm = []
    e.nbar = 0
    wq_voff(e)
    e("s_lshl_b32 s63, s56, 6")
    e("s_waitcnt lgkmcnt(0)")
    stamp(e, 2)
    srd(e, 32, 6, 512 * 1024)

    def dma(kc):
        e(f"s_add_u32 s59, s58, {kc}")
        e("s_and_b32 s59, s59, 7")
        e("s_lshl_b32 s60, s59, 16")
        e("s_add_u32 s60, s60, s63")
        for n in range(4):
            e(f"s_mov_b32 m0, {QS_BASE + stage(kc) * 4096 + n * 1024}")
            e("s_add_u32 s60, s60, 16384" if n else "s_nop 0")
            e.vmem("buffer_load_dwordx4 v4, s[32:35], s60 offen lds", f"c{kc}")
    dma(0)
    dma(1)
    srd(e, 48, 28, WS_SIZE)
    srd(e, 72, 26, 0 if "noflag" in OPT else 256)
    e.wait_vm("c0")
    e.bar()
    stamp(e, 3)
    for kc in range(7):
        if kc + 2 < 8:
            dma(kc + 2)
        if kc == 5:
            cnt_spin(e, 0)
        e.wait_vm(f"c{kc+1}")
        fs(e, 4 + kc)
        e.bar()
        if kc == 3:
            cs(e, 4)
    e.bar()
    cs(e, 5)
    cnt_spin(e, 1)
    cs(e, 6)
    e.bar()
    cs(e, 7)
    return e.nbar


def down(e):
    e.label("DOWN")
    e.vm = []
    e.nbar = 0
    srd(e, 44, 20, 1792 * 1024)
    e("s_mul_i32 s32, s76, 224")
    e("s_mul_i32 s60, s3, 28")
    e("s_add_u32 s32, s32, s60")
    e("s_lshl_b32 s32, s32, 10")
    e(f"s_add_u32 s32, s32, {WS_HF}")
    e(f"s_add_u32 s33, s32, {112*1024}")
    e("s_lshl_b32 s36, s60, 14")
    e("s_lshl_b32 s61, s77, 7")
    e("s_add_u32 s36, s36, s61")
    e(f"s_mul_i32 s37, s3, {NBW * 2048}")
    e(f"s_add_u32 s37, s37, {WD_BASE}")
    e("s_setprio 3")
    dma_voff128(e, 4, 7, 8)
    tr_addr128(e, 9, 10, 7, 8)
    e("v_add_u32 v9, s37, v9")
    e("v_add_u32 v10, s37, v10")
    e("s_lshl_b32 s62, s76, 9")
    e("s_lshl_b32 s60, s3, 7")
    e("s_add_u32 s62, s62, s60")
    e(f"s_add_u32 s62, s62, {WS_FL}")
    DAC = 24
    WB = 88
    HB = 104
    WE = 136
    srd(e, 40, 12, 512 * 1024)
    e("s_lshl_b32 s38, s3, 17")
    e("s_add_u32 s38, s38, s61")
    e("s_lshl_b32 s39, s95, 1")
    e("s_add_u32 s39, s39, s94")
    e("s_cmp_ge_u32 s39, 7")
    e("s_cselect_b32 s60, 7, 0")
    e("s_sub_u32 s39, s39, s60")
    if "nodrot" in OPT:
        e("s_mov_b32 s39, 0")

    def group(reg_w, reg_h):
        if reg_w:
            e("s_lshl_b32 s67, s39, 16")
            e("s_add_u32 s67, s67, s36")
        if reg_h:
            e("s_lshl_b32 s60, s39, 12")
            e("s_add_u32 s68, s60, s32")
            e("s_add_u32 s69, s60, s33")
            e("s_add_u32 s39, s39, 1")
            e("s_cmp_eq_u32 s39, 7")
            e("s_cselect_b32 s39, 0, s39")
    def wload(ks):
        for u in range(2):
            e(f"s_add_u32 m0, s37, {(ks % NBW) * 2048 + u * 1024}")
            e(f"s_add_u32 s60, s67, {(ks & 3) * 16384 + u * 8192}")
            e.vmem("buffer_load_dwordx4 v4, s[44:47], s60 offen lds", f"w{ks}")
    def woload(j, par, tag):
        for u in range(2):
            e(f"s_add_u32 m0, s37, {j * 2048 + u * 1024}")
            e(f"s_add_u32 s60, s38, {(2 * j + par) * 16384 + u * 8192}")
            e.vmem("buffer_load_dwordx4 v4, s[40:43], s60 offen lds", tag)
    def hload(ks):
        f = HB + 8 * (ks & 3)
        for t in range(2):
            e.vmem(f"buffer_load_dwordx4 {vr(f+4*t,4)}, v2, s[48:51], s{68+t} offen offset:{(ks & 3) * 1024} sc1", f"h{ks}")
    def wread(f, slot):
        for m in range(2):
            for rho in range(2):
                e(f"ds_read_b64_tr_b16 {vr(f+4*m+2*rho,2)}, v{9+m} offset:{slot * 2048 + rho * 1024}")

    e("s_cmp_ge_u32 s56, 14")
    e("s_cbranch_scc1 H_SKIP")
    e("v_add_u32 v7, s37, v2")
    for n in range(8):
        e(f"ds_read_b128 {vr(HB+4*n,4)}, v7 offset:{n*1024}")
    e("s_lshl_b32 s64, s31, 2")
    e("s_and_b32 s60, s3, 2")
    e("s_add_u32 s64, s64, s60")
    e("s_mul_i32 s64, s64, 112")
    e("s_lshl_b32 s60, s56, 1")
    e("s_and_b32 s61, s3, 1")
    e("s_add_u32 s66, s60, s61")
    e("s_lshl_b32 s60, s66, 2")
    e("s_add_u32 s64, s64, s60")
    e("s_lshl_b32 s64, s64, 10")
    e(f"s_add_u32 s64, s64, {WS_HF}")
    e(f"s_add_u32 s65, s64, {112*1024}")
    e("s_mul_i32 s60, s66, 37")
    e("s_lshr_b32 s60, s60, 8")
    e("s_mul_i32 s61, s60, 25")
    e("s_add_u32 s66, s66, s61")
    e("s_lshl_b32 s66, s66, 2")
    e("s_lshl_b32 s60, s31, 10")
    e("s_add_u32 s66, s66, s60")
    e("s_and_b32 s60, s3, 2")
    e("s_lshl_b32 s60, s60, 8")
    e("s_add_u32 s66, s66, s60")
    e(f"s_add_u32 s66, s66, {WS_FL}")
    e("s_waitcnt lgkmcnt(0)")
    for n in range(8):
        u, t, k = n >> 2, (n >> 1) & 1, n & 1
        e(f"buffer_store_dwordx4 {vr(HB+4*n,4)}, v2, s[48:51], s{64+t} offen offset:{(2*u+k)*1024} sc1")
        HT = int(os.environ.get("HT", "63"))
        if HT < 63:
            e(f"s_waitcnt vmcnt({HT})")
    f2(e, 4)
    e("v_mov_b32 v12, 1")
    e("v_mov_b32 v11, 0")
    e("s_waitcnt vmcnt(0)")
    f2(e, 5)
    e("s_mov_b64 exec, 1")
    e("buffer_store_dword v12, v11, s[48:51], s66 offen sc1")
    e("s_mov_b64 exec, -1")
    e.label("H_SKIP")
    f2(e, 6); f2(e, 7)
    for j in range(4):
        woload(j, 0, "we")
    e("v_and_b32 v7, 31, v1")
    e("v_lshlrev_b32 v7, 2, v7")
    e("s_lshl_b32 s60, s76, 8")
    e(f"s_add_u32 s60, s60, {WS_G}")
    e("buffer_load_dword v14, v7, s[48:51], s60 offen sc1")
    e("buffer_load_dword v16, v7, s[48:51], s60 offen offset:128 sc1")
    e.wait_all()
    for j in range(4):
        wread(WE + 8 * j, j)
    e("v_sub_f32 v14, 1.0, v14")
    e("v_sub_f32 v16, 1.0, v16")
    e("v_mov_b32 v15, v14")
    e("v_mov_b32 v17, v16")
    e("s_waitcnt lgkmcnt(0)")
    group(True, False)
    for ks in range(NBW):
        wload(ks)

    def fl_ld():
        e("s_mov_b64 exec, 0x7f")
        e("buffer_load_dword v20, v3, s[48:51], s62 offen sc1")
        e("s_mov_b64 exec, -1")
    def fl_ck():
        e("s_mov_b64 exec, 0x7f")
        e("v_cmp_ne_u32 vcc, 1, v20")
        e("s_mov_b64 exec, -1")
    if "slp" in OPT:
        e("s_sleep 100")
    spin(e, fl_ld, fl_ck, 16)
    e("s_setprio 0")
    cs(e, 8)
    group(False, True)
    for ks in range(4):
        hload(ks)
    wread(WB, 0)
    for ks in range(28):
        e("s_waitcnt lgkmcnt(0)")
        if ks % 4 == 0 and ks + 4 < 28:
            group(True, True)
        if ks + 4 < 28:
            wload(ks + 4)
        else:
            woload(ks & 3, 1, "wodd")
        if ks + 1 < 28:
            e.wait_vm(f"w{ks+1}")
            wread(WB + 8 * ((ks + 1) & 1), (ks + 1) & 3)
        e.wait_vm(f"h{ks}")
        f = WB + 8 * (ks & 1)
        h = HB + 8 * (ks & 3)
        for m in range(2):
            for t in range(2):
                d = DAC + 32 * m + 16 * t
                c = "0" if ks == 0 else vr(d, 16)
                e(f"v_mfma_f32_32x32x16_bf16 {vr(d,16)}, {vr(f+4*m,4)}, {vr(h+4*t,4)}, {c}")
        if ks + 4 < 28:
            hload(ks + 4)
    cs(e, 9)
    e("s_setprio 3")
    e("s_lshl_b32 s64, s76, 16")
    e("s_lshl_b32 s60, s3, 13")
    e("s_add_u32 s64, s64, s60")
    e(f"s_add_u32 s64, s64, {WS_OF}")
    e("s_add_u32 s65, s64, 4096")
    e("s_add_u32 s66, s64, 32768")
    e("s_add_u32 s67, s64, 36864")
    e("s_lshl_b32 s60, s3, 14")
    e("v_add_u32 v6, s60, v2")
    e("s_nop 7")
    for m in range(2):
        for t in range(2):
            for r in range(0, 16, 2):
                d = DAC + 32 * m + 16 * t + r
                e(f"v_pk_mul_f32 {vr(d,2)}, {vr(d,2)}, v[{14+2*t}:{15+2*t}]")

    def oe_ld():
        for j in range(4):
            for t in range(2):
                e(f"buffer_load_dwordx4 {vr(HB+8*j+4*t,4)}, v2, s[48:51], s{64+2*t+(j>>1)} offen offset:{(j&1)*2048} sc1")
    def oe_ck():
        e(f"v_max_u32 v11, v{HB}, v{HB+1}")
        for r in range(1, 16):
            e(f"v_max3_u32 v11, v11, v{HB+2*r}, v{HB+2*r+1}")
        e("v_cmp_eq_u32 vcc, -1, v11")
    spin(e, oe_ld, oe_ck, 12)
    e("s_setprio 0")
    for j in range(4):
        for m in range(2):
            for t in range(2):
                d = DAC + 32 * m + 16 * t
                e(f"v_mfma_f32_32x32x16_bf16 {vr(d,16)}, {vr(WE+8*j+4*m,4)}, {vr(HB+8*j+4*t,4)}, {vr(d,16)}")
    e("s_nop 15")
    cs(e, 10)
    e.bar()
    for q in range(16):
        e(f"ds_write_b128 v6, {vr(DAC+4*q,4)} offset:{q*1024}")
    e("s_waitcnt lgkmcnt(0)")
    e.bar()
    stamp(e, 11); stamp(e, 12); stamp(e, 13, True)
    stamp_flush(e, 14)
    e("s_endpgm")
    return e.nbar


SP_XB = 65536
SP_WQ = 131072


def sp_xload(e, rows_sgpr, lds_sgpr, chunk_sgpr):
    e(f"s_lshl_b32 s60, s{chunk_sgpr}, 7")
    e(f"s_add_u32 s60, s60, s{rows_sgpr}")
    e(f"s_lshl_b32 s61, s{chunk_sgpr}, 13")
    e(f"s_add_u32 s61, s61, {lds_sgpr}")
    for n in range(8):
        e(f"s_add_u32 m0, s61, {n * 1024}")
        e("s_add_u32 s60, s60, 8192" if n else "s_nop 0")
        e(f"buffer_load_dwordx4 v{4 + (n & 1)}, s[32:35], s60 offen lds")


def sp_start(e):
    e.label("SP_START")
    e("s_lshl_b32 s60, s31, 1")
    e("s_add_u32 s60, s60, s56")
    e("s_sub_u32 s97, s60, 14")
    e("s_lshl_b32 s63, s97, 16")
    x_dma_voff(e)
    e("s_waitcnt lgkmcnt(0)")
    srd(e, 32, 4, 2048 * 1024)
    e("s_cmp_ge_u32 s30, 8")
    e("s_cbranch_scc1 SP_START_H")
    sp_xload(e, 63, 0, 30)
    e("s_branch COMPUTE")
    e.label("SP_START_H")
    e("s_cmp_lt_u32 s3, 2")
    e("s_cselect_b32 s36, s8, s10")
    e("s_cselect_b32 s37, s9, s11")
    e("s_mov_b32 s38, 16384")
    e("s_mov_b32 s39, 0x00020000")
    e("s_lshl_b32 s61, s3, 13")
    e("s_and_b32 s62, s61, 0x2000")
    for n in range(8):
        if n % 4 == 0:
            e(f"s_add_u32 m0, s61, {SP_XB + n * 1024}")
            e(f"s_add_u32 s60, s62, {n * 1024}")
        e(f"buffer_load_dwordx4 v2, s[36:39], s60 offen offset:{(n & 3) * 1024} lds")
    e("s_branch SP_HELPER")


def sp_helper(e):
    e.label("SP_HELPER")
    e.vm = []
    e.nbar = 0
    e("v_mov_b32 v16, 0")
    stamp(e, 2)
    srd(e, 48, 28, WS_SIZE)
    srd(e, 72, 26, 0 if "noflag" in OPT else 256)
    e.wait_all()
    e.bar()
    stamp(e, 3)
    srd(e, 36, 22, 1024)
    e(f"s_mov_b32 m0, {SP_XB + 32768}")
    e("v_lshrrev_b32 v7, 2, v1")
    e("buffer_load_dwordx4 v2, s[36:39], 0 offen lds")
    e("v_and_b32 v8, 3, v1")
    e("v_lshlrev_b32 v8, 4, v8")
    e("v_lshl_add_u32 v9, v7, 10, v8")
    srd(e, 40, 6, 512 * 1024)
    e("s_lshl_b32 s60, s3, 17")
    e("s_lshl_b32 s62, s56, 6")
    e("s_add_u32 s60, s60, s62")
    e("s_lshl_b32 s61, s3, 13")
    for n in range(8):
        e(f"s_add_u32 m0, s61, {SP_WQ + n * 1024}")
        e("s_add_u32 s60, s60, 16384" if n else "s_nop 0")
        e("buffer_load_dwordx4 v9, s[40:43], s60 offen lds")
    e("s_lshl_b32 s60, s97, 9")
    e("s_lshl_b32 s61, s3, 7")
    e("s_add_u32 s60, s60, s61")
    e(f"s_add_u32 s60, s60, {WS_FL}")
    e("s_mov_b64 exec, 0xff")
    e("buffer_store_dword v16, v3, s[48:51], s60 offen sc1")
    e("s_mov_b64 exec, -1")
    for r in range(4):
        e(f"v_mov_b32 v{12+r}, -1")
    e("s_xor_b32 s63, s97, 1")
    e("s_lshl_b32 s63, s63, 16")
    e.wait_all()
    e.bar()
    cs(e, 4)
    e("s_cmp_lg_u32 s3, 3")
    e("s_cbranch_scc1 SPH_A")
    cnt_arrive(e, 0)
    e.label("SPH_A")
    e("s_lshl_b32 s60, s97, 16")
    e("s_lshl_b32 s61, s3, 14")
    e("s_add_u32 s60, s60, s61")
    e(f"s_add_u32 s60, s60, {WS_OF}")
    for n in range(16):
        if n % 4 == 0:
            e(f"s_add_u32 s61, s60, {n * 1024}")
        e(f"buffer_store_dwordx4 v[12:15], v2, s[48:51], s61 offen offset:{(n & 3) * 1024} sc1")
    e.bar()
    for u in range(2):
        e("s_lshl_b32 s62, s3, 1")
        e(f"s_add_u32 s62, s62, {u}")
        sp_xload(e, 63, SP_XB, 62)
    e.wait_all()
    e.bar()
    cs(e, 5)
    e("s_cmp_lg_u32 s3, 3")
    e("s_cbranch_scc1 SPH_C")
    cnt_arrive(e, 1)
    e.label("SPH_C")
    e("s_cmp_lg_u32 s3, 3")
    e("s_cbranch_scc1 SPH_B")
    cnt_spin(e, 0)
    e.label("SPH_B")
    e.wait_all()
    e.bar()
    e.bar()
    kv_piece(e, (0, 1, 2, 3))
    kv_piece(e, (4, 5, 6, 7))
    e("s_cmp_lg_u32 s3, 3")
    e("s_cbranch_scc1 SPH_D")
    cnt_spin(e, 1)
    e.label("SPH_D")
    e.wait_all()
    cs(e, 6)
    e.bar()
    cs(e, 7)
    e("s_branch DOWN")
    return e.nbar


def sp_compute(e):
    e.label("SP_COMPUTE")
    e.vm = []
    e.nbar = 0
    A = 64
    srd(e, 48, 28, WS_SIZE)
    srd(e, 52, 24, 2048 * 1024)
    stamp(e, 2)

    def xaddr(base):
        e("v_and_b32 v14, 31, v1")
        e("v_lshrrev_b32 v15, 5, v1")
        e("v_bfe_u32 v16, v1, 1, 3")
        e("v_xor_b32 v16, v16, v15")
        e("s_and_b32 s60, s30, 1")
        e("s_lshl_b32 s60, s60, 12")
        e(f"s_add_u32 s60, s60, {base}")
        e("v_lshlrev_b32 v17, 7, v14")
        e("v_add_u32 v17, s60, v17")
        for s in range(4):
            e(f"v_xor_b32 v18, {2*s}, v16")
            e(f"v_lshl_add_u32 v{10+s}, v18, 4, v17")
        e("v_bfe_u32 v16, v1, 2, 2")
        e("v_lshl_add_u32 v17, v15, 3, v16")
        e("v_and_b32 v18, 3, v1")
        e("v_lshlrev_b32 v18, 3, v18")
        for r in range(16):
            e(f"v_mov_b32 v{A+r}, 0")

    def chain(kind):
        lab = e.newlabel("CH")
        rs = {"K": 32, "V": 32, "Q": 64, "G": 2}[kind]
        if kind in "KV":
            e("v_lshl_add_u32 v14, v17, 5, v18")
            e(f"v_add_u32 v14, {SP_XB + (16384 if kind == 'V' else 0)}, v14")
        elif kind == "Q":
            e("v_lshl_add_u32 v14, v17, 6, v18")
            e("v_bfe_u32 v19, v1, 4, 1")
            e("v_lshl_add_u32 v14, v19, 5, v14")
            e(f"v_add_u32 v14, {SP_WQ}, v14")
        else:
            e("v_lshlrev_b32 v14, 4, v15")
            e(f"v_add_u32 v14, {SP_XB + 32768}, v14")
        def rd(s):
            e(f"ds_read_b128 {vr(24+4*s,4)}, v{10+s}")
            if kind == "G":
                e(f"ds_read_b128 {vr(40+4*s,4)}, v14 offset:{s*32}")
            else:
                for rho in range(2):
                    e(f"ds_read_b64_tr_b16 {vr(40+4*s+2*rho,2)}, v14 offset:{(16*s+4*rho)*rs}")
            e(f"v_add_u32 v{10+s}, 0x2000, v{10+s}")
            if s == 3:
                e(f"v_add_u32 v14, {64*rs}, v14")
        nrd = 2 if kind == "G" else 3
        for s in range(4):
            rd(s)
        e("s_mov_b32 s60, 8")
        e.label(lab)
        for s in range(4):
            e(f"s_waitcnt lgkmcnt({3 * nrd})")
            a, b = vr(40+4*s, 4), vr(24+4*s, 4)
            if kind == "V":
                a, b = b, a
            e(f"v_mfma_f32_32x32x16_bf16 {vr(A,16)}, {a}, {b}, {vr(A,16)}")
            rd(s)
        e("s_sub_u32 s60, s60, 1")
        e("s_cmp_lg_u32 s60, 0")
        e(f"s_cbranch_scc1 {lab}")
        e("s_waitcnt lgkmcnt(0)")

    xaddr(0)
    e("s_lshl_b32 s98, s97, 1")
    e("s_and_b32 s60, s30, 1")
    e("s_add_u32 s98, s98, s60")
    e.wait_all()
    e.bar()
    stamp(e, 3)
    e("s_lshr_b32 s99, s30, 1")
    e("s_cmp_eq_u32 s99, 1")
    e("s_cbranch_scc1 SPC_V")
    e("s_cmp_eq_u32 s99, 2")
    e("s_cbranch_scc1 SPC_G")
    e("s_cmp_eq_u32 s99, 3")
    e("s_cbranch_scc1 SPC_Q")
    chain("K")
    e(f"s_mov_b32 s60, {fbits(0.25 * LOG2E)}")
    e("v_and_b32 v14, 0x33, v1")
    e("v_bfe_u32 v15, v1, 2, 1")
    e("v_lshl_add_u32 v14, v15, 3, v14")
    e("v_bfe_u32 v15, v1, 3, 1")
    e("v_lshl_add_u32 v14, v15, 2, v14")
    e("v_lshlrev_b32 v14, 4, v14")
    e("s_nop 4")
    for r in range(8):
        e(f"v_mul_f32 v{A+r}, s60, v{A+r}")
    e(f"v_mul_f32 v18, v{A}, v{A}")
    for r in range(1, 8):
        e(f"v_fmac_f32 v18, v{A+r}, v{A+r}")
    for r in range(4):
        e(f"v_cvt_pk_bf16_f32 v{A+8+r}, v{A+2*r}, v{A+2*r+1}")
    e("s_lshl_b32 s60, s98, 11")
    e(f"s_add_u32 s60, s60, {WS_KV}")
    e(f"buffer_store_dwordx4 {vr(A+8,4)}, v14, s[48:51], s60 offen sc1")
    allreduce(e, "v_add_f32", 18, 19, 5, 6)
    allreduce(e, "v_max_f32", 18, 19, 0, 5)
    e("s_lshl_b32 s60, s98, 2")
    e(f"s_add_u32 s60, s60, {WS_KN}")
    e("s_mov_b64 exec, 1")
    e("buffer_store_dword v18, v3, s[48:51], s60 offen sc1")
    e("s_mov_b64 exec, -1")
    e("s_branch SPC_KV_DONE")
    e.label("SPC_V")
    chain("V")
    e("s_nop 9")
    for r in range(8):
        e(f"v_cvt_pk_bf16_f32 v{A+r}, v{A+2*r}, v{A+2*r+1}")
    e("s_lshl_b32 s60, s98, 11")
    e(f"s_add_u32 s60, s60, {WS_KV + 1024}")
    e("s_mov_b32 exec_lo, 0xffff")
    e("s_mov_b32 exec_hi, 0xffff")
    e(f"buffer_store_dwordx4 {vr(A,4)}, v2, s[48:51], s60 offen sc1")
    e(f"buffer_store_dwordx4 {vr(A+4,4)}, v2, s[48:51], s60 offen offset:256 sc1")
    e("s_mov_b64 exec, -1")
    e.label("SPC_KV_DONE")
    e("s_waitcnt vmcnt(0)")
    e("s_barrier")
    e("s_barrier")
    e("s_barrier")
    e("s_barrier")
    e("s_branch SPC_JOIN")
    e.label("SPC_G")
    e("s_barrier")
    chain("G")
    e("s_barrier")
    e("s_nop 9")
    e(f"v_mul_f32 v18, {fbits(-LOG2E)}, v{A}")
    e("v_exp_f32 v18, v18")
    e("s_lshl_b32 s60, s98, 7")
    e("v_add_f32 v18, 1.0, v18")
    e("v_rcp_f32 v20, v18")
    e(f"s_add_u32 s60, s60, {WS_G}")
    e("s_mov_b32 exec_hi, 0")
    e("buffer_store_dword v20, v3, s[48:51], s60 offen sc1")
    e("s_mov_b64 exec, -1")
    xaddr(SP_XB)
    e("s_xor_b32 s98, s98, 2")
    e("s_waitcnt vmcnt(0)")
    e("s_barrier")
    chain("Q")
    e("s_branch SPC_QW")
    e.label("SPC_Q")
    e.bar()
    chain("Q")
    e.bar()
    e.bar()
    e.label("SPC_QW")
    e.bar()
    e("s_and_b32 s60, s98, 3")
    e("s_nop 2")
    e("s_lshl_b32 s60, s60, 12")
    e(f"s_add_u32 s60, s60, {WD_BASE}")
    e("v_add_u32 v14, s60, v2")
    e("v_xor_b32 v15, 0x4000, v14")
    e("s_nop 3")
    for r in range(8):
        e(f"v_cvt_pk_bf16_f32 v{A+r}, v{A+2*r}, v{A+2*r+1}")
    e(f"ds_write_b128 v14, {vr(A,4)}")
    e(f"ds_write_b128 v15, {vr(A+4,4)}")
    e("s_waitcnt lgkmcnt(0)")
    e.label("SPC_JOIN")
    cs(e, 4); cs(e, 5)
    e(f"s_mov_b32 s60, {WS_KN}")
    e("buffer_load_dword v10, v3, s[48:51], s60 offen sc1")
    e("s_lshl_b32 s62, s30, 12")
    e(f"s_add_u32 s62, s62, {WD_BASE}")
    e("v_add_u32 v14, s62, v2")
    e.bar()
    e(f"ds_read_b128 {vr(R_Q,4)}, v14")
    for l in att_init():
        e(l)
    e("s_waitcnt vmcnt(0)")
    allreduce(e, "v_max_f32", 10, 12, 0, 6)
    e("s_waitcnt lgkmcnt(0)")
    e("s_branch QJOIN")
    return e.nbar


R_O = 16; R_VF = [32, 40]; R_Q = 48; R_C = 52; R_KF = [68, 72, 76, 80]; R_S = [88, 104]


def att_init():
    L = ["v_and_b32 v12, 27, v1",
         "v_cmp_eq_u32 vcc, 16, v12",
         "v_mov_b32 v12, 0x3f803f80",
         "v_mov_b32 v8, 0xdddd",
         f"v_cndmask_b32 v{R_VF[0]}, 0, v12, vcc"]
    L += [f"v_mov_b32 v{R_VF[0]+1}, v{R_VF[0]}"]
    L += [f"v_mov_b64 {vr(R_VF[0]+r,2)}, {vr(R_VF[0],2)}" for r in range(2, 16, 2)]
    L += [f"v_mov_b64 {vr(R_O+r,2)}, 0" for r in range(0, 16, 2)]
    L += ["v_mov_b32 v13, v2", "v_mov_b32 v11, 0"]
    return L


def compute(e):
    e.label("COMPUTE")
    e("s_lshr_b32 s60, s30, 2")
    e("s_lshl_b32 s96, s31, 2")
    e("s_and_b32 s61, s30, 3")
    e("s_add_u32 s96, s96, s61")
    e("s_lshl_b32 s96, s96, 4")
    e("s_add_u32 s96, s96, s56")
    e("s_lshl_b32 s96, s96, 1")
    e("s_add_u32 s96, s96, s60")
    e("s_lshl_b32 s96, s96, 10")
    e("s_mov_b32 s40, 0xffff")
    e("s_mov_b32 s41, 0xffff")
    e("s_cmp_ge_u32 s56, 14")
    e("s_cbranch_scc1 SP_COMPUTE")
    e.vm = []
    e.nbar = 0
    if "pf" in OPT:
        e("s_getpc_b64 s[44:45]")
        e.label("PC_REF")
        e(f"s_sub_u32 s44, s44, PC_REF-{NAME}_kernel")
        e("s_subb_u32 s45, s45, 0")
        e("s_and_b32 s60, s94, 3")
        e("s_lshl_b32 s60, s60, 3")
        e("s_add_u32 s60, s60, s30")
        e("s_lshl_b32 s60, s60, 10")
        e(f"s_min_u32 s60, s60, CODE_END-{NAME}_kernel-1024")
        e("v_add_u32 v24, s60, v2")
        e("global_load_dwordx4 v[24:27], v24, s[44:45]")
    XA = 160
    e("v_and_b32 v14, 15, v1")
    e("v_bfe_u32 v16, v1, 1, 3")
    e("v_xor_b32 v16, v16, v6")
    e("s_and_b32 s60, s30, 3")
    e("s_lshl_b32 s60, s60, 12")
    e("v_lshlrev_b32 v17, 7, v14")
    e("v_add_u32 v17, s60, v17")
    for s in range(2):
        e(f"v_xor_b32 v18, {4*s}, v16")
        e(f"v_lshl_add_u32 v{XA+s}, v18, 4, v17")
        e(f"v_xor_b32 v{XA+2+s}, 0x1000, v{XA+s}")
        e(f"v_add_u32 v{XA+4+s}, {X_BASE[2]}, v{XA+s}")
        e(f"v_add_u32 v{XA+6+s}, {X_BASE[2]}, v{XA+2+s}")
    e("s_lshr_b32 s60, s30, 2")
    e("s_lshl_b32 s92, s60, 1")
    e("s_and_b32 s61, s30, 1")
    e("s_add_u32 s92, s92, s61")
    e("v_bfe_u32 v16, v1, 2, 2")
    e("v_lshl_add_u32 v17, v6, 3, v16")
    e("v_and_b32 v19, 3, v1")
    e("v_and_b32 v18, 1, v6")
    e("v_xor_b32 v14, s60, v18")
    e("v_lshlrev_b32 v9, 6, v17")
    e("v_lshl_add_u32 v9, v14, 5, v9")
    e("v_and_b32 v14, 1, v1")
    e("v_lshl_add_u32 v9, v14, 4, v9")
    e("v_bfe_u32 v14, v1, 1, 1")
    e("v_lshl_add_u32 v9, v14, 3, v9")
    e("v_lshl_add_u32 v18, v18, 2, v16")
    e("s_lshl_b32 s61, s92, 1")
    e("v_xor_b32 v18, s61, v18")
    e("v_lshlrev_b32 v4, 8, v17")
    e("v_lshl_add_u32 v4, v18, 5, v4")
    e("v_lshl_add_u32 v4, v19, 3, v4")
    e("s_and_b32 s60, s30, 2")
    e("s_lshl_b32 s60, s60, 1")
    e("s_add_u32 s60, s60, s92")
    e("s_lshl_b32 s60, s60, 1")
    e("s_and_b32 s61, s30, 1")
    e("s_add_u32 s60, s60, s61")
    e("s_lshl_b32 s60, s60, 11")
    e(f"s_add_u32 s60, s60, {WD_BASE}")
    e("v_and_b32 v14, 15, v1")
    e("v_lshlrev_b32 v14, 4, v14")
    e("v_and_b32 v15, 1, v6")
    e("v_lshl_add_u32 v14, v15, 9, v14")
    e("v_lshrrev_b32 v15, 1, v6")
    e("v_lshl_add_u32 v14, v15, 3, v14")
    e("v_add_u32 v14, s60, v14")
    e("v_xor_b32 v15, 0x800, v14")
    e("v_xor_b32 v5, 32, v4")
    e(f"v_add_u32 v4, {W_BASE}, v4")
    e(f"v_add_u32 v5, {W_BASE}, v5")
    e("v_add_u32 v6, 0x10000, v4")
    e("v_add_u32 v7, 0x10000, v5")
    e("s_waitcnt lgkmcnt(0)")
    srd(e, 48, 28, WS_SIZE)
    srd(e, 52, 24, 2048 * 1024)
    e(f"s_mov_b32 s64, {fbits(-LOG2E)}")
    e(f"s_mov_b32 s65, {fbits(-LOG2E)}")
    e("s_mov_b32 s66, 1.0")
    e("s_mov_b32 s67, 1.0")
    e("s_waitcnt vmcnt(0)")
    stamp(e, 2)

    ACC = 88
    QACC = 152
    FR = [16, 52]

    def reads(kc, s, fb):
        st = stage(kc)
        f = FR[fb]
        L = []
        for rho in range(2):
            L.append(f"ds_read_b64_tr_b16 {vr(f + 16 + 2*rho, 2)}, v9 offset:{QS_BASE + st * 4096 + (32 * s + 4 * rho) * 64}")
        for t in range(4):
            a = XA + (4 if st == 2 else 0) + 2 * (t >> 1) + s
            L.append(f"ds_read_b128 {vr(f + 4*t, 4)}, v{a} offset:{(X_BASE[st] if st < 2 else 0) + (t & 1) * 2048}")
        for jj in range(4):
            m, j = jj >> 1, jj & 1
            for rho in range(2):
                off = st * 32768 + m * 16384 + (32 * s + 4 * rho) * 256
                a = 4 + j
                if off >= 65536:
                    off -= 65536
                    a += 2
                L.append(f"ds_read_b64_tr_b16 {vr(f + 20 + 4*jj + 2*rho, 2)}, v{a} offset:{off}")
        return L

    def mfmas(fb, first):
        f = FR[fb]
        L = []
        for t in range(2):
            d = QACC + 4 * t
            L.append(f"v_mfma_f32_16x16x32_bf16 {vr(d,4)}, {vr(f+16,4)}, {vr(f+4*t,4)}, " + ("0" if first else vr(d, 4)))
        for jj in range(4):
            for t in range(4):
                d = ACC + 16 * jj + 4 * t
                L.append(f"v_mfma_f32_16x16x32_bf16 {vr(d,4)}, {vr(f+20+4*jj,4)}, {vr(f+4*t,4)}, " + ("0" if first else vr(d, 4)))
        return L

    Q = R_Q; IDX = 8; C = R_C; O = R_O; S = R_S; KF = R_KF; VF = R_VF
    e.bar()
    stamp(e, 3)
    for l in reads(0, 0, 0):
        e(l)
    for kc in range(8):
        for s in range(2):
            e("s_waitcnt lgkmcnt(0)")
            per = 1
            if s == 0:
                rl = reads(kc, 1, 1)
                if kc == 7:
                    rl = rl + [f"s_mov_b32 s60, {WS_KN}", "buffer_load_dword v10, v3, s[48:51], s60 offen sc1"]
            elif kc < 7:
                e.bar()
                fs(e, 4 + kc)
                rl = reads(kc + 1, 0, 0)
            else:
                e.bar()
                rl = att_init()
                per = 2
            ml = mfmas(s, kc == 0 and s == 0)
            for i, m in enumerate(ml):
                e(m)
                for l in rl[per*i:per*i+per]:
                    e(l)
            for l in rl[per*len(ml):]:
                e(l)
        if kc == 3:
            cs(e, 4)
    cs(e, 5)
    e(f"v_cvt_pk_bf16_f32 v{Q}, v{QACC}, v{QACC+1}")
    e(f"v_cvt_pk_bf16_f32 v{Q+1}, v{QACC+2}, v{QACC+3}")
    e(f"v_cvt_pk_bf16_f32 v{Q+2}, v{QACC+4}, v{QACC+5}")
    e(f"v_cvt_pk_bf16_f32 v{Q+3}, v{QACC+6}, v{QACC+7}")
    e("s_waitcnt vmcnt(0)")
    e("s_nop 0")
    e(f"v_permlane16_swap_b32 v{Q}, v{Q+2}")
    e(f"v_permlane16_swap_b32 v{Q+1}, v{Q+3}")
    red = Asm()
    allreduce(red, "v_max_f32", 10, 12, 0, 6)
    red = [l.strip() for l in red.lines]
    for j in range(2):
        G = ACC + 16 * j
        U = ACC + 32 + 16 * j
        for r in range(0, 16, 2):
            e(f"v_pk_mul_f32 {vr(G+r,2)}, {vr(G+r,2)}, s[64:65]")
        for r in range(16):
            e(f"v_exp_f32 v{G+r}, v{G+r}")
            if j == 0 and r % 2 == 1:
                while red and red[0].startswith("s_nop"):
                    red.pop(0)
                if red:
                    e(red.pop(0))
                    if red and not red[0].startswith("s_nop"):
                        e(red.pop(0))
        for r in range(0, 16, 2):
            e(f"v_pk_add_f32 {vr(G+r,2)}, {vr(G+r,2)}, s[66:67]")
        for r in range(16):
            e(f"v_rcp_f32 v{G+r}, v{G+r}")
        for r in range(0, 16, 2):
            e(f"v_pk_mul_f32 {vr(G+r,2)}, {vr(G+r,2)}, {vr(U+r,2)}")
        for r in range(8):
            e(f"v_cvt_pk_bf16_f32 v{U+r}, v{G+2*r}, v{G+2*r+1}")
        for t in range(4):
            e(f"ds_write_b64 v{14 + (t >> 1)}, {vr(U+2*t,2)} offset:{j*1024 + (t & 1)*256}")
    assert not red, red
    nb_ffn = e.nbar
    e.label("QJOIN")
    e.nbar = 0
    cs(e, 6)
    for i in range(4):
        e(f"v_dot2c_f32_bf16 v11, v{Q+i}, v{Q+i}")
    e(f"v_mul_f32 v10, {fbits(1.04)}, v10")
    e("s_nop 1")
    allreduce(e, "v_add_f32", 11, 12, 5, 6)
    e("v_mul_f32 v11, v11, v10")
    e("v_sqrt_f32 v11, v11")
    e(f"s_mov_b32 s60, {fbits(SAFE_BOUND)}")
    e("v_cmp_nle_f32 vcc, v11, s60")
    e(f"v_sub_f32 v{C}, 0, v11")
    e(f"v_sub_f32 v{C+1}, 0, v11")
    for r in range(2, 16, 2):
        e(f"v_mov_b64 {vr(C+r,2)}, {vr(C,2)}")
    e("s_waitcnt lgkmcnt(0)")
    cs(e, 7)
    e.bar()
    e("s_cbranch_vccz ATT_GO")
    e("v_mov_b32 v11, 0xff800000")
    e("v_mov_b32 v12, v2")
    e("s_mov_b32 s60, 64")
    e.label("MAXLOOP")
    e(f"ds_read_b128 {vr(KF[0],4)}, v12")
    e("v_add_u32 v12, 0x800, v12")
    e("s_waitcnt lgkmcnt(0)")
    e(f"v_mfma_f32_32x32x16_bf16 {vr(S[0],16)}, {vr(KF[0],4)}, {vr(Q,4)}, 0")
    e("s_nop 15")
    for r in range(8):
        e(f"v_max3_f32 v11, v11, v{S[0]+2*r}, v{S[0]+2*r+1}")
    e("s_sub_u32 s60, s60, 1")
    e("s_cmp_lg_u32 s60, 0")
    e("s_cbranch_scc1 MAXLOOP")
    allreduce(e, "v_max_f32", 11, 12, 5, 6)
    for r in range(16):
        e(f"v_sub_f32 v{C+r}, 0, v11")
    e.label("ATT_GO")

    def laddr(t):
        return ("v13", t * 2048)
    def rdK(t, b):
        a, o = laddr(t)
        e(f"ds_read_b128 {vr(KF[b],4)}, {a} offset:{o}")
    def rdV(t, b):
        a, o = laddr(t)
        e("s_mov_b64 exec, s[40:41]")
        e(f"ds_read_b128 {vr(VF[b],4)}, {a} offset:{o+1024}")
        e(f"ds_read_b128 {vr(VF[b]+4,4)}, {a} offset:{o+1280}")
        e("s_mov_b64 exec, -1")
    def qk(t):
        e(f"v_mfma_f32_32x32x16_bf16 {vr(S[t & 1],16)}, {vr(KF[t & 3],4)}, {vr(Q,4)}, {vr(C,16)}")
    def sp(b, half):
        e(f"v_smfmac_f32_32x32x32_bf16 {vr(O,16)}, {vr(VF[b]+4*half,4)}, {vr(S[b]+8*half,8)}, v{IDX}")
    def ex(b, lo, hi):
        for r in range(lo, hi):
            e(f"v_exp_f32 v{S[b]+r}, v{S[b]+r}")

    rdK(0, 0)
    rdK(1, 1)
    rdV(0, 0)
    rdK(2, 2)
    rdK(3, 3)
    e("v_and_b32 v10, 31, v1")
    e("v_lshlrev_b32 v12, 2, v10")
    e("s_lshr_b32 s60, s96, 15")
    e("s_lshl_b32 s60, s60, 7")
    e(f"s_add_u32 s60, s60, {WS_G}")
    e("buffer_load_dword v163, v12, s[48:51], s60 offen sc1")
    cs(e, 8)
    e("s_waitcnt lgkmcnt(4)")
    qk(0)
    UN = int(os.environ.get("UN", "8"))
    e(f"s_mov_b32 s60, {64 // UN}")
    PSW = int(os.environ.get("PSW", "0"))
    if PSW:
        e("s_setprio 1")
        e("s_mov_b32 s61, 99")
        e("s_cmp_ge_u32 s30, 4")
        e("s_cbranch_scc1 PRIO_SET")
        e("s_setprio 2")
        e(f"s_mov_b32 s61, {PSW}")
        e.label("PRIO_SET")
    e("s_nop 11")
    ex(0, 0, 2)
    e("s_branch ATT_ENTRY")
    e.raw(".p2align 6")
    e.label("ATT_LOOP")
    if PSW:
        e("s_cmp_lg_u32 s60, s61")
        e("s_cbranch_scc1 PRIO_KEEP")
        e("s_setprio 0")
        e.label("PRIO_KEEP")
    for t in range(UN):
        b = t & 1
        ex(b, 0, 2)
        sp(b ^ 1, 1)
        rdK(t + 3, (t + 3) & 3)
        if t == 0:
            e.label("ATT_ENTRY")
        ex(b, 2, 6)
        qk(t + 1)
        e("s_waitcnt lgkmcnt(1)")
        ex(b, 6, 11)
        sp(b, 0)
        rdV(t + 1, b ^ 1)
        if t == UN - 1:
            e(f"v_add_u32 v13, {UN * 2048}, v13")
            e("s_sub_u32 s60, s60, 1")
            e("s_cmp_lg_u32 s60, 0")
        ex(b, 11, 16)
    e("s_cbranch_scc1 ATT_LOOP")
    e("s_waitcnt lgkmcnt(0)")
    e("s_nop 1")
    sp(1, 1)
    OB = 96
    WOB = 80
    PB = 16
    e("s_lshl_b32 s34, s76, 1")
    e("s_and_b32 s61, s30, 1")
    e("s_add_u32 s34, s34, s61")
    e("s_lshl_b32 s63, s34, 15")
    e(f"s_add_u32 s34, s63, {WS_OF + 1024}")
    e("s_lshl_b32 s61, s77, 7")
    e("s_add_u32 s63, s63, s61")
    e("s_and_b32 s61, s30, 2")
    e("s_lshl_b32 s61, s61, 5")
    e("s_add_u32 s63, s63, s61")
    e(f"s_add_u32 s62, s96, {WS_OF}")
    e("s_waitcnt vmcnt(0)")
    e("s_nop 1")
    cs(e, 9)
    e(f"v_rcp_f32 v11, v{O+8}")
    e("s_nop 0")
    e("v_mul_f32 v11, v11, v163")
    for r in range(8):
        e(f"v_mul_f32 v{O+r}, v{O+r}, v11")
    for r in range(4):
        e(f"v_cvt_pk_bf16_f32 v{164+r}, v{O+2*r}, v{O+2*r+1}")
    e("buffer_store_dwordx4 v[164:167], v2, s[48:51], s62 offen sc1")
    e("s_cmp_lt_u32 s30, 4")
    e("s_cbranch_scc1 FINISH")
    e("s_barrier")
    e("s_barrier")
    e("s_branch A_DONE")
    e.label("FINISH")

    def oload(g0):
        for k in range(4 * g0, 16):
            if k % 2 == 0:
                e(f"s_add_u32 s60, s34, {k * 2048}")
            e(f"buffer_load_dwordx4 {vr(OB+4*k,4)}, v2, s[48:51], s60 offen offset:{(k&1)*2048} sc1")
    def wread(k):
        for rho in range(2):
            e(f"ds_read_b64_tr_b16 {vr(WOB+4*(k&3)+2*rho,2)}, v161 offset:{k*2048 + rho*1024}")
    tr_addr128(e, 161, 162, 11, 12)
    e("s_and_b32 s60, s30, 2")
    e("s_lshl_b32 s60, s60, 5")
    e("v_xor_b32 v161, s60, v161")
    e(f"v_add_u32 v161, {WD_BASE}, v161")
    e("v_lshrrev_b32 v11, 5, v1")
    e("v_lshlrev_b32 v10, 10, v10")
    e("v_lshl_add_u32 v10, v11, 4, v10")
    e("s_lshl_b32 s60, s30, 12")
    e("v_add_u32 v6, s60, v2")
    e("s_setprio 3")
    e.bar()
    f2(e, 4)
    for k in range(4):
        wread(k)
    if "oearly" in OPT:
        oload(0)
    e.bar()
    f2(e, 5)
    for p in range(4):
        for jq in range(4):
            e(f"ds_read_b128 {vr(PB+16*p+4*jq,4)}, v6 offset:{p*16384 + jq*1024}")
    if "oearly" not in OPT:
        oload(0)
    e("s_waitcnt lgkmcnt(8)")
    for r in range(0, 16, 2):
        e(f"v_pk_add_f32 {vr(PB+r,2)}, {vr(PB+r,2)}, {vr(PB+16+r,2)}")
    e("s_waitcnt lgkmcnt(0)")
    for r in range(0, 16, 2):
        e(f"v_pk_add_f32 {vr(PB+32+r,2)}, {vr(PB+32+r,2)}, {vr(PB+48+r,2)}")
    for r in range(0, 16, 2):
        e(f"v_pk_add_f32 {vr(PB+r,2)}, {vr(PB+r,2)}, {vr(PB+32+r,2)}")
    f2(e, 6)
    for g in range(4):
        e.label(f"OCHK{g}")
        e(f"s_waitcnt vmcnt({12 - 4 * g})")
        o = OB + 16 * g
        e(f"v_max_u32 v11, v{o}, v{o+1}")
        for r in range(1, 8):
            e(f"v_max3_u32 v11, v11, v{o+2*r}, v{o+2*r+1}")
        e("v_cmp_eq_u32 vcc, -1, v11")
        e("s_nop 4")
        e(f"s_cbranch_vccnz ORETRY{g}")
        e.label(f"OGO{g}")
        if g == 3:
            cs(e, 10); f2(e, 7)
        e("s_waitcnt lgkmcnt(0)")
        for k in range(4 * g, 4 * g + 4):
            e(f"v_mfma_f32_32x32x16_bf16 {vr(PB,16)}, {vr(WOB+4*(k&3),4)}, {vr(OB+4*k,4)}, {vr(PB,16)}")
            if k + 4 < 16:
                wread(k + 4)
    e("s_nop 11")
    for r in range(8):
        e(f"v_cvt_pk_bf16_f32 v{32+r}, v{PB+2*r}, v{PB+2*r+1}")
    e("s_nop 1")
    e("v_permlane32_swap_b32 v32, v34")
    e("v_permlane32_swap_b32 v33, v35")
    e("v_permlane32_swap_b32 v36, v38")
    e("v_permlane32_swap_b32 v37, v39")
    ost = os.environ.get("OST", "")
    e(f"buffer_store_dwordx4 v[32:35], v10, s[52:55], s63 offen {ost}")
    e(f"buffer_store_dwordx4 v[36:39], v10, s[52:55], s63 offen offset:32 {ost}")
    e.label("A_DONE")
    stamp(e, 11)
    if STAMP:
        e("s_waitcnt vmcnt(0)")
    stamp(e, 12); stamp(e, 13, True)
    stamp_flush(e, 14)
    e.label("K_END")
    e("s_endpgm")
    for k in range(4):
        e.label(f"ORETRY{k}")
        spin_guard(e, f"OGO{k}")
        e("s_waitcnt vmcnt(0)")
        e(f"s_sleep {int(os.environ.get('OSL', '1'))}")
        oload(k)
        e(f"s_branch OCHK{k}")
    return nb_ffn, e.nbar


def kd(name, vgpr, sgpr=102):
    acc = (vgpr + 3) // 4 * 4
    return f""".p2align 6
.amdhsa_kernel {name}
  .amdhsa_next_free_vgpr {vgpr}
  .amdhsa_next_free_sgpr {sgpr}
  .amdhsa_accum_offset {acc}
  .amdhsa_group_segment_fixed_size 0
  .amdhsa_kernarg_size 104
  .amdhsa_user_sgpr_count 2
  .amdhsa_user_sgpr_kernarg_segment_ptr 1
  .amdhsa_system_sgpr_workgroup_id_x 1
.end_amdhsa_kernel
"""


def main(out):
    ref = open(f"cdna_kernels/{NAME}.s.ref").read().split("\n")
    hdr = [l for l in ref if l.startswith(";") and "@launch" not in l and "Override" not in l and "grid=ceil" not in l]
    e = Asm()
    prologue(e)
    sp_start(e)
    n1 = loader(e)
    n2 = service(e)
    n3 = down(e)
    nf, nc = compute(e)
    n5 = sp_helper(e)
    n6 = sp_compute(e)
    e.label("CODE_END")
    assert n1 == n2 and n1 + n3 == nf + nc and n5 + n3 == n6 + nc, (n1, n2, n3, nf, nc, n5, n6)
    s = "\n".join(hdr) + "\n"
    s += f"; @launch grid=(256,1,1) block=(768,1,1) lds={LDS_TOTAL}\n"
    s += '.amdgcn_target "amdgcn-amd-amdhsa--gfx950"\n.text\n'
    s += e.text()
    s += '.section .rodata,"a"\n'
    s += kd(NAME + "_kernel", 168)
    open(out, "w").write(s)


if __name__ == "__main__":
    main(sys.argv[1] if len(sys.argv) > 1 else f"cdna_kernels/{NAME}.s")
```

```python
import sys, os, struct

NAME = "gated_mix__grouped_kv_mqa__glu_gated_glu__prompt"

WS_OF = 2 << 20
WS_KV = 4 << 20
WS_KN = WS_KV + 131072
WS_G = WS_KN + 4096
WS_FL = WS_G + 8192
WS_HF = 8 << 20
WS_ST = 15 << 20
WS_SIZE = 16 << 20
OOB = 0x7f000000

LOG2E = 1.4426950408889634
STAMP = os.environ.get("STAMP", "0") == "1"
OPT = set(os.environ.get("OPT", "").split(","))
FINE = "fine" in OPT
FINE2 = "fine2" in OPT


def fbits(x):
    return "0x%08x" % struct.unpack("<I", struct.pack("<f", x))[0]


class Asm:
    def __init__(self):
        self.lines = []
        self.vm = []
        self.uid = 0
        self.nbar = 0
    def __call__(self, s):
        self.lines.append("    " + s)
    def label(self, s):
        self.lines.append(s + ":")
    def raw(self, s):
        self.lines.append(s)
    def vmem(self, s, tag):
        self(s)
        self.vm.append(tag)
    def wait_vm(self, tag):
        idxs = [i for i, t in enumerate(self.vm) if t == tag]
        if not idxs:
            return
        idx = max(idxs)
        n = len(self.vm) - 1 - idx
        assert n <= 63
        self(f"s_waitcnt vmcnt({n})")
        self.vm = self.vm[idx + 1:]
    def wait_all(self):
        self("s_waitcnt vmcnt(0)")
        self.vm = []
    def bar(self):
        self("s_barrier")
        self.nbar += 1
    def newlabel(self, p):
        self.uid += 1
        return f"{p}_{self.uid}"
    def text(self):
        return "\n".join(self.lines) + "\n"


def stamp(e, i, real=False):
    if not STAMP:
        return
    if "amp" in OPT:
        if i not in (1, int(os.environ["AMP"])):
            return
        real = True
    if "rt" in OPT:
        real = True
    e(("s_memrealtime" if real else "s_memtime") + " s[78:79]")
    e("s_waitcnt lgkmcnt(0)")
    e(f"s_mov_b32 s{80+i}, s78")


def cs(e, i):
    if not FINE and not (FINE2 and i in (4, 5, 6, 7)):
        stamp(e, i)


def f2(e, i):
    if FINE2:
        stamp(e, i)


def fs(e, i):
    if FINE:
        stamp(e, i)


def stamp_flush(e, n):
    if not STAMP:
        return
    if "amp" in OPT:
        lab, lp = e.newlabel("AMPS"), e.newlabel("AMPL")
        i = int(os.environ["AMP"])
        e(f"s_cmp_lg_u32 s30, {int(os.environ.get('DBGW', '4'))}")
        e(f"s_cbranch_scc1 {lab}")
        e(("s_cmp_lt_u32" if "dbgsp" in OPT else "s_cmp_ge_u32") + " s56, 14")
        e(f"s_cbranch_scc1 {lab}")
        e(f"s_sub_u32 s60, s{80+i}, s81")
        e("s_mul_i32 s60, s60, 10")
        e("s_memrealtime s[62:63]")
        e("s_waitcnt lgkmcnt(0)")
        e.label(lp)
        e("s_memrealtime s[78:79]")
        e("s_waitcnt lgkmcnt(0)")
        e("s_sub_u32 s61, s78, s62")
        e("s_cmp_lt_u32 s61, s60")
        e(f"s_cbranch_scc1 {lp}")
        e.label(lab)
        return
    if "dbg" in OPT:
        lab = e.newlabel("DBGS")
        lo = int(os.environ.get("DBGW", "4"))
        e(f"s_sub_u32 s78, s30, {lo}")
        e("s_cmp_ge_u32 s78, 4")
        e(f"s_cbranch_scc1 {lab}")
        e(("s_cmp_lt_u32" if "dbgsp" in OPT else "s_cmp_ge_u32") + " s56, 14")
        e(f"s_cbranch_scc1 {lab}")
        srd(e, 72, 26, 256)
        e("v_mov_b32 v0, 0")
        e("s_mov_b64 exec, 1")
        for i in range(2, 13):
            e(f"s_sub_u32 s78, s{80+i}, s81")
            e("v_mov_b32 v1, s78")
            e(f"buffer_atomic_umax v1, v0, s[72:75], 0 offen offset:{4*i}")
        e("s_sub_u32 s78, s93, s80")
        e("v_mov_b32 v1, s78")
        e(f"buffer_atomic_umax v1, v0, s[72:75], 0 offen offset:52")
        e("s_mov_b64 exec, -1")
        e.label(lab)
        return
    e("s_lshl_b32 s78, s2, 4")
    e("s_add_u32 s78, s78, s30")
    e("s_lshl_b32 s78, s78, 6")
    e(f"s_add_u32 s78, s78, {WS_ST}")
    e("v_mov_b32 v0, 0")
    e("s_mov_b64 exec, 1")
    for i in range(n):
        e(f"v_mov_b32 v1, s{80+i}")
        e(f"buffer_store_dword v1, v0, s[48:51], s78 offen offset:{4*i}")
    e("s_mov_b64 exec, -1")


def vr(a, n=1):
    return f"v{a}" if n == 1 else f"v[{a}:{a+n-1}]"


def srd(e, d, base, size):
    e(f"s_mov_b32 s{d}, s{base}")
    e(f"s_mov_b32 s{d+1}, s{base+1}")
    e(f"s_mov_b32 s{d+2}, {size}")
    e(f"s_mov_b32 s{d+3}, 0x00020000")


def allreduce(e, op, x, t, lo=0, hi=6):
    dpp = ["quad_perm:[1,0,3,2]", "quad_perm:[2,3,0,1]", "row_half_mirror", "row_mirror"]
    for b in range(lo, min(hi, 4)):
        e("s_nop 1")
        e(f"{op}_dpp v{x}, v{x}, v{x} {dpp[b]} row_mask:0xf bank_mask:0xf")
    for b, ins in ((4, "v_permlane16_swap_b32"), (5, "v_permlane32_swap_b32")):
        if lo <= b < hi:
            e(f"v_mov_b32 v{t}, v{x}")
            e("s_nop 1")
            e(f"{ins} v{x}, v{t}")
            e("s_nop 1")
            e(f"{op} v{x}, v{x}, v{t}")


X_ST = 16384
W_BASE = 3 * X_ST
QS_BASE = 32768
X_BASE = [0, 16384, 147456]
LDS_TOTAL = 163840
def stage(kc):
    return (kc + 1) % 3
SAFE_BOUND = 48.0
WD_BASE = 131072
NBW = 4


def spin_guard(e, done):
    e("s_cmp_eq_u32 s100, 0")
    e(f"s_cbranch_scc1 {done}")
    e("s_sub_u32 s100, s100, 1")


def spin(e, load, check, sleep, preloaded=False):
    lo, chk, done = e.newlabel("SPIN"), e.newlabel("SPINC"), e.newlabel("SPIND")
    if preloaded:
        e(f"s_branch {chk}")
    e.label(lo)
    load()
    e.label(chk)
    e.wait_all()
    check()
    e("s_nop 4")
    e(f"s_cbranch_vccz {done}")
    spin_guard(e, done)
    e(f"s_sleep {sleep}")
    e(f"s_branch {lo}")
    e.label(done)


def tr_addr128(e, d0, d1, t0, t1):
    e(f"v_bfe_u32 v{t0}, v1, 2, 2")
    e(f"v_lshrrev_b32 v{t1}, 5, v1")
    e(f"v_lshl_add_u32 v{d0}, v{t1}, 2, v{t0}")
    e(f"v_lshlrev_b32 v{d0}, 7, v{d0}")
    e(f"v_bfe_u32 v{t1}, v1, 4, 1")
    e(f"v_lshl_add_u32 v{d0}, v{t1}, 5, v{d0}")
    e(f"v_and_b32 v{t1}, 3, v1")
    e(f"v_lshl_add_u32 v{d0}, v{t1}, 3, v{d0}")
    e(f"v_bfe_u32 v{t1}, v1, 3, 1")
    e(f"v_lshlrev_b32 v{t1}, 6, v{t1}")
    e(f"v_add_u32 v{d0}, v{d0}, v{t1}")
    e(f"v_xor_b32 v{d1}, 64, v{d0}")


def dma_voff128(e, d, t0, t1):
    e(f"v_lshrrev_b32 v{t0}, 3, v1")
    e(f"v_bfe_u32 v{t1}, v1, 4, 1")
    e(f"v_lshlrev_b32 v{t1}, 2, v{t1}")
    e(f"v_and_b32 v{d}, 7, v1")
    e(f"v_xor_b32 v{d}, v{d}, v{t1}")
    e(f"v_lshlrev_b32 v{d}, 4, v{d}")
    e(f"v_lshl_add_u32 v{d}, v{t0}, 10, v{d}")


def prologue(e):
    n = NAME + "_kernel"
    e.raw(f".globl {n}\n.p2align 8\n.type {n},@function\n{n}:")
    e("s_cmp_ge_u32 s2, 256")
    e("s_cbranch_scc1 K_END")
    stamp(e, 0, True); stamp(e, 1)
    e("s_load_dwordx16 s[4:19], s[0:1], 0")
    e("s_load_dwordx8 s[20:27], s[0:1], 64")
    e("s_load_dwordx2 s[28:29], s[0:1], 96")
    e("s_mov_b32 s100, %d" % (0 if "nospin" in OPT else 0x20000))
    e("v_lshrrev_b32 v2, 6, v0")
    e("v_and_b32 v1, 63, v0")
    e("v_readfirstlane_b32 s30, v2")
    e("v_lshlrev_b32 v2, 4, v1")
    e("v_lshlrev_b32 v3, 2, v1")
    e("v_lshrrev_b32 v6, 4, v1")
    e("s_and_b32 s57, s2, 7")
    e("s_lshr_b32 s59, s2, 3")
    e("s_and_b32 s94, s59, 7")
    e("s_lshr_b32 s95, s59, 3")
    e("s_and_b32 s31, s57, 1")
    e("s_lshl_b32 s31, s31, 3")
    e("s_add_u32 s31, s31, s94")
    e("s_lshr_b32 s56, s57, 1")
    e("s_xor_b32 s60, s95, 3")
    e("s_lshl_b32 s60, s60, 2")
    e("s_add_u32 s56, s56, s60")
    if "nospread" not in OPT:
        e("s_and_b32 s60, s59, 25")
        e("s_cmp_eq_u32 s60, 1")
        e("s_cselect_b32 s60, 2, 0")
        e("s_xor_b32 s56, s56, s60")
    if "oldi2" in OPT:
        e("s_and_b32 s76, s57, 3")
        e("s_lshl_b32 s76, s76, 3")
    else:
        e("s_andn2_b32 s76, 1, s57")
        e("s_lshl_b32 s76, s76, 4")
        e("s_and_b32 s60, s57, 2")
        e("s_lshl_b32 s60, s60, 2")
        e("s_add_u32 s76, s76, s60")
    e("s_add_u32 s76, s76, s94")
    e("s_lshr_b32 s77, s57, 2")
    e("s_lshl_b32 s77, s77, 2")
    e("s_add_u32 s77, s77, s95")
    e("s_sub_u32 s3, s30, 8")
    rot = os.environ.get("ROT", "8")
    e("s_lshl_b32 s58, s95, 1")
    e("s_add_u32 s58, s58, s94")
    if rot == "4":
        e("s_and_b32 s58, s58, 6")
    elif rot == "2":
        e("s_add_u32 s58, s94, s95")
        e("s_and_b32 s58, s58, 1")
        e("s_lshl_b32 s58, s58, 2")
    elif rot == "1":
        e("s_mov_b32 s58, 0")
    e("s_cmp_ge_u32 s56, 14")
    e("s_cbranch_scc1 SP_START")
    e("s_cmp_lt_u32 s30, 8")
    e("s_cbranch_scc1 COMPUTE")
    e("s_cmp_eq_u32 s3, 3")
    e("s_cbranch_scc1 SERVICE")
    e("s_branch LOADER")


def x_dma_voff(e):
    e("v_and_b32 v8, 7, v1")
    e("v_xor_b32 v7, v6, v8")
    e("v_lshrrev_b32 v8, 3, v1")
    e("v_lshlrev_b32 v8, 10, v8")
    e("v_lshl_add_u32 v4, v7, 4, v8")
    e("v_xor_b32 v5, 64, v4")


def kv_piece(e, tab):
    e(f"s_mov_b32 s59, {sum(t << (8 * i) for i, t in enumerate(tab)):#x}")
    e("s_lshl_b32 s62, s3, 3")
    e("s_lshr_b32 s59, s59, s62")
    e("s_and_b32 s59, s59, 15")
    e("s_add_u32 s62, s59, s94")
    e("s_and_b32 s62, s62, 7")
    e("s_lshl_b32 s62, s62, 14")
    e(f"s_add_u32 s62, s62, {WS_KV}")
    e("s_lshl_b32 s59, s59, 14")
    for n in range(16):
        if n % 4 == 0:
            e(f"s_add_u32 m0, s59, {n * 1024}")
            e(f"s_add_u32 s64, s62, {n * 1024}")
        e.vmem(f"buffer_load_dwordx4 v2, s[48:51], s64 offen offset:{(n & 3) * 1024} sc1 lds", "kvl")


def cnt_spin(e, which):
    e("v_mov_b32 v17, 0")
    spin(e, lambda: e(f"buffer_load_dword v20, v17, s[72:75], 0 offen offset:{128 + 64 * which} sc1"),
         lambda: e("v_cmp_eq_u32 vcc, 0, v20"), 4)


def cnt_arrive(e, which):
    lab = e.newlabel("ARR")
    e("v_mov_b32 v21, 1")
    e("v_mov_b32 v17, 0")
    e("s_mov_b64 exec, 1")
    e(f"buffer_atomic_add v21, v17, s[72:75], 0 offen offset:{64 * which} sc0 sc1")
    e("s_waitcnt vmcnt(0)")
    e("v_readfirstlane_b32 s60, v21")
    e("s_nop 3")
    e("s_cmp_lt_u32 s60, 31")
    e(f"s_cbranch_scc1 {lab}")
    e(f"buffer_store_dword v21, v17, s[72:75], 0 offen offset:{128 + 64 * which} sc1")
    e.label(lab)
    e("s_mov_b64 exec, -1")


def loader(e):
    e.label("LOADER")
    e.vm = []
    e.nbar = 0
    e("s_lshl_b32 s63, s56, 8")
    e("v_mul_u32_u24 v8, 3584, v6")
    e("v_lshlrev_b32 v7, 1, v6")
    e("v_and_b32 v10, 15, v1")
    e("v_xor_b32 v7, v7, v10")
    e("v_lshl_add_u32 v4, v7, 4, v8")
    e("v_mov_b32 v5, v4")
    e("v_xor_b32 v7, 8, v7")
    e("v_lshl_add_u32 v9, v7, 4, v8")
    e("v_mov_b32 v10, v9")
    e(f"s_mov_b32 s65, {4 * 3584}")
    e(f"s_mov_b32 s66, {64 * 3584}")
    e("s_lshl_b32 s67, s3, 14")
    e(f"s_add_u32 s67, s67, {W_BASE - 16384}")
    e("s_add_u32 s69, s67, 32768")
    e("s_add_u32 s70, s69, 32768")
    e("s_mov_b32 s34, %d" % (512 * 3584))
    e("s_cmp_lg_u32 s3, 0")
    e("s_cbranch_scc1 LD_W")
    x_dma_voff(e)
    e("v_mov_b32 v9, v4")
    e("v_mov_b32 v10, v5")
    e("s_lshl_b32 s63, s31, 17")
    e("s_mov_b32 s65, 8192")
    e("s_mov_b32 s66, 128")
    e("s_mov_b32 s67, 0")
    e(f"s_mov_b32 s69, {X_BASE[1]}")
    e(f"s_mov_b32 s70, {X_BASE[2]}")
    e("s_mov_b32 s34, %d" % (2048 * 1024))
    e.label("LD_W")
    e("s_mov_b32 s35, 0x00020000")
    e("s_waitcnt lgkmcnt(0)")
    stamp(e, 2)
    e("s_cmp_eq_u32 s3, 1")
    e("s_cselect_b32 s32, s16, s18")
    e("s_cselect_b32 s33, s17, s19")
    e("s_cmp_eq_u32 s3, 0")
    e("s_cselect_b32 s32, s4, s32")
    e("s_cselect_b32 s33, s5, s33")

    def dma(kc, n0=0, n1=16):
        sb = (67, 69, 70)[stage(kc)]
        so = 60 + (kc & 1)
        if n0 == 0:
            e(f"s_add_u32 s59, s58, {kc}")
            e("s_and_b32 s59, s59, 7")
            e(f"s_mul_i32 s{so}, s66, s59")
            e(f"s_add_u32 s{so}, s{so}, s63")
        for n in range(n0, n1):
            e(f"s_add_u32 m0, s{sb}, {n * 1024}")
            if n > 0:
                e(f"s_add_u32 s{so}, s{so}, s65")
            else:
                e("s_nop 0")
            e.vmem(f"buffer_load_dwordx4 v{(4, 5, 9, 10)[n & 3]}, s[32:35], s{so} offen lds", f"c{kc}")

    LA = int(os.environ.get("LA", "11"))
    dma(0)
    dma(1, 0, LA)
    srd(e, 48, 28, WS_SIZE)
    e.wait_vm("c0")
    e.bar()
    stamp(e, 3)
    for kc in range(7):
        dma(kc + 1, LA, 16)
        if kc + 2 < 8:
            dma(kc + 2, 0, LA)
        if kc == 6:
            kv_piece(e, (0, 3, 4))
        e.wait_vm(f"c{kc+1}")
        fs(e, 4 + kc)
        e.bar()
        if kc == 3:
            cs(e, 4)
    kv_piece(e, (1, 5, 6))
    e.bar()
    cs(e, 5)
    e("s_cmp_eq_u32 s3, 2")
    e("s_cbranch_scc1 KVP_SKIP")
    kv_piece(e, (7, 2, 2))
    e.label("KVP_SKIP")
    e.wait_all()
    cs(e, 6)
    e.bar()
    cs(e, 7)
    e("s_branch DOWN")
    return e.nbar


def wq_voff(e):
    e("v_lshrrev_b32 v7, 2, v1")
    e("v_and_b32 v8, 3, v1")
    e("v_lshlrev_b32 v8, 4, v8")
    e("v_lshl_add_u32 v4, v7, 10, v8")
    e("v_and_b32 v7, 32, v1")
    e("v_xor_b32 v4, v4, v7")


def service(e):
    e.label("SERVICE")
    e.vm = []
    e.nbar = 0
    wq_voff(e)
    e("s_lshl_b32 s63, s56, 6")
    e("s_waitcnt lgkmcnt(0)")
    stamp(e, 2)
    srd(e, 32, 6, 512 * 1024)

    def dma(kc):
        e(f"s_add_u32 s59, s58, {kc}")
        e("s_and_b32 s59, s59, 7")
        e("s_lshl_b32 s60, s59, 16")
        e("s_add_u32 s60, s60, s63")
        for n in range(4):
            e(f"s_mov_b32 m0, {QS_BASE + stage(kc) * 4096 + n * 1024}")
            e("s_add_u32 s60, s60, 16384" if n else "s_nop 0")
            e.vmem("buffer_load_dwordx4 v4, s[32:35], s60 offen lds", f"c{kc}")
    dma(0)
    dma(1)
    srd(e, 48, 28, WS_SIZE)
    srd(e, 72, 26, 0 if "noflag" in OPT else 256)
    e.wait_vm("c0")
    e.bar()
    stamp(e, 3)
    for kc in range(7):
        if kc + 2 < 8:
            dma(kc + 2)
        if kc == 5:
            cnt_spin(e, 0)
        e.wait_vm(f"c{kc+1}")
        fs(e, 4 + kc)
        e.bar()
        if kc == 3:
            cs(e, 4)
    e.bar()
    cs(e, 5)
    cnt_spin(e, 1)
    cs(e, 6)
    e.bar()
    cs(e, 7)
    return e.nbar


def down(e):
    e.label("DOWN")
    e.vm = []
    e.nbar = 0
    srd(e, 44, 20, 1792 * 1024)
    e("s_mul_i32 s32, s76, 224")
    e("s_mul_i32 s60, s3, 28")
    e("s_add_u32 s32, s32, s60")
    e("s_lshl_b32 s32, s32, 10")
    e(f"s_add_u32 s32, s32, {WS_HF}")
    e(f"s_add_u32 s33, s32, {112*1024}")
    e("s_lshl_b32 s36, s60, 14")
    e("s_lshl_b32 s61, s77, 7")
    e("s_add_u32 s36, s36, s61")
    e(f"s_mul_i32 s37, s3, {NBW * 2048}")
    e(f"s_add_u32 s37, s37, {WD_BASE}")
    e("s_setprio 3")
    dma_voff128(e, 4, 7, 8)
    tr_addr128(e, 9, 10, 7, 8)
    e("v_add_u32 v9, s37, v9")
    e("v_add_u32 v10, s37, v10")
    e("s_lshl_b32 s62, s76, 9")
    e("s_lshl_b32 s60, s3, 7")
    e("s_add_u32 s62, s62, s60")
    e(f"s_add_u32 s62, s62, {WS_FL}")
    DAC = 24
    WB = 88
    HB = 104
    WE = 136
    srd(e, 40, 12, 512 * 1024)
    e("s_lshl_b32 s38, s3, 17")
    e("s_add_u32 s38, s38, s61")
    e("s_lshl_b32 s39, s95, 1")
    e("s_add_u32 s39, s39, s94")
    e("s_cmp_ge_u32 s39, 7")
    e("s_cselect_b32 s60, 7, 0")
    e("s_sub_u32 s39, s39, s60")
    if "nodrot" in OPT:
        e("s_mov_b32 s39, 0")

    def group(reg_w, reg_h):
        if reg_w:
            e("s_lshl_b32 s67, s39, 16")
            e("s_add_u32 s67, s67, s36")
        if reg_h:
            e("s_lshl_b32 s60, s39, 12")
            e("s_add_u32 s68, s60, s32")
            e("s_add_u32 s69, s60, s33")
            e("s_add_u32 s39, s39, 1")
            e("s_cmp_eq_u32 s39, 7")
            e("s_cselect_b32 s39, 0, s39")
    def wload(ks):
        for u in range(2):
            e(f"s_add_u32 m0, s37, {(ks % NBW) * 2048 + u * 1024}")
            e(f"s_add_u32 s60, s67, {(ks & 3) * 16384 + u * 8192}")
            e.vmem("buffer_load_dwordx4 v4, s[44:47], s60 offen lds", f"w{ks}")
    def woload(j, par, tag):
        for u in range(2):
            e(f"s_add_u32 m0, s37, {j * 2048 + u * 1024}")
            e(f"s_add_u32 s60, s38, {(2 * j + par) * 16384 + u * 8192}")
            e.vmem("buffer_load_dwordx4 v4, s[40:43], s60 offen lds", tag)
    def hload(ks):
        f = HB + 8 * (ks & 3)
        for t in range(2):
            e.vmem(f"buffer_load_dwordx4 {vr(f+4*t,4)}, v2, s[48:51], s{68+t} offen offset:{(ks & 3) * 1024} sc1", f"h{ks}")
    def wread(f, slot):
        for m in range(2):
            for rho in range(2):
                e(f"ds_read_b64_tr_b16 {vr(f+4*m+2*rho,2)}, v{9+m} offset:{slot * 2048 + rho * 1024}")

    e("s_cmp_ge_u32 s56, 14")
    e("s_cbranch_scc1 H_SKIP")
    e("v_add_u32 v7, s37, v2")
    for n in range(8):
        e(f"ds_read_b128 {vr(HB+4*n,4)}, v7 offset:{n*1024}")
    e("s_lshl_b32 s64, s31, 2")
    e("s_and_b32 s60, s3, 2")
    e("s_add_u32 s64, s64, s60")
    e("s_mul_i32 s64, s64, 112")
    e("s_lshl_b32 s60, s56, 1")
    e("s_and_b32 s61, s3, 1")
    e("s_add_u32 s66, s60, s61")
    e("s_lshl_b32 s60, s66, 2")
    e("s_add_u32 s64, s64, s60")
    e("s_lshl_b32 s64, s64, 10")
    e(f"s_add_u32 s64, s64, {WS_HF}")
    e(f"s_add_u32 s65, s64, {112*1024}")
    e("s_mul_i32 s60, s66, 37")
    e("s_lshr_b32 s60, s60, 8")
    e("s_mul_i32 s61, s60, 25")
    e("s_add_u32 s66, s66, s61")
    e("s_lshl_b32 s66, s66, 2")
    e("s_lshl_b32 s60, s31, 10")
    e("s_add_u32 s66, s66, s60")
    e("s_and_b32 s60, s3, 2")
    e("s_lshl_b32 s60, s60, 8")
    e("s_add_u32 s66, s66, s60")
    e(f"s_add_u32 s66, s66, {WS_FL}")
    e("s_waitcnt lgkmcnt(0)")
    for n in range(8):
        u, t, k = n >> 2, (n >> 1) & 1, n & 1
        e(f"buffer_store_dwordx4 {vr(HB+4*n,4)}, v2, s[48:51], s{64+t} offen offset:{(2*u+k)*1024} sc1")
        HT = int(os.environ.get("HT", "63"))
        if HT < 63:
            e(f"s_waitcnt vmcnt({HT})")
    f2(e, 4)
    e("v_mov_b32 v12, 1")
    e("v_mov_b32 v11, 0")
    e("s_waitcnt vmcnt(0)")
    f2(e, 5)
    e("s_mov_b64 exec, 1")
    e("buffer_store_dword v12, v11, s[48:51], s66 offen sc1")
    e("s_mov_b64 exec, -1")
    e.label("H_SKIP")
    f2(e, 6); f2(e, 7)
    for j in range(4):
        woload(j, 0, "we")
    e("v_and_b32 v7, 31, v1")
    e("v_lshlrev_b32 v7, 2, v7")
    e("s_lshl_b32 s60, s76, 8")
    e(f"s_add_u32 s60, s60, {WS_G}")
    e("buffer_load_dword v14, v7, s[48:51], s60 offen sc1")
    e("buffer_load_dword v16, v7, s[48:51], s60 offen offset:128 sc1")
    e.wait_all()
    for j in range(4):
        wread(WE + 8 * j, j)
    e("v_sub_f32 v14, 1.0, v14")
    e("v_sub_f32 v16, 1.0, v16")
    e("v_mov_b32 v15, v14")
    e("v_mov_b32 v17, v16")
    e("s_waitcnt lgkmcnt(0)")
    group(True, False)
    for ks in range(NBW):
        wload(ks)

    def fl_ld():
        e("s_mov_b64 exec, 0x7f")
        e("buffer_load_dword v20, v3, s[48:51], s62 offen sc1")
        e("s_mov_b64 exec, -1")
    def fl_ck():
        e("s_mov_b64 exec, 0x7f")
        e("v_cmp_ne_u32 vcc, 1, v20")
        e("s_mov_b64 exec, -1")
    if "slp" in OPT:
        e("s_sleep 100")
    spin(e, fl_ld, fl_ck, 16)
    e("s_setprio %s" % os.environ.get("HP", "0"))
    cs(e, 8)
    group(False, True)
    for ks in range(4):
        hload(ks)
    wread(WB, 0)
    for ks in range(28):
        e("s_waitcnt lgkmcnt(0)")
        if ks % 4 == 0 and ks + 4 < 28:
            group(True, True)
        if ks + 4 < 28:
            wload(ks + 4)
        else:
            woload(ks & 3, 1, "wodd")
        if ks + 1 < 28:
            e.wait_vm(f"w{ks+1}")
            wread(WB + 8 * ((ks + 1) & 1), (ks + 1) & 3)
        e.wait_vm(f"h{ks}")
        f = WB + 8 * (ks & 1)
        h = HB + 8 * (ks & 3)
        for m in range(2):
            for t in ((0, 1), (1, 0))[m]:
                d = DAC + 32 * m + 16 * t
                c = "0" if ks == 0 else vr(d, 16)
                e(f"v_mfma_f32_32x32x16_bf16 {vr(d,16)}, {vr(f+4*m,4)}, {vr(h+4*t,4)}, {c}")
        if ks + 4 < 28:
            hload(ks + 4)
    cs(e, 9)
    e("s_setprio 3")
    e("s_lshl_b32 s64, s76, 16")
    e("s_lshl_b32 s60, s3, 13")
    e("s_add_u32 s64, s64, s60")
    e(f"s_add_u32 s64, s64, {WS_OF}")
    e("s_add_u32 s65, s64, 4096")
    e("s_add_u32 s66, s64, 32768")
    e("s_add_u32 s67, s64, 36864")
    e("s_lshl_b32 s60, s3, 14")
    e("v_add_u32 v6, s60, v2")
    e("s_nop 7")
    for m in range(2):
        for t in range(2):
            for r in range(0, 16, 2):
                d = DAC + 32 * m + 16 * t + r
                e(f"v_pk_mul_f32 {vr(d,2)}, {vr(d,2)}, v[{14+2*t}:{15+2*t}]")

    def oe_ld():
        for j in range(4):
            for t in range(2):
                e(f"buffer_load_dwordx4 {vr(HB+8*j+4*t,4)}, v2, s[48:51], s{64+2*t+(j>>1)} offen offset:{(j&1)*2048} sc1")
    def oe_ck():
        e(f"v_max_u32 v11, v{HB}, v{HB+1}")
        for r in range(1, 16):
            e(f"v_max3_u32 v11, v11, v{HB+2*r}, v{HB+2*r+1}")
        e("v_cmp_eq_u32 vcc, -1, v11")
    spin(e, oe_ld, oe_ck, 12)
    e("s_setprio 0")
    for j in range(4):
        for m in range(2):
            for t in range(2):
                d = DAC + 32 * m + 16 * t
                e(f"v_mfma_f32_32x32x16_bf16 {vr(d,16)}, {vr(WE+8*j+4*m,4)}, {vr(HB+8*j+4*t,4)}, {vr(d,16)}")
    e("s_nop 15")
    cs(e, 10)
    e.bar()
    for q in range(16):
        e(f"ds_write_b128 v6, {vr(DAC+4*q,4)} offset:{q*1024}")
    e("s_waitcnt lgkmcnt(0)")
    e.bar()
    stamp(e, 11); stamp(e, 12); stamp(e, 13, True)
    stamp_flush(e, 14)
    e("s_endpgm")
    return e.nbar


SP_XB = 65536
SP_WQ = 131072


def sp_xload(e, rows_sgpr, lds_sgpr, chunk_sgpr):
    e(f"s_lshl_b32 s60, s{chunk_sgpr}, 7")
    e(f"s_add_u32 s60, s60, s{rows_sgpr}")
    e(f"s_lshl_b32 s61, s{chunk_sgpr}, 13")
    e(f"s_add_u32 s61, s61, {lds_sgpr}")
    for n in range(8):
        e(f"s_add_u32 m0, s61, {n * 1024}")
        e("s_add_u32 s60, s60, 8192" if n else "s_nop 0")
        e(f"buffer_load_dwordx4 v{4 + (n & 1)}, s[32:35], s60 offen lds")


def sp_start(e):
    e.label("SP_START")
    e("s_lshl_b32 s60, s31, 1")
    e("s_add_u32 s60, s60, s56")
    e("s_sub_u32 s97, s60, 14")
    e("s_lshl_b32 s63, s97, 16")
    x_dma_voff(e)
    e("s_waitcnt lgkmcnt(0)")
    srd(e, 32, 4, 2048 * 1024)
    e("s_cmp_ge_u32 s30, 8")
    e("s_cbranch_scc1 SP_START_H")
    sp_xload(e, 63, 0, 30)
    e("s_branch COMPUTE")
    e.label("SP_START_H")
    e("s_cmp_lt_u32 s3, 2")
    e("s_cselect_b32 s36, s8, s10")
    e("s_cselect_b32 s37, s9, s11")
    e("s_mov_b32 s38, 16384")
    e("s_mov_b32 s39, 0x00020000")
    e("s_lshl_b32 s61, s3, 13")
    e("s_and_b32 s62, s61, 0x2000")
    for n in range(8):
        if n % 4 == 0:
            e(f"s_add_u32 m0, s61, {SP_XB + n * 1024}")
            e(f"s_add_u32 s60, s62, {n * 1024}")
        e(f"buffer_load_dwordx4 v2, s[36:39], s60 offen offset:{(n & 3) * 1024} lds")
    e("s_branch SP_HELPER")


def sp_helper(e):
    e.label("SP_HELPER")
    e.vm = []
    e.nbar = 0
    e("v_mov_b32 v16, 0")
    stamp(e, 2)
    srd(e, 48, 28, WS_SIZE)
    srd(e, 72, 26, 0 if "noflag" in OPT else 256)
    e.wait_all()
    e.bar()
    stamp(e, 3)
    srd(e, 36, 22, 1024)
    e(f"s_mov_b32 m0, {SP_XB + 32768}")
    e("v_lshrrev_b32 v7, 2, v1")
    e("buffer_load_dwordx4 v2, s[36:39], 0 offen lds")
    e("v_and_b32 v8, 3, v1")
    e("v_lshlrev_b32 v8, 4, v8")
    e("v_lshl_add_u32 v9, v7, 10, v8")
    srd(e, 40, 6, 512 * 1024)
    e("s_lshl_b32 s60, s3, 17")
    e("s_lshl_b32 s62, s56, 6")
    e("s_add_u32 s60, s60, s62")
    e("s_lshl_b32 s61, s3, 13")
    for n in range(8):
        e(f"s_add_u32 m0, s61, {SP_WQ + n * 1024}")
        e("s_add_u32 s60, s60, 16384" if n else "s_nop 0")
        e("buffer_load_dwordx4 v9, s[40:43], s60 offen lds")
    e("s_lshl_b32 s60, s97, 9")
    e("s_lshl_b32 s61, s3, 7")
    e("s_add_u32 s60, s60, s61")
    e(f"s_add_u32 s60, s60, {WS_FL}")
    e("s_mov_b64 exec, 0xff")
    e("buffer_store_dword v16, v3, s[48:51], s60 offen sc1")
    e("s_mov_b64 exec, -1")
    for r in range(4):
        e(f"v_mov_b32 v{12+r}, -1")
    e("s_xor_b32 s63, s97, 1")
    e("s_lshl_b32 s63, s63, 16")
    e.wait_all()
    e.bar()
    cs(e, 4)
    e("s_cmp_lg_u32 s3, 3")
    e("s_cbranch_scc1 SPH_A")
    cnt_arrive(e, 0)
    e.label("SPH_A")
    e("s_lshl_b32 s60, s97, 16")
    e("s_lshl_b32 s61, s3, 14")
    e("s_add_u32 s60, s60, s61")
    e(f"s_add_u32 s60, s60, {WS_OF}")
    for n in range(16):
        if n % 4 == 0:
            e(f"s_add_u32 s61, s60, {n * 1024}")
        e(f"buffer_store_dwordx4 v[12:15], v2, s[48:51], s61 offen offset:{(n & 3) * 1024} sc1")
    e.bar()
    for u in range(2):
        e("s_lshl_b32 s62, s3, 1")
        e(f"s_add_u32 s62, s62, {u}")
        sp_xload(e, 63, SP_XB, 62)
    e.wait_all()
    e.bar()
    cs(e, 5)
    e("s_cmp_lg_u32 s3, 3")
    e("s_cbranch_scc1 SPH_C")
    cnt_arrive(e, 1)
    e.label("SPH_C")
    e("s_cmp_lg_u32 s3, 3")
    e("s_cbranch_scc1 SPH_B")
    cnt_spin(e, 0)
    e.label("SPH_B")
    e.wait_all()
    e.bar()
    e.bar()
    kv_piece(e, (0, 1, 2, 3))
    kv_piece(e, (4, 5, 6, 7))
    e("s_cmp_lg_u32 s3, 3")
    e("s_cbranch_scc1 SPH_D")
    cnt_spin(e, 1)
    e.label("SPH_D")
    e.wait_all()
    cs(e, 6)
    e.bar()
    cs(e, 7)
    e("s_branch DOWN")
    return e.nbar


def sp_compute(e):
    e.label("SP_COMPUTE")
    e.vm = []
    e.nbar = 0
    A = 64
    srd(e, 48, 28, WS_SIZE)
    srd(e, 52, 24, 2048 * 1024)
    stamp(e, 2)

    def xaddr(base):
        e("v_and_b32 v14, 31, v1")
        e("v_lshrrev_b32 v15, 5, v1")
        e("v_bfe_u32 v16, v1, 1, 3")
        e("v_xor_b32 v16, v16, v15")
        e("s_and_b32 s60, s30, 1")
        e("s_lshl_b32 s60, s60, 12")
        e(f"s_add_u32 s60, s60, {base}")
        e("v_lshlrev_b32 v17, 7, v14")
        e("v_add_u32 v17, s60, v17")
        for s in range(4):
            e(f"v_xor_b32 v18, {2*s}, v16")
            e(f"v_lshl_add_u32 v{10+s}, v18, 4, v17")
        e("v_bfe_u32 v16, v1, 2, 2")
        e("v_lshl_add_u32 v17, v15, 3, v16")
        e("v_and_b32 v18, 3, v1")
        e("v_lshlrev_b32 v18, 3, v18")
        for r in range(16):
            e(f"v_mov_b32 v{A+r}, 0")

    def chain(kind):
        lab = e.newlabel("CH")
        rs = {"K": 32, "V": 32, "Q": 64, "G": 2}[kind]
        if kind in "KV":
            e("v_lshl_add_u32 v14, v17, 5, v18")
            e(f"v_add_u32 v14, {SP_XB + (16384 if kind == 'V' else 0)}, v14")
        elif kind == "Q":
            e("v_lshl_add_u32 v14, v17, 6, v18")
            e("v_bfe_u32 v19, v1, 4, 1")
            e("v_lshl_add_u32 v14, v19, 5, v14")
            e(f"v_add_u32 v14, {SP_WQ}, v14")
        else:
            e("v_lshlrev_b32 v14, 4, v15")
            e(f"v_add_u32 v14, {SP_XB + 32768}, v14")
        def rd(s):
            e(f"ds_read_b128 {vr(24+4*s,4)}, v{10+s}")
            if kind == "G":
                e(f"ds_read_b128 {vr(40+4*s,4)}, v14 offset:{s*32}")
            else:
                for rho in range(2):
                    e(f"ds_read_b64_tr_b16 {vr(40+4*s+2*rho,2)}, v14 offset:{(16*s+4*rho)*rs}")
            e(f"v_add_u32 v{10+s}, 0x2000, v{10+s}")
            if s == 3:
                e(f"v_add_u32 v14, {64*rs}, v14")
        nrd = 2 if kind == "G" else 3
        for s in range(4):
            rd(s)
        e("s_mov_b32 s60, 8")
        e.label(lab)
        for s in range(4):
            e(f"s_waitcnt lgkmcnt({3 * nrd})")
            a, b = vr(40+4*s, 4), vr(24+4*s, 4)
            if kind == "V":
                a, b = b, a
            e(f"v_mfma_f32_32x32x16_bf16 {vr(A,16)}, {a}, {b}, {vr(A,16)}")
            rd(s)
        e("s_sub_u32 s60, s60, 1")
        e("s_cmp_lg_u32 s60, 0")
        e(f"s_cbranch_scc1 {lab}")
        e("s_waitcnt lgkmcnt(0)")

    xaddr(0)
    e("s_lshl_b32 s98, s97, 1")
    e("s_and_b32 s60, s30, 1")
    e("s_add_u32 s98, s98, s60")
    e.wait_all()
    e.bar()
    stamp(e, 3)
    e("s_lshr_b32 s99, s30, 1")
    e("s_cmp_eq_u32 s99, 1")
    e("s_cbranch_scc1 SPC_V")
    e("s_cmp_eq_u32 s99, 2")
    e("s_cbranch_scc1 SPC_G")
    e("s_cmp_eq_u32 s99, 3")
    e("s_cbranch_scc1 SPC_Q")
    chain("K")
    e(f"s_mov_b32 s60, {fbits(0.25 * LOG2E)}")
    e("v_and_b32 v14, 0x33, v1")
    e("v_bfe_u32 v15, v1, 2, 1")
    e("v_lshl_add_u32 v14, v15, 3, v14")
    e("v_bfe_u32 v15, v1, 3, 1")
    e("v_lshl_add_u32 v14, v15, 2, v14")
    e("v_lshlrev_b32 v14, 4, v14")
    e("s_nop 4")
    for r in range(8):
        e(f"v_mul_f32 v{A+r}, s60, v{A+r}")
    e(f"v_mul_f32 v18, v{A}, v{A}")
    for r in range(1, 8):
        e(f"v_fmac_f32 v18, v{A+r}, v{A+r}")
    for r in range(4):
        e(f"v_cvt_pk_bf16_f32 v{A+8+r}, v{A+2*r}, v{A+2*r+1}")
    e("s_lshl_b32 s60, s98, 11")
    e(f"s_add_u32 s60, s60, {WS_KV}")
    e(f"buffer_store_dwordx4 {vr(A+8,4)}, v14, s[48:51], s60 offen sc1")
    allreduce(e, "v_add_f32", 18, 19, 5, 6)
    allreduce(e, "v_max_f32", 18, 19, 0, 5)
    e("s_lshl_b32 s60, s98, 2")
    e(f"s_add_u32 s60, s60, {WS_KN}")
    e("s_mov_b64 exec, 1")
    e("buffer_store_dword v18, v3, s[48:51], s60 offen sc1")
    e("s_mov_b64 exec, -1")
    e("s_branch SPC_KV_DONE")
    e.label("SPC_V")
    chain("V")
    e("s_nop 9")
    for r in range(8):
        e(f"v_cvt_pk_bf16_f32 v{A+r}, v{A+2*r}, v{A+2*r+1}")
    e("s_lshl_b32 s60, s98, 11")
    e(f"s_add_u32 s60, s60, {WS_KV + 1024}")
    e("s_mov_b32 exec_lo, 0xffff")
    e("s_mov_b32 exec_hi, 0xffff")
    e(f"buffer_store_dwordx4 {vr(A,4)}, v2, s[48:51], s60 offen sc1")
    e(f"buffer_store_dwordx4 {vr(A+4,4)}, v2, s[48:51], s60 offen offset:256 sc1")
    e("s_mov_b64 exec, -1")
    e.label("SPC_KV_DONE")
    e("s_waitcnt vmcnt(0)")
    e("s_barrier")
    e("s_barrier")
    e("s_barrier")
    e("s_barrier")
    e("s_branch SPC_JOIN")
    e.label("SPC_G")
    e("s_barrier")
    chain("G")
    e("s_barrier")
    e("s_nop 9")
    e(f"v_mul_f32 v18, {fbits(-LOG2E)}, v{A}")
    e("v_exp_f32 v18, v18")
    e("s_lshl_b32 s60, s98, 7")
    e("v_add_f32 v18, 1.0, v18")
    e("v_rcp_f32 v20, v18")
    e(f"s_add_u32 s60, s60, {WS_G}")
    e("s_mov_b32 exec_hi, 0")
    e("buffer_store_dword v20, v3, s[48:51], s60 offen sc1")
    e("s_mov_b64 exec, -1")
    xaddr(SP_XB)
    e("s_xor_b32 s98, s98, 2")
    e("s_waitcnt vmcnt(0)")
    e("s_barrier")
    chain("Q")
    e("s_branch SPC_QW")
    e.label("SPC_Q")
    e.bar()
    chain("Q")
    e.bar()
    e.bar()
    e.label("SPC_QW")
    e.bar()
    e("s_and_b32 s60, s98, 3")
    e("s_nop 2")
    e("s_lshl_b32 s60, s60, 12")
    e(f"s_add_u32 s60, s60, {WD_BASE}")
    e("v_add_u32 v14, s60, v2")
    e("v_xor_b32 v15, 0x4000, v14")
    e("s_nop 3")
    for r in range(8):
        e(f"v_cvt_pk_bf16_f32 v{A+r}, v{A+2*r}, v{A+2*r+1}")
    e(f"ds_write_b128 v14, {vr(A,4)}")
    e(f"ds_write_b128 v15, {vr(A+4,4)}")
    e("s_waitcnt lgkmcnt(0)")
    e.label("SPC_JOIN")
    cs(e, 4); cs(e, 5)
    e(f"s_mov_b32 s60, {WS_KN}")
    e("buffer_load_dword v10, v3, s[48:51], s60 offen sc1")
    e("s_lshl_b32 s62, s30, 12")
    e(f"s_add_u32 s62, s62, {WD_BASE}")
    e("v_add_u32 v14, s62, v2")
    e.bar()
    e(f"ds_read_b128 {vr(R_Q,4)}, v14")
    for l in att_init():
        e(l)
    e("s_waitcnt vmcnt(0)")
    allreduce(e, "v_max_f32", 10, 12, 0, 6)
    e("s_waitcnt lgkmcnt(0)")
    e("s_branch QJOIN")
    return e.nbar


R_O = 16; R_VF = [32, 40]; R_Q = 48; R_C = 52; R_KF = [68, 72, 76, 80]; R_S = [88, 104]


def att_init():
    L = ["v_and_b32 v12, %d, v1" % (31 if "one1" in OPT else 27),
         "v_cmp_eq_u32 vcc, 16, v12",
         "v_mov_b32 v12, 0x3f803f80",
         "v_mov_b32 v8, 0xdddd",
         f"v_cndmask_b32 v{R_VF[0]}, 0, v12, vcc"]
    L += [f"v_mov_b32 v{R_VF[0]+1}, v{R_VF[0]}"]
    L += [f"v_mov_b64 {vr(R_VF[0]+r,2)}, {vr(R_VF[0],2)}" for r in range(2, 16, 2)]
    L += [f"v_mov_b64 {vr(R_O+r,2)}, 0" for r in range(0, 16, 2)]
    L += ["v_mov_b32 v13, v2", "v_mov_b32 v11, 0"]
    return L


def compute(e):
    e.label("COMPUTE")
    e("s_lshr_b32 s60, s30, 2")
    e("s_lshl_b32 s96, s31, 2")
    e("s_and_b32 s61, s30, 3")
    e("s_add_u32 s96, s96, s61")
    e("s_lshl_b32 s96, s96, 4")
    e("s_add_u32 s96, s96, s56")
    e("s_lshl_b32 s96, s96, 1")
    e("s_add_u32 s96, s96, s60")
    e("s_lshl_b32 s96, s96, 10")
    e("s_mov_b32 s40, 0xffff")
    e("s_mov_b32 s41, 0xffff")
    e("s_cmp_ge_u32 s56, 14")
    e("s_cbranch_scc1 SP_COMPUTE")
    e.vm = []
    e.nbar = 0
    if "pf" in OPT:
        e("s_getpc_b64 s[44:45]")
        e.label("PC_REF")
        e(f"s_sub_u32 s44, s44, PC_REF-{NAME}_kernel")
        e("s_subb_u32 s45, s45, 0")
        e("s_and_b32 s60, s94, 3")
        e("s_lshl_b32 s60, s60, 3")
        e("s_add_u32 s60, s60, s30")
        e("s_lshl_b32 s60, s60, 10")
        e(f"s_min_u32 s60, s60, CODE_END-{NAME}_kernel-1024")
        e("v_add_u32 v24, s60, v2")
        e("global_load_dwordx4 v[24:27], v24, s[44:45]")
    XA = 160
    e("v_and_b32 v14, 15, v1")
    e("v_bfe_u32 v16, v1, 1, 3")
    e("v_xor_b32 v16, v16, v6")
    e("s_and_b32 s60, s30, 3")
    e("s_lshl_b32 s60, s60, 12")
    e("v_lshlrev_b32 v17, 7, v14")
    e("v_add_u32 v17, s60, v17")
    for s in range(2):
        e(f"v_xor_b32 v18, {4*s}, v16")
        e(f"v_lshl_add_u32 v{XA+s}, v18, 4, v17")
        e(f"v_xor_b32 v{XA+2+s}, 0x1000, v{XA+s}")
        e(f"v_add_u32 v{XA+4+s}, {X_BASE[2]}, v{XA+s}")
        e(f"v_add_u32 v{XA+6+s}, {X_BASE[2]}, v{XA+2+s}")
    e("s_lshr_b32 s60, s30, 2")
    e("s_lshl_b32 s92, s60, 1")
    e("s_and_b32 s61, s30, 1")
    e("s_add_u32 s92, s92, s61")
    e("v_bfe_u32 v16, v1, 2, 2")
    e("v_lshl_add_u32 v17, v6, 3, v16")
    e("v_and_b32 v19, 3, v1")
    e("v_and_b32 v18, 1, v6")
    e("v_xor_b32 v14, s60, v18")
    e("v_lshlrev_b32 v9, 6, v17")
    e("v_lshl_add_u32 v9, v14, 5, v9")
    e("v_and_b32 v14, 1, v1")
    e("v_lshl_add_u32 v9, v14, 4, v9")
    e("v_bfe_u32 v14, v1, 1, 1")
    e("v_lshl_add_u32 v9, v14, 3, v9")
    e("v_lshl_add_u32 v18, v18, 2, v16")
    e("s_lshl_b32 s61, s92, 1")
    e("v_xor_b32 v18, s61, v18")
    e("v_lshlrev_b32 v4, 8, v17")
    e("v_lshl_add_u32 v4, v18, 5, v4")
    e("v_lshl_add_u32 v4, v19, 3, v4")
    e("s_and_b32 s60, s30, 2")
    e("s_lshl_b32 s60, s60, 1")
    e("s_add_u32 s60, s60, s92")
    e("s_lshl_b32 s60, s60, 1")
    e("s_and_b32 s61, s30, 1")
    e("s_add_u32 s60, s60, s61")
    e("s_lshl_b32 s60, s60, 11")
    e(f"s_add_u32 s60, s60, {WD_BASE}")
    e("v_and_b32 v14, 15, v1")
    e("v_lshlrev_b32 v14, 4, v14")
    e("v_and_b32 v15, 1, v6")
    e("v_lshl_add_u32 v14, v15, 9, v14")
    e("v_lshrrev_b32 v15, 1, v6")
    e("v_lshl_add_u32 v14, v15, 3, v14")
    e("v_add_u32 v14, s60, v14")
    e("v_xor_b32 v15, 0x800, v14")
    e("v_xor_b32 v5, 32, v4")
    e(f"v_add_u32 v4, {W_BASE}, v4")
    e(f"v_add_u32 v5, {W_BASE}, v5")
    e("v_add_u32 v6, 0x10000, v4")
    e("v_add_u32 v7, 0x10000, v5")
    e("s_waitcnt lgkmcnt(0)")
    srd(e, 48, 28, WS_SIZE)
    srd(e, 52, 24, 2048 * 1024)
    e(f"s_mov_b32 s64, {fbits(-LOG2E)}")
    e(f"s_mov_b32 s65, {fbits(-LOG2E)}")
    e("s_mov_b32 s66, 1.0")
    e("s_mov_b32 s67, 1.0")
    e("s_waitcnt vmcnt(0)")
    stamp(e, 2)

    ACC = 88
    QACC = 152
    FR = [16, 52]

    def reads(kc, s, fb):
        st = stage(kc)
        f = FR[fb]
        L = []
        for rho in range(2):
            L.append(f"ds_read_b64_tr_b16 {vr(f + 16 + 2*rho, 2)}, v9 offset:{QS_BASE + st * 4096 + (32 * s + 4 * rho) * 64}")
        for t in range(4):
            a = XA + (4 if st == 2 else 0) + 2 * (t >> 1) + s
            L.append(f"ds_read_b128 {vr(f + 4*t, 4)}, v{a} offset:{(X_BASE[st] if st < 2 else 0) + (t & 1) * 2048}")
        for jj in range(4):
            m, j = jj >> 1, jj & 1
            for rho in range(2):
                off = st * 32768 + m * 16384 + (32 * s + 4 * rho) * 256
                a = 4 + j
                if off >= 65536:
                    off -= 65536
                    a += 2
                L.append(f"ds_read_b64_tr_b16 {vr(f + 20 + 4*jj + 2*rho, 2)}, v{a} offset:{off}")
        return L

    def mfmas(fb, first):
        f = FR[fb]
        L = []
        for t in range(2):
            d = QACC + 4 * t
            L.append(f"v_mfma_f32_16x16x32_bf16 {vr(d,4)}, {vr(f+16,4)}, {vr(f+4*t,4)}, " + ("0" if first else vr(d, 4)))
        for jj in range(4):
            for t in ((1, 0, 2, 3) if jj == 0 else (3, 2, 1, 0) if jj & 1 else (0, 1, 2, 3)):
                d = ACC + 16 * jj + 4 * t
                L.append(f"v_mfma_f32_16x16x32_bf16 {vr(d,4)}, {vr(f+20+4*jj,4)}, {vr(f+4*t,4)}, " + ("0" if first else vr(d, 4)))
        return L

    Q = R_Q; IDX = 8; C = R_C; O = R_O; S = R_S; KF = R_KF; VF = R_VF
    e.bar()
    stamp(e, 3)
    for l in reads(0, 0, 0):
        e(l)
    for kc in range(8):
        for s in range(2):
            e("s_waitcnt lgkmcnt(0)")
            per = 1
            if s == 0:
                rl = reads(kc, 1, 1)
                if kc == 7:
                    rl = rl + [f"s_mov_b32 s60, {WS_KN}", "buffer_load_dword v10, v3, s[48:51], s60 offen sc1"]
            elif kc < 7:
                e.bar()
                fs(e, 4 + kc)
                rl = reads(kc + 1, 0, 0)
            else:
                e.bar()
                rl = att_init()
                per = 2
            ml = mfmas(s, kc == 0 and s == 0)
            for i, m in enumerate(ml):
                e(m)
                for l in rl[per*i:per*i+per]:
                    e(l)
            for l in rl[per*len(ml):]:
                e(l)
        if kc == 3:
            cs(e, 4)
    cs(e, 5)
    e(f"v_cvt_pk_bf16_f32 v{Q}, v{QACC}, v{QACC+1}")
    e(f"v_cvt_pk_bf16_f32 v{Q+1}, v{QACC+2}, v{QACC+3}")
    e(f"v_cvt_pk_bf16_f32 v{Q+2}, v{QACC+4}, v{QACC+5}")
    e(f"v_cvt_pk_bf16_f32 v{Q+3}, v{QACC+6}, v{QACC+7}")
    e("s_waitcnt vmcnt(0)")
    e("s_nop 0")
    e(f"v_permlane16_swap_b32 v{Q}, v{Q+2}")
    e(f"v_permlane16_swap_b32 v{Q+1}, v{Q+3}")
    red = Asm()
    allreduce(red, "v_max_f32", 10, 12, 0, 6)
    red = [l.strip() for l in red.lines]
    for j in range(2):
        G = ACC + 16 * j
        U = ACC + 32 + 16 * j
        for r in range(0, 16, 2):
            e(f"v_pk_mul_f32 {vr(G+r,2)}, {vr(G+r,2)}, s[64:65]")
        for r in range(16):
            e(f"v_exp_f32 v{G+r}, v{G+r}")
            if j == 0 and r % 2 == 1:
                while red and red[0].startswith("s_nop"):
                    red.pop(0)
                if red:
                    e(red.pop(0))
                    if red and not red[0].startswith("s_nop"):
                        e(red.pop(0))
        for r in range(0, 16, 2):
            e(f"v_pk_add_f32 {vr(G+r,2)}, {vr(G+r,2)}, s[66:67]")
        for r in range(16):
            e(f"v_rcp_f32 v{G+r}, v{G+r}")
        for r in range(0, 16, 2):
            e(f"v_pk_mul_f32 {vr(G+r,2)}, {vr(G+r,2)}, {vr(U+r,2)}")
        for r in range(8):
            e(f"v_cvt_pk_bf16_f32 v{U+r}, v{G+2*r}, v{G+2*r+1}")
        for t in range(4):
            e(f"ds_write_b64 v{14 + (t >> 1)}, {vr(U+2*t,2)} offset:{j*1024 + (t & 1)*256}")
    assert not red, red
    nb_ffn = e.nbar
    e.label("QJOIN")
    e.nbar = 0
    cs(e, 6)
    for i in range(4):
        e(f"v_dot2c_f32_bf16 v11, v{Q+i}, v{Q+i}")
    e(f"v_mul_f32 v10, {fbits(1.04)}, v10")
    e("s_nop 1")
    allreduce(e, "v_add_f32", 11, 12, 5, 6)
    e("v_mul_f32 v11, v11, v10")
    e("v_sqrt_f32 v11, v11")
    e(f"s_mov_b32 s60, {fbits(SAFE_BOUND)}")
    e("v_cmp_nle_f32 vcc, v11, s60")
    e(f"v_sub_f32 v{C}, 0, v11")
    e(f"v_sub_f32 v{C+1}, 0, v11")
    for r in range(2, 16, 2):
        e(f"v_mov_b64 {vr(C+r,2)}, {vr(C,2)}")
    e("s_waitcnt lgkmcnt(0)")
    cs(e, 7)
    e.bar()
    e("s_cbranch_vccz ATT_GO")
    e("v_mov_b32 v11, 0xff800000")
    e("v_mov_b32 v12, v2")
    e("s_mov_b32 s60, 64")
    e.label("MAXLOOP")
    e(f"ds_read_b128 {vr(KF[0],4)}, v12")
    e("v_add_u32 v12, 0x800, v12")
    e("s_waitcnt lgkmcnt(0)")
    e(f"v_mfma_f32_32x32x16_bf16 {vr(S[0],16)}, {vr(KF[0],4)}, {vr(Q,4)}, 0")
    e("s_nop 15")
    for r in range(8):
        e(f"v_max3_f32 v11, v11, v{S[0]+2*r}, v{S[0]+2*r+1}")
    e("s_sub_u32 s60, s60, 1")
    e("s_cmp_lg_u32 s60, 0")
    e("s_cbranch_scc1 MAXLOOP")
    allreduce(e, "v_max_f32", 11, 12, 5, 6)
    for r in range(16):
        e(f"v_sub_f32 v{C+r}, 0, v11")
    e.label("ATT_GO")

    def laddr(t):
        return ("v13", t * 2048)
    def rdK(t, b):
        a, o = laddr(t)
        e(f"ds_read_b128 {vr(KF[b],4)}, {a} offset:{o}")
    def rdV(t, b):
        a, o = laddr(t)
        e("s_mov_b64 exec, s[40:41]")
        e(f"ds_read_b128 {vr(VF[b],4)}, {a} offset:{o+1024}")
        e(f"ds_read_b128 {vr(VF[b]+4,4)}, {a} offset:{o+1280}")
        e("s_mov_b64 exec, -1")
    def qk(t):
        e(f"v_mfma_f32_32x32x16_bf16 {vr(S[t & 1],16)}, {vr(KF[t & 3],4)}, {vr(Q,4)}, {vr(C,16)}")
    def sp(b, half):
        e(f"v_smfmac_f32_32x32x32_bf16 {vr(O,16)}, {vr(VF[b]+4*half,4)}, {vr(S[b]+8*half,8)}, v{IDX}")
    def ex(b, lo, hi):
        for r in range(lo, hi):
            e(f"v_exp_f32 v{S[b]+r}, v{S[b]+r}")

    rdK(0, 0)
    rdK(1, 1)
    rdV(0, 0)
    rdK(2, 2)
    rdK(3, 3)
    e("v_and_b32 v10, 31, v1")
    e("v_lshlrev_b32 v12, 2, v10")
    e("s_lshr_b32 s60, s96, 15")
    e("s_lshl_b32 s60, s60, 7")
    e(f"s_add_u32 s60, s60, {WS_G}")
    e("buffer_load_dword v163, v12, s[48:51], s60 offen sc1")
    cs(e, 8)
    e("s_waitcnt lgkmcnt(4)")
    qk(0)
    UN = int(os.environ.get("UN", "8"))
    e(f"s_mov_b32 s60, {64 // UN}")
    PSW = int(os.environ.get("PSW", "1"))
    if PSW:
        e("s_setprio 1")
        e("s_mov_b32 s61, 99")
        e("s_cmp_ge_u32 s30, 4")
        e("s_cbranch_scc1 PRIO_SET")
        e("s_setprio 2")
        e(f"s_mov_b32 s61, {PSW}")
        e.label("PRIO_SET")
    e("s_nop 11")
    ex(0, 0, 2)
    e("s_branch ATT_ENTRY")
    e.raw(".p2align 6")
    e.label("ATT_LOOP")
    if PSW:
        e("s_cmp_lg_u32 s60, s61")
        e("s_cbranch_scc1 PRIO_KEEP")
        e("s_setprio 0")
        e.label("PRIO_KEEP")
    for t in range(UN):
        b = t & 1
        ex(b, 0, 2)
        sp(b ^ 1, 1)
        rdK(t + 3, (t + 3) & 3)
        if t == 0:
            e.label("ATT_ENTRY")
        ex(b, 2, 6)
        qk(t + 1)
        e("s_waitcnt lgkmcnt(1)")
        ex(b, 6, 11)
        sp(b, 0)
        rdV(t + 1, b ^ 1)
        if t == UN - 1:
            e(f"v_add_u32 v13, {UN * 2048}, v13")
            e("s_sub_u32 s60, s60, 1")
            e("s_cmp_lg_u32 s60, 0")
        ex(b, 11, 16)
    e("s_cbranch_scc1 ATT_LOOP")
    e("s_waitcnt lgkmcnt(0)")
    e("s_nop 1")
    sp(1, 1)
    OB = 96
    WOB = 80
    PB = 16
    e("s_lshl_b32 s34, s76, 1")
    e("s_and_b32 s61, s30, 1")
    e("s_add_u32 s34, s34, s61")
    e("s_lshl_b32 s63, s34, 15")
    e(f"s_add_u32 s34, s63, {WS_OF + 1024}")
    e("s_lshl_b32 s61, s77, 7")
    e("s_add_u32 s63, s63, s61")
    e("s_and_b32 s61, s30, 2")
    e("s_lshl_b32 s61, s61, 5")
    e("s_add_u32 s63, s63, s61")
    e(f"s_add_u32 s62, s96, {WS_OF}")
    e("s_waitcnt vmcnt(0)")
    e("s_nop 1")
    cs(e, 9)
    if "one1" in OPT:
        e(f"v_mov_b32 v12, v{O+8}")
        e("s_nop 1")
        e(f"v_permlane32_swap_b32 v{O+8}, v12")
        e("s_nop 1")
    e(f"v_rcp_f32 v11, v{O+8}")
    e("s_nop 0")
    e("v_mul_f32 v11, v11, v163")
    for r in range(8):
        e(f"v_mul_f32 v{O+r}, v{O+r}, v11")
    for r in range(4):
        e(f"v_cvt_pk_bf16_f32 v{164+r}, v{O+2*r}, v{O+2*r+1}")
    e("buffer_store_dwordx4 v[164:167], v2, s[48:51], s62 offen sc1")
    e("s_cmp_lt_u32 s30, 4")
    e("s_cbranch_scc1 FINISH")
    e("s_barrier")
    e("s_barrier")
    e("s_branch A_DONE")
    e.label("FINISH")

    def oload(g):
        for i in range(4):
            e(f"s_add_u32 s60, s34, {(g + 4 * i) * 2048}")
            e(f"buffer_load_dwordx4 {vr(OB+16*g+4*i,4)}, v2, s[48:51], s60 offen sc1")
    WO = 32
    tr_addr128(e, 161, 162, 11, 12)
    e("s_and_b32 s60, s30, 2")
    e("s_lshl_b32 s60, s60, 5")
    e("v_xor_b32 v161, s60, v161")
    e(f"v_add_u32 v161, {WD_BASE}, v161")
    e("v_lshrrev_b32 v11, 5, v1")
    e("v_lshlrev_b32 v10, 10, v10")
    e("v_lshl_add_u32 v10, v11, 4, v10")
    e("s_lshl_b32 s60, s30, 12")
    e("v_add_u32 v6, s60, v2")
    e("s_mov_b32 s35, 15")
    e("s_setprio 3")
    e.bar()
    f2(e, 4)
    for g in range(2):
        oload(g)
    e.bar()
    f2(e, 5)
    for p in range(4):
        for jq in range(4):
            e(f"ds_read_b128 {vr(PB+16*p+4*jq,4)}, v6 offset:{p*16384 + jq*1024}")
    def wread(f):
        k = (f >> 2) + 4 * (f & 3)
        for rho in range(2):
            e(f"ds_read_b64_tr_b16 {vr(WO+4*f+2*rho,2)}, v161 offset:{k*2048 + rho*1024}")
    for g in range(2, 4):
        oload(g)
    e("s_waitcnt lgkmcnt(0)")
    for f in range(12, 16):
        wread(f)
    for r in range(0, 16, 2):
        e(f"v_pk_add_f32 {vr(PB+r,2)}, {vr(PB+r,2)}, {vr(PB+16+r,2)}")
    for f in range(0, 4):
        wread(f)
    for r in range(0, 16, 2):
        e(f"v_pk_add_f32 {vr(PB+r,2)}, {vr(PB+r,2)}, {vr(PB+32+r,2)}")
    for f in range(4, 8):
        wread(f)
    for r in range(0, 16, 2):
        e(f"v_pk_add_f32 {vr(PB+r,2)}, {vr(PB+r,2)}, {vr(PB+48+r,2)}")
    for f in range(8, 12):
        wread(f)
    f2(e, 6)

    def ogroup(g, tag):
        o = OB + 16 * g
        e(f"v_max_u32 v11, v{o}, v{o+1}")
        for r in range(1, 8):
            e(f"v_max3_u32 v11, v11, v{o+2*r}, v{o+2*r+1}")
        e("v_cmp_eq_u32 vcc, -1, v11")
        e("s_cmp_eq_u32 s100, 0")
        e(f"s_cbranch_scc1 OGO{tag}")
        e("s_nop 2")
        e(f"s_cbranch_vccnz ONEXT{tag}")
        e.label(f"OGO{tag}")
        for i in range(4):
            e(f"v_mfma_f32_32x32x16_bf16 {vr(PB,16)}, {vr(WO+16*g+4*i,4)}, {vr(o+4*i,4)}, {vr(PB,16)}")
        e(f"s_bitset0_b32 s35, {g}")
        e.label(f"ONEXT{tag}")
    e("s_waitcnt lgkmcnt(0)")
    for g in range(4):
        e(f"s_waitcnt vmcnt({12 - 4 * g})")
        ogroup(g, f"A{g}")
    e("s_cmp_eq_u32 s35, 0")
    e("s_cbranch_scc1 ODONE")
    e.label("OLOOP")
    e("s_sub_u32 s100, s100, 1")
    for g in range(4):
        e(f"s_bitcmp0_b32 s35, {g}")
        e(f"s_cbranch_scc1 OSK{g}")
        oload(g)
        e.label(f"OSK{g}")
    e("s_waitcnt vmcnt(0)")
    for g in range(4):
        e(f"s_bitcmp0_b32 s35, {g}")
        e(f"s_cbranch_scc1 ONEXTB{g}")
        ogroup(g, f"B{g}")
    e("s_cmp_lg_u32 s35, 0")
    e("s_cbranch_scc1 OLOOP")
    e.label("ODONE")
    cs(e, 10); f2(e, 7)
    e("s_nop 11")
    for r in range(8):
        e(f"v_cvt_pk_bf16_f32 v{32+r}, v{PB+2*r}, v{PB+2*r+1}")
    e("s_nop 1")
    e("v_permlane32_swap_b32 v32, v34")
    e("v_permlane32_swap_b32 v33, v35")
    e("v_permlane32_swap_b32 v36, v38")
    e("v_permlane32_swap_b32 v37, v39")
    ost = os.environ.get("OST", "")
    e(f"buffer_store_dwordx4 v[32:35], v10, s[52:55], s63 offen {ost}")
    e(f"buffer_store_dwordx4 v[36:39], v10, s[52:55], s63 offen offset:32 {ost}")
    e.label("A_DONE")
    stamp(e, 11)
    if STAMP:
        e("s_waitcnt vmcnt(0)")
    stamp(e, 12); stamp(e, 13, True)
    stamp_flush(e, 14)
    e.label("K_END")
    e("s_endpgm")
    return nb_ffn, e.nbar


def kd(name, vgpr, sgpr=102):
    acc = (vgpr + 3) // 4 * 4
    return f""".p2align 6
.amdhsa_kernel {name}
  .amdhsa_next_free_vgpr {vgpr}
  .amdhsa_next_free_sgpr {sgpr}
  .amdhsa_accum_offset {acc}
  .amdhsa_group_segment_fixed_size 0
  .amdhsa_kernarg_size 104
  .amdhsa_user_sgpr_count 2
  .amdhsa_user_sgpr_kernarg_segment_ptr 1
  .amdhsa_system_sgpr_workgroup_id_x 1
.end_amdhsa_kernel
"""


def main(out):
    ref = open(f"cdna_kernels/{NAME}.s.ref").read().split("\n")
    hdr = [l for l in ref if l.startswith(";") and "@launch" not in l and "Override" not in l and "grid=ceil" not in l]
    e = Asm()
    prologue(e)
    sp_start(e)
    n1 = loader(e)
    n2 = service(e)
    n3 = down(e)
    nf, nc = compute(e)
    n5 = sp_helper(e)
    n6 = sp_compute(e)
    e.label("CODE_END")
    assert n1 == n2 and n1 + n3 == nf + nc and n5 + n3 == n6 + nc, (n1, n2, n3, nf, nc, n5, n6)
    s = "\n".join(hdr) + "\n"
    s += f"; @launch grid=(256,1,1) block=(768,1,1) lds={LDS_TOTAL}\n"
    s += '.amdgcn_target "amdgcn-amd-amdhsa--gfx950"\n.text\n'
    s += e.text()
    s += '.section .rodata,"a"\n'
    s += kd(NAME + "_kernel", 168)
    open(out, "w").write(s)


if __name__ == "__main__":
    main(sys.argv[1] if len(sys.argv) > 1 else f"cdna_kernels/{NAME}.s")
```

```python
import sys, os, struct

NAME = "gated_mix__grouped_kv_mqa__glu_gated_glu__prompt"

WS_OF = 2 << 20
WS_KV = 4 << 20
WS_KN = WS_KV + 131072
WS_G = WS_KN + 4096
WS_FL = WS_G + 8192
WS_HF = 8 << 20
WS_ST = 15 << 20
WS_SIZE = 16 << 20
OOB = 0x7f000000

LOG2E = 1.4426950408889634
STAMP = os.environ.get("STAMP", "0") == "1"
OPT = set(os.environ.get("OPT", "").split(","))
FINE = "fine" in OPT
FINE2 = "fine2" in OPT


def fbits(x):
    return "0x%08x" % struct.unpack("<I", struct.pack("<f", x))[0]


class Asm:
    def __init__(self):
        self.lines = []
        self.vm = []
        self.uid = 0
        self.nbar = 0
    def __call__(self, s):
        self.lines.append("    " + s)
    def label(self, s):
        self.lines.append(s + ":")
    def raw(self, s):
        self.lines.append(s)
    def vmem(self, s, tag):
        self(s)
        self.vm.append(tag)
    def wait_vm(self, tag):
        idxs = [i for i, t in enumerate(self.vm) if t == tag]
        if not idxs:
            return
        idx = max(idxs)
        n = len(self.vm) - 1 - idx
        assert n <= 63
        self(f"s_waitcnt vmcnt({n})")
        self.vm = self.vm[idx + 1:]
    def wait_all(self):
        self("s_waitcnt vmcnt(0)")
        self.vm = []
    def bar(self):
        self("s_barrier")
        self.nbar += 1
    def newlabel(self, p):
        self.uid += 1
        return f"{p}_{self.uid}"
    def text(self):
        return "\n".join(self.lines) + "\n"


def stamp(e, i, real=False):
    if not STAMP:
        return
    if "amp" in OPT:
        if i not in (1, int(os.environ["AMP"])):
            return
        real = True
    if "rt" in OPT:
        real = True
    e(("s_memrealtime" if real else "s_memtime") + " s[78:79]")
    e("s_waitcnt lgkmcnt(0)")
    e(f"s_mov_b32 s{80+i}, s78")


def cs(e, i):
    if not FINE and not (FINE2 and i in (4, 5, 6, 7)):
        stamp(e, i)


def f2(e, i):
    if FINE2:
        stamp(e, i)


def fs(e, i):
    if FINE:
        stamp(e, i)


def stamp_flush(e, n):
    if not STAMP:
        return
    e("s_getreg_b32 s94, hwreg(HW_REG_XCC_ID)")
    n += 1
    if "amp" in OPT:
        lab, lp = e.newlabel("AMPS"), e.newlabel("AMPL")
        i = int(os.environ["AMP"])
        e(f"s_cmp_lg_u32 s30, {int(os.environ.get('DBGW', '4'))}")
        e(f"s_cbranch_scc1 {lab}")
        e(("s_cmp_lt_u32" if "dbgsp" in OPT else "s_cmp_ge_u32") + " s56, 14")
        e(f"s_cbranch_scc1 {lab}")
        e(f"s_sub_u32 s60, s{80+i}, s81")
        e("s_mul_i32 s60, s60, 10")
        e("s_memrealtime s[62:63]")
        e("s_waitcnt lgkmcnt(0)")
        e.label(lp)
        e("s_memrealtime s[78:79]")
        e("s_waitcnt lgkmcnt(0)")
        e("s_sub_u32 s61, s78, s62")
        e("s_cmp_lt_u32 s61, s60")
        e(f"s_cbranch_scc1 {lp}")
        e.label(lab)
        return
    if "dbg" in OPT:
        lab = e.newlabel("DBGS")
        lo = int(os.environ.get("DBGW", "4"))
        e(f"s_sub_u32 s78, s30, {lo}")
        e("s_cmp_ge_u32 s78, 4")
        e(f"s_cbranch_scc1 {lab}")
        e(("s_cmp_lt_u32" if "dbgsp" in OPT else "s_cmp_ge_u32") + " s56, 14")
        e(f"s_cbranch_scc1 {lab}")
        srd(e, 72, 26, 256)
        e("v_mov_b32 v0, 0")
        e("s_mov_b64 exec, 1")
        for i in range(2, 13):
            e(f"s_sub_u32 s78, s{80+i}, s81")
            e("v_mov_b32 v1, s78")
            e(f"buffer_atomic_umax v1, v0, s[72:75], 0 offen offset:{4*i}")
        e("s_sub_u32 s78, s93, s80")
        e("v_mov_b32 v1, s78")
        e(f"buffer_atomic_umax v1, v0, s[72:75], 0 offen offset:52")
        e("s_mov_b64 exec, -1")
        e.label(lab)
        return
    e("s_lshl_b32 s78, s2, 4")
    e("s_add_u32 s78, s78, s30")
    e("s_lshl_b32 s78, s78, 6")
    e(f"s_add_u32 s78, s78, {WS_ST}")
    e("v_mov_b32 v0, 0")
    e("s_mov_b64 exec, 1")
    for i in range(n):
        e(f"v_mov_b32 v1, s{80+i}")
        e(f"buffer_store_dword v1, v0, s[48:51], s78 offen offset:{4*i}")
    e("s_mov_b64 exec, -1")


def vr(a, n=1):
    return f"v{a}" if n == 1 else f"v[{a}:{a+n-1}]"


def srd(e, d, base, size):
    e(f"s_mov_b32 s{d}, s{base}")
    e(f"s_mov_b32 s{d+1}, s{base+1}")
    e(f"s_mov_b32 s{d+2}, {size}")
    e(f"s_mov_b32 s{d+3}, 0x00020000")


def allreduce(e, op, x, t, lo=0, hi=6):
    dpp = ["quad_perm:[1,0,3,2]", "quad_perm:[2,3,0,1]", "row_half_mirror", "row_mirror"]
    for b in range(lo, min(hi, 4)):
        e("s_nop 1")
        e(f"{op}_dpp v{x}, v{x}, v{x} {dpp[b]} row_mask:0xf bank_mask:0xf")
    for b, ins in ((4, "v_permlane16_swap_b32"), (5, "v_permlane32_swap_b32")):
        if lo <= b < hi:
            e(f"v_mov_b32 v{t}, v{x}")
            e("s_nop 1")
            e(f"{ins} v{x}, v{t}")
            e("s_nop 1")
            e(f"{op} v{x}, v{x}, v{t}")


X_ST = 16384
W_BASE = 3 * X_ST
QS_BASE = 32768
X_BASE = [0, 16384, 147456]
LDS_TOTAL = 163840
def stage(kc):
    return (kc + 1) % 3
SAFE_BOUND = 48.0
WD_BASE = 131072
NBW = 4


def spin_guard(e, done):
    e("s_cmp_eq_u32 s100, 0")
    e(f"s_cbranch_scc1 {done}")
    e("s_sub_u32 s100, s100, 1")


def spin(e, load, check, sleep, preloaded=False):
    lo, chk, done = e.newlabel("SPIN"), e.newlabel("SPINC"), e.newlabel("SPIND")
    if preloaded:
        e(f"s_branch {chk}")
    e.label(lo)
    load()
    e.label(chk)
    e.wait_all()
    check()
    e("s_nop 4")
    e(f"s_cbranch_vccz {done}")
    spin_guard(e, done)
    e(f"s_sleep {sleep}")
    e(f"s_branch {lo}")
    e.label(done)


def tr_addr128(e, d0, d1, t0, t1):
    e(f"v_bfe_u32 v{t0}, v1, 2, 2")
    e(f"v_lshrrev_b32 v{t1}, 5, v1")
    e(f"v_lshl_add_u32 v{d0}, v{t1}, 2, v{t0}")
    e(f"v_lshlrev_b32 v{d0}, 7, v{d0}")
    e(f"v_bfe_u32 v{t1}, v1, 4, 1")
    e(f"v_lshl_add_u32 v{d0}, v{t1}, 5, v{d0}")
    e(f"v_and_b32 v{t1}, 3, v1")
    e(f"v_lshl_add_u32 v{d0}, v{t1}, 3, v{d0}")
    e(f"v_bfe_u32 v{t1}, v1, 3, 1")
    e(f"v_lshlrev_b32 v{t1}, 6, v{t1}")
    e(f"v_add_u32 v{d0}, v{d0}, v{t1}")
    e(f"v_xor_b32 v{d1}, 64, v{d0}")


def dma_voff128(e, d, t0, t1):
    e(f"v_lshrrev_b32 v{t0}, 3, v1")
    e(f"v_bfe_u32 v{t1}, v1, 4, 1")
    e(f"v_lshlrev_b32 v{t1}, 2, v{t1}")
    e(f"v_and_b32 v{d}, 7, v1")
    e(f"v_xor_b32 v{d}, v{d}, v{t1}")
    e(f"v_lshlrev_b32 v{d}, 4, v{d}")
    e(f"v_lshl_add_u32 v{d}, v{t0}, 10, v{d}")


def prologue(e):
    n = NAME + "_kernel"
    e.raw(f".globl {n}\n.p2align 8\n.type {n},@function\n{n}:")
    e("s_cmp_ge_u32 s2, 256")
    e("s_cbranch_scc1 K_END")
    stamp(e, 0, True); stamp(e, 1)
    e("s_load_dwordx16 s[4:19], s[0:1], 0")
    e("s_load_dwordx8 s[20:27], s[0:1], 64")
    e("s_load_dwordx2 s[28:29], s[0:1], 96")
    e("s_mov_b32 s100, %d" % (0 if "nospin" in OPT else 0x20000))
    e("v_lshrrev_b32 v2, 6, v0")
    e("v_and_b32 v1, 63, v0")
    e("v_readfirstlane_b32 s30, v2")
    e("v_lshlrev_b32 v2, 4, v1")
    e("v_lshlrev_b32 v3, 2, v1")
    e("v_lshrrev_b32 v6, 4, v1")
    e("s_and_b32 s57, s2, 7")
    if "oddsp" in OPT or "evensp" in OPT:
        e("s_lshr_b32 s60, s57, 2")
        e("s_and_b32 s61, s57, 1")
        if "evensp" in OPT:
            e("s_xor_b32 s61, s61, 1")
        e("s_lshl_b32 s61, s61, 2")
        e("s_and_b32 s57, s57, 2")
        e("s_or_b32 s57, s57, s60")
        e("s_or_b32 s57, s57, s61")
    e("s_lshr_b32 s59, s2, 3")
    e("s_and_b32 s94, s59, 7")
    e("s_lshr_b32 s95, s59, 3")
    e("s_and_b32 s31, s57, 1")
    e("s_lshl_b32 s31, s31, 3")
    e("s_add_u32 s31, s31, s94")
    e("s_lshr_b32 s56, s57, 1")
    e("s_xor_b32 s60, s95, 3")
    e("s_lshl_b32 s60, s60, 2")
    e("s_add_u32 s56, s56, s60")
    if "nospread" not in OPT:
        e("s_and_b32 s60, s59, 25")
        e("s_cmp_eq_u32 s60, 1")
        e("s_cselect_b32 s60, 2, 0")
        e("s_xor_b32 s56, s56, s60")
    if "oldi2" in OPT:
        e("s_and_b32 s76, s57, 3")
        e("s_lshl_b32 s76, s76, 3")
    else:
        e("s_andn2_b32 s76, 1, s57")
        e("s_lshl_b32 s76, s76, 4")
        e("s_and_b32 s60, s57, 2")
        e("s_lshl_b32 s60, s60, 2")
        e("s_add_u32 s76, s76, s60")
    e("s_add_u32 s76, s76, s94")
    e("s_lshr_b32 s77, s57, 2")
    e("s_lshl_b32 s77, s77, 2")
    e("s_add_u32 s77, s77, s95")
    e("s_sub_u32 s3, s30, 8")
    rot = os.environ.get("ROT", "8")
    e("s_lshl_b32 s58, s95, 1")
    e("s_add_u32 s58, s58, s94")
    if rot == "4":
        e("s_and_b32 s58, s58, 6")
    elif rot == "2":
        e("s_add_u32 s58, s94, s95")
        e("s_and_b32 s58, s58, 1")
        e("s_lshl_b32 s58, s58, 2")
    elif rot == "1":
        e("s_mov_b32 s58, 0")
    e("s_cmp_ge_u32 s56, 14")
    e("s_cbranch_scc1 SP_START")
    e("s_cmp_lt_u32 s30, 8")
    e("s_cbranch_scc1 COMPUTE")
    e("s_cmp_eq_u32 s3, 3")
    e("s_cbranch_scc1 SERVICE")
    e("s_branch LOADER")


def x_dma_voff(e):
    e("v_and_b32 v8, 7, v1")
    e("v_xor_b32 v7, v6, v8")
    e("v_lshrrev_b32 v8, 3, v1")
    e("v_lshlrev_b32 v8, 10, v8")
    e("v_lshl_add_u32 v4, v7, 4, v8")
    e("v_xor_b32 v5, 64, v4")


def kv_piece(e, tab):
    e(f"s_mov_b32 s59, {sum(t << (8 * i) for i, t in enumerate(tab)):#x}")
    e("s_lshl_b32 s62, s3, 3")
    e("s_lshr_b32 s59, s59, s62")
    e("s_and_b32 s59, s59, 15")
    e("s_add_u32 s62, s59, s94")
    e("s_and_b32 s62, s62, 7")
    e("s_lshl_b32 s62, s62, 14")
    e(f"s_add_u32 s62, s62, {WS_KV}")
    e("s_lshl_b32 s59, s59, 14")
    for n in range(16):
        if n % 4 == 0:
            e(f"s_add_u32 m0, s59, {n * 1024}")
            e(f"s_add_u32 s64, s62, {n * 1024}")
        e.vmem(f"buffer_load_dwordx4 v2, s[48:51], s64 offen offset:{(n & 3) * 1024} sc1 lds", "kvl")


def cnt_spin(e, which):
    e("v_mov_b32 v17, 0")
    spin(e, lambda: e(f"buffer_load_dword v20, v17, s[72:75], 0 offen offset:{128 + 64 * which} sc1"),
         lambda: e("v_cmp_eq_u32 vcc, 0, v20"), 4)


def cnt_arrive(e, which):
    lab = e.newlabel("ARR")
    e("v_mov_b32 v21, 1")
    e("v_mov_b32 v17, 0")
    e("s_mov_b64 exec, 1")
    e(f"buffer_atomic_add v21, v17, s[72:75], 0 offen offset:{64 * which} sc0 sc1")
    e("s_waitcnt vmcnt(0)")
    e("v_readfirstlane_b32 s60, v21")
    e("s_nop 3")
    e("s_cmp_lt_u32 s60, 31")
    e(f"s_cbranch_scc1 {lab}")
    e(f"buffer_store_dword v21, v17, s[72:75], 0 offen offset:{128 + 64 * which} sc1")
    e.label(lab)
    e("s_mov_b64 exec, -1")


def loader(e):
    e.label("LOADER")
    e.vm = []
    e.nbar = 0
    e("s_lshl_b32 s63, s56, 8")
    e("v_mul_u32_u24 v8, 3584, v6")
    e("v_lshlrev_b32 v7, 1, v6")
    e("v_and_b32 v10, 15, v1")
    e("v_xor_b32 v7, v7, v10")
    e("v_lshl_add_u32 v4, v7, 4, v8")
    e("v_mov_b32 v5, v4")
    e("v_xor_b32 v7, 8, v7")
    e("v_lshl_add_u32 v9, v7, 4, v8")
    e("v_mov_b32 v10, v9")
    e(f"s_mov_b32 s65, {4 * 3584}")
    e(f"s_mov_b32 s66, {64 * 3584}")
    e("s_lshl_b32 s67, s3, 14")
    e(f"s_add_u32 s67, s67, {W_BASE - 16384}")
    e("s_add_u32 s69, s67, 32768")
    e("s_add_u32 s70, s69, 32768")
    e("s_mov_b32 s34, %d" % (512 * 3584))
    e("s_cmp_lg_u32 s3, 0")
    e("s_cbranch_scc1 LD_W")
    x_dma_voff(e)
    e("v_mov_b32 v9, v4")
    e("v_mov_b32 v10, v5")
    e("s_lshl_b32 s63, s31, 17")
    e("s_mov_b32 s65, 8192")
    e("s_mov_b32 s66, 128")
    e("s_mov_b32 s67, 0")
    e(f"s_mov_b32 s69, {X_BASE[1]}")
    e(f"s_mov_b32 s70, {X_BASE[2]}")
    e("s_mov_b32 s34, %d" % (2048 * 1024))
    e.label("LD_W")
    e("s_mov_b32 s35, 0x00020000")
    e("s_waitcnt lgkmcnt(0)")
    stamp(e, 2)
    e("s_cmp_eq_u32 s3, 1")
    e("s_cselect_b32 s32, s16, s18")
    e("s_cselect_b32 s33, s17, s19")
    e("s_cmp_eq_u32 s3, 0")
    e("s_cselect_b32 s32, s4, s32")
    e("s_cselect_b32 s33, s5, s33")

    def dma(kc, n0=0, n1=16):
        sb = (67, 69, 70)[stage(kc)]
        so = 60 + (kc & 1)
        if n0 == 0:
            e(f"s_add_u32 s59, s58, {kc}")
            e("s_and_b32 s59, s59, 7")
            e(f"s_mul_i32 s{so}, s66, s59")
            e(f"s_add_u32 s{so}, s{so}, s63")
        for n in range(n0, n1):
            e(f"s_add_u32 m0, s{sb}, {n * 1024}")
            if n > 0:
                e(f"s_add_u32 s{so}, s{so}, s65")
            else:
                e("s_nop 0")
            e.vmem(f"buffer_load_dwordx4 v{(4, 5, 9, 10)[n & 3]}, s[32:35], s{so} offen lds", f"c{kc}")

    LA = int(os.environ.get("LA", "11"))
    dma(0)
    dma(1, 0, LA)
    srd(e, 48, 28, WS_SIZE)
    e.wait_vm("c0")
    e.bar()
    stamp(e, 3)
    for kc in range(7):
        dma(kc + 1, LA, 16)
        if kc + 2 < 8:
            dma(kc + 2, 0, LA)
        if kc == 6:
            kv_piece(e, (0, 3, 4))
        e.wait_vm(f"c{kc+1}")
        fs(e, 4 + kc)
        e.bar()
        if kc == 3:
            cs(e, 4)
    kv_piece(e, (1, 5, 6))
    e.bar()
    cs(e, 5)
    e("s_cmp_eq_u32 s3, 2")
    e("s_cbranch_scc1 KVP_SKIP")
    kv_piece(e, (7, 2, 2))
    e.label("KVP_SKIP")
    e.wait_all()
    cs(e, 6)
    e.bar()
    cs(e, 7)
    e("s_branch DOWN")
    return e.nbar


def wq_voff(e):
    e("v_lshrrev_b32 v7, 2, v1")
    e("v_and_b32 v8, 3, v1")
    e("v_lshlrev_b32 v8, 4, v8")
    e("v_lshl_add_u32 v4, v7, 10, v8")
    e("v_and_b32 v7, 32, v1")
    e("v_xor_b32 v4, v4, v7")


def service(e):
    e.label("SERVICE")
    e.vm = []
    e.nbar = 0
    wq_voff(e)
    e("s_lshl_b32 s63, s56, 6")
    e("s_waitcnt lgkmcnt(0)")
    stamp(e, 2)
    srd(e, 32, 6, 512 * 1024)

    def dma(kc):
        e(f"s_add_u32 s59, s58, {kc}")
        e("s_and_b32 s59, s59, 7")
        e("s_lshl_b32 s60, s59, 16")
        e("s_add_u32 s60, s60, s63")
        for n in range(4):
            e(f"s_mov_b32 m0, {QS_BASE + stage(kc) * 4096 + n * 1024}")
            e("s_add_u32 s60, s60, 16384" if n else "s_nop 0")
            e.vmem("buffer_load_dwordx4 v4, s[32:35], s60 offen lds", f"c{kc}")
    dma(0)
    dma(1)
    srd(e, 48, 28, WS_SIZE)
    srd(e, 72, 26, 0 if "noflag" in OPT else 256)
    e.wait_vm("c0")
    e.bar()
    stamp(e, 3)
    for kc in range(7):
        if kc + 2 < 8:
            dma(kc + 2)
        if kc == 5:
            cnt_spin(e, 0)
        e.wait_vm(f"c{kc+1}")
        fs(e, 4 + kc)
        e.bar()
        if kc == 3:
            cs(e, 4)
    e.bar()
    cs(e, 5)
    cnt_spin(e, 1)
    cs(e, 6)
    e.bar()
    cs(e, 7)
    return e.nbar


def down(e):
    e.label("DOWN")
    e.vm = []
    e.nbar = 0
    srd(e, 44, 20, 1792 * 1024)
    e("s_mul_i32 s32, s76, 224")
    e("s_mul_i32 s60, s3, 28")
    e("s_add_u32 s32, s32, s60")
    e("s_lshl_b32 s32, s32, 10")
    e(f"s_add_u32 s32, s32, {WS_HF}")
    e(f"s_add_u32 s33, s32, {112*1024}")
    e("s_lshl_b32 s36, s60, 14")
    e("s_lshl_b32 s61, s77, 7")
    e("s_add_u32 s36, s36, s61")
    e(f"s_mul_i32 s37, s3, {NBW * 2048}")
    e(f"s_add_u32 s37, s37, {WD_BASE}")
    e("s_setprio 3")
    dma_voff128(e, 4, 7, 8)
    tr_addr128(e, 9, 10, 7, 8)
    e("v_add_u32 v9, s37, v9")
    e("v_add_u32 v10, s37, v10")
    e("s_lshl_b32 s62, s76, 9")
    e("s_lshl_b32 s60, s3, 7")
    e("s_add_u32 s62, s62, s60")
    e(f"s_add_u32 s62, s62, {WS_FL}")
    DAC = 24
    WB = 88
    HB = 104
    WE = 136
    srd(e, 40, 12, 512 * 1024)
    e("s_lshl_b32 s38, s3, 17")
    e("s_add_u32 s38, s38, s61")
    e("s_lshl_b32 s39, s95, 1")
    e("s_add_u32 s39, s39, s94")
    e("s_cmp_ge_u32 s39, 7")
    e("s_cselect_b32 s60, 7, 0")
    e("s_sub_u32 s39, s39, s60")
    if "nodrot" in OPT:
        e("s_mov_b32 s39, 0")

    def group(reg_w, reg_h):
        if reg_w:
            e("s_lshl_b32 s67, s39, 16")
            e("s_add_u32 s67, s67, s36")
        if reg_h:
            e("s_lshl_b32 s60, s39, 12")
            e("s_add_u32 s68, s60, s32")
            e("s_add_u32 s69, s60, s33")
            e("s_add_u32 s39, s39, 1")
            e("s_cmp_eq_u32 s39, 7")
            e("s_cselect_b32 s39, 0, s39")
    def wload(ks):
        for u in range(2):
            e(f"s_add_u32 m0, s37, {(ks % NBW) * 2048 + u * 1024}")
            e(f"s_add_u32 s60, s67, {(ks & 3) * 16384 + u * 8192}")
            e.vmem("buffer_load_dwordx4 v4, s[44:47], s60 offen lds", f"w{ks}")
    def woload(j, par, tag):
        for u in range(2):
            e(f"s_add_u32 m0, s37, {j * 2048 + u * 1024}")
            e(f"s_add_u32 s60, s38, {(2 * j + par) * 16384 + u * 8192}")
            e.vmem("buffer_load_dwordx4 v4, s[40:43], s60 offen lds", tag)
    def hload(ks):
        f = HB + 8 * (ks & 3)
        for t in range(2):
            e.vmem(f"buffer_load_dwordx4 {vr(f+4*t,4)}, v2, s[48:51], s{68+t} offen offset:{(ks & 3) * 1024} sc1", f"h{ks}")
    def wread(f, slot):
        for m in range(2):
            for rho in range(2):
                e(f"ds_read_b64_tr_b16 {vr(f+4*m+2*rho,2)}, v{9+m} offset:{slot * 2048 + rho * 1024}")

    e("s_cmp_ge_u32 s56, 14")
    e("s_cbranch_scc1 H_SKIP")
    e("v_add_u32 v7, s37, v2")
    for n in range(8):
        e(f"ds_read_b128 {vr(HB+4*n,4)}, v7 offset:{n*1024}")
    e("s_lshl_b32 s64, s31, 2")
    e("s_and_b32 s60, s3, 2")
    e("s_add_u32 s64, s64, s60")
    e("s_mul_i32 s64, s64, 112")
    e("s_lshl_b32 s60, s56, 1")
    e("s_and_b32 s61, s3, 1")
    e("s_add_u32 s66, s60, s61")
    e("s_lshl_b32 s60, s66, 2")
    e("s_add_u32 s64, s64, s60")
    e("s_lshl_b32 s64, s64, 10")
    e(f"s_add_u32 s64, s64, {WS_HF}")
    e(f"s_add_u32 s65, s64, {112*1024}")
    e("s_mul_i32 s60, s66, 37")
    e("s_lshr_b32 s60, s60, 8")
    e("s_mul_i32 s61, s60, 25")
    e("s_add_u32 s66, s66, s61")
    e("s_lshl_b32 s66, s66, 2")
    e("s_lshl_b32 s60, s31, 10")
    e("s_add_u32 s66, s66, s60")
    e("s_and_b32 s60, s3, 2")
    e("s_lshl_b32 s60, s60, 8")
    e("s_add_u32 s66, s66, s60")
    e(f"s_add_u32 s66, s66, {WS_FL}")
    e("s_waitcnt lgkmcnt(0)")
    for n in range(8):
        u, t, k = n >> 2, (n >> 1) & 1, n & 1
        e(f"buffer_store_dwordx4 {vr(HB+4*n,4)}, v2, s[48:51], s{64+t} offen offset:{(2*u+k)*1024} sc1")
        HT = int(os.environ.get("HT", "63"))
        if HT < 63:
            e(f"s_waitcnt vmcnt({HT})")
    f2(e, 4)
    e("v_mov_b32 v12, 1")
    e("v_mov_b32 v11, 0")
    e("s_waitcnt vmcnt(0)")
    f2(e, 5)
    e("s_mov_b64 exec, 1")
    e("buffer_store_dword v12, v11, s[48:51], s66 offen sc1")
    e("s_mov_b64 exec, -1")
    e.label("H_SKIP")
    f2(e, 6); f2(e, 7)
    for j in range(4):
        woload(j, 0, "we")
    e("v_and_b32 v7, 31, v1")
    e("v_lshlrev_b32 v7, 2, v7")
    e("s_lshl_b32 s60, s76, 8")
    e(f"s_add_u32 s60, s60, {WS_G}")
    e("buffer_load_dword v14, v7, s[48:51], s60 offen sc1")
    e("buffer_load_dword v16, v7, s[48:51], s60 offen offset:128 sc1")
    e.wait_all()
    for j in range(4):
        wread(WE + 8 * j, j)
    e("v_sub_f32 v14, 1.0, v14")
    e("v_sub_f32 v16, 1.0, v16")
    e("v_mov_b32 v15, v14")
    e("v_mov_b32 v17, v16")
    e("s_waitcnt lgkmcnt(0)")
    group(True, False)
    for ks in range(NBW):
        wload(ks)

    def fl_ld():
        e("s_mov_b64 exec, 0x7f")
        e("buffer_load_dword v20, v3, s[48:51], s62 offen sc1")
        e("s_mov_b64 exec, -1")
    def fl_ck():
        e("s_mov_b64 exec, 0x7f")
        e("v_cmp_ne_u32 vcc, 1, v20")
        e("s_mov_b64 exec, -1")
    if "slp" in OPT:
        e("s_sleep 100")
    spin(e, fl_ld, fl_ck, 16)
    e("s_setprio %s" % os.environ.get("HP", "0"))
    cs(e, 8)
    group(False, True)
    for ks in range(4):
        hload(ks)
    wread(WB, 0)
    for ks in range(28):
        e("s_waitcnt lgkmcnt(0)")
        if ks % 4 == 0 and ks + 4 < 28:
            group(True, True)
        if ks + 4 < 28:
            wload(ks + 4)
        else:
            woload(ks & 3, 1, "wodd")
        if ks + 1 < 28:
            e.wait_vm(f"w{ks+1}")
            wread(WB + 8 * ((ks + 1) & 1), (ks + 1) & 3)
        e.wait_vm(f"h{ks}")
        f = WB + 8 * (ks & 1)
        h = HB + 8 * (ks & 3)
        for m in range(2):
            for t in ((0, 1), (1, 0))[m]:
                d = DAC + 32 * m + 16 * t
                c = "0" if ks == 0 else vr(d, 16)
                e(f"v_mfma_f32_32x32x16_bf16 {vr(d,16)}, {vr(f+4*m,4)}, {vr(h+4*t,4)}, {c}")
        if ks + 4 < 28:
            hload(ks + 4)
    cs(e, 9)
    e("s_setprio 3")
    e("s_lshl_b32 s64, s76, 16")
    e("s_lshl_b32 s60, s3, 13")
    e("s_add_u32 s64, s64, s60")
    e(f"s_add_u32 s64, s64, {WS_OF}")
    e("s_add_u32 s65, s64, 4096")
    e("s_add_u32 s66, s64, 32768")
    e("s_add_u32 s67, s64, 36864")
    e("s_lshl_b32 s60, s3, 14")
    e("v_add_u32 v6, s60, v2")
    e("s_nop 7")
    for m in range(2):
        for t in range(2):
            for r in range(0, 16, 2):
                d = DAC + 32 * m + 16 * t + r
                e(f"v_pk_mul_f32 {vr(d,2)}, {vr(d,2)}, v[{14+2*t}:{15+2*t}]")

    def oe_ld():
        for j in range(4):
            for t in range(2):
                e(f"buffer_load_dwordx4 {vr(HB+8*j+4*t,4)}, v2, s[48:51], s{64+2*t+(j>>1)} offen offset:{(j&1)*2048} sc1")
    def oe_ck():
        e(f"v_max_u32 v11, v{HB}, v{HB+1}")
        for r in range(1, 16):
            e(f"v_max3_u32 v11, v11, v{HB+2*r}, v{HB+2*r+1}")
        e("v_cmp_eq_u32 vcc, -1, v11")
    spin(e, oe_ld, oe_ck, 12)
    e("s_setprio 0")
    for j in range(4):
        for m in range(2):
            for t in range(2):
                d = DAC + 32 * m + 16 * t
                e(f"v_mfma_f32_32x32x16_bf16 {vr(d,16)}, {vr(WE+8*j+4*m,4)}, {vr(HB+8*j+4*t,4)}, {vr(d,16)}")
    e("s_nop 15")
    cs(e, 10)
    e.bar()
    for q in range(16):
        e(f"ds_write_b128 v6, {vr(DAC+4*q,4)} offset:{q*1024}")
    e("s_waitcnt lgkmcnt(0)")
    e.bar()
    stamp(e, 11); stamp(e, 12); stamp(e, 13, True)
    stamp_flush(e, 14)
    e("s_endpgm")
    return e.nbar


SP_XB = 65536
SP_WQ = 131072


def sp_xload(e, rows_sgpr, lds_sgpr, chunk_sgpr):
    e(f"s_lshl_b32 s60, s{chunk_sgpr}, 7")
    e(f"s_add_u32 s60, s60, s{rows_sgpr}")
    e(f"s_lshl_b32 s61, s{chunk_sgpr}, 13")
    e(f"s_add_u32 s61, s61, {lds_sgpr}")
    for n in range(8):
        e(f"s_add_u32 m0, s61, {n * 1024}")
        e("s_add_u32 s60, s60, 8192" if n else "s_nop 0")
        e(f"buffer_load_dwordx4 v{4 + (n & 1)}, s[32:35], s60 offen lds")


def sp_start(e):
    e.label("SP_START")
    e("s_lshl_b32 s60, s31, 1")
    e("s_add_u32 s60, s60, s56")
    e("s_sub_u32 s97, s60, 14")
    e("s_lshl_b32 s63, s97, 16")
    x_dma_voff(e)
    e("s_waitcnt lgkmcnt(0)")
    srd(e, 32, 4, 2048 * 1024)
    e("s_cmp_ge_u32 s30, 8")
    e("s_cbranch_scc1 SP_START_H")
    sp_xload(e, 63, 0, 30)
    e("s_branch COMPUTE")
    e.label("SP_START_H")
    e("s_cmp_lt_u32 s3, 2")
    e("s_cselect_b32 s36, s8, s10")
    e("s_cselect_b32 s37, s9, s11")
    e("s_mov_b32 s38, 16384")
    e("s_mov_b32 s39, 0x00020000")
    e("s_lshl_b32 s61, s3, 13")
    e("s_and_b32 s62, s61, 0x2000")
    for n in range(8):
        if n % 4 == 0:
            e(f"s_add_u32 m0, s61, {SP_XB + n * 1024}")
            e(f"s_add_u32 s60, s62, {n * 1024}")
        e(f"buffer_load_dwordx4 v2, s[36:39], s60 offen offset:{(n & 3) * 1024} lds")
    e("s_branch SP_HELPER")


def sp_helper(e):
    e.label("SP_HELPER")
    e.vm = []
    e.nbar = 0
    e("v_mov_b32 v16, 0")
    stamp(e, 2)
    srd(e, 48, 28, WS_SIZE)
    srd(e, 72, 26, 0 if "noflag" in OPT else 256)
    e.wait_all()
    e.bar()
    stamp(e, 3)
    srd(e, 36, 22, 1024)
    e(f"s_mov_b32 m0, {SP_XB + 32768}")
    e("v_lshrrev_b32 v7, 2, v1")
    e("buffer_load_dwordx4 v2, s[36:39], 0 offen lds")
    e("v_and_b32 v8, 3, v1")
    e("v_lshlrev_b32 v8, 4, v8")
    e("v_lshl_add_u32 v9, v7, 10, v8")
    srd(e, 40, 6, 512 * 1024)
    e("s_lshl_b32 s60, s3, 17")
    e("s_lshl_b32 s62, s56, 6")
    e("s_add_u32 s60, s60, s62")
    e("s_lshl_b32 s61, s3, 13")
    for n in range(8):
        e(f"s_add_u32 m0, s61, {SP_WQ + n * 1024}")
        e("s_add_u32 s60, s60, 16384" if n else "s_nop 0")
        e("buffer_load_dwordx4 v9, s[40:43], s60 offen lds")
    e("s_lshl_b32 s60, s97, 9")
    e("s_lshl_b32 s61, s3, 7")
    e("s_add_u32 s60, s60, s61")
    e(f"s_add_u32 s60, s60, {WS_FL}")
    e("s_mov_b64 exec, 0xff")
    e("buffer_store_dword v16, v3, s[48:51], s60 offen sc1")
    e("s_mov_b64 exec, -1")
    for r in range(4):
        e(f"v_mov_b32 v{12+r}, -1")
    e("s_xor_b32 s63, s97, 1")
    e("s_lshl_b32 s63, s63, 16")
    e.wait_all()
    e.bar()
    cs(e, 4)
    e("s_cmp_lg_u32 s3, 3")
    e("s_cbranch_scc1 SPH_A")
    cnt_arrive(e, 0)
    e.label("SPH_A")
    e("s_lshl_b32 s60, s97, 16")
    e("s_lshl_b32 s61, s3, 14")
    e("s_add_u32 s60, s60, s61")
    e(f"s_add_u32 s60, s60, {WS_OF}")
    for n in range(16):
        if n % 4 == 0:
            e(f"s_add_u32 s61, s60, {n * 1024}")
        e(f"buffer_store_dwordx4 v[12:15], v2, s[48:51], s61 offen offset:{(n & 3) * 1024} sc1")
    e.bar()
    for u in range(2):
        e("s_lshl_b32 s62, s3, 1")
        e(f"s_add_u32 s62, s62, {u}")
        sp_xload(e, 63, SP_XB, 62)
    e.wait_all()
    e.bar()
    cs(e, 5)
    e("s_cmp_lg_u32 s3, 3")
    e("s_cbranch_scc1 SPH_C")
    cnt_arrive(e, 1)
    e.label("SPH_C")
    e("s_cmp_lg_u32 s3, 3")
    e("s_cbranch_scc1 SPH_B")
    cnt_spin(e, 0)
    e.label("SPH_B")
    e.wait_all()
    e.bar()
    e.bar()
    kv_piece(e, (0, 1, 2, 3))
    kv_piece(e, (4, 5, 6, 7))
    e("s_cmp_lg_u32 s3, 3")
    e("s_cbranch_scc1 SPH_D")
    cnt_spin(e, 1)
    e.label("SPH_D")
    e.wait_all()
    cs(e, 6)
    e.bar()
    cs(e, 7)
    e("s_branch DOWN")
    return e.nbar


def sp_compute(e):
    e.label("SP_COMPUTE")
    e.vm = []
    e.nbar = 0
    A = 64
    srd(e, 48, 28, WS_SIZE)
    srd(e, 52, 24, 2048 * 1024)
    stamp(e, 2)

    def xaddr(base):
        e("v_and_b32 v14, 31, v1")
        e("v_lshrrev_b32 v15, 5, v1")
        e("v_bfe_u32 v16, v1, 1, 3")
        e("v_xor_b32 v16, v16, v15")
        e("s_and_b32 s60, s30, 1")
        e("s_lshl_b32 s60, s60, 12")
        e(f"s_add_u32 s60, s60, {base}")
        e("v_lshlrev_b32 v17, 7, v14")
        e("v_add_u32 v17, s60, v17")
        for s in range(4):
            e(f"v_xor_b32 v18, {2*s}, v16")
            e(f"v_lshl_add_u32 v{10+s}, v18, 4, v17")
        e("v_bfe_u32 v16, v1, 2, 2")
        e("v_lshl_add_u32 v17, v15, 3, v16")
        e("v_and_b32 v18, 3, v1")
        e("v_lshlrev_b32 v18, 3, v18")
        for r in range(16):
            e(f"v_mov_b32 v{A+r}, 0")

    def chain(kind):
        lab = e.newlabel("CH")
        rs = {"K": 32, "V": 32, "Q": 64, "G": 2}[kind]
        if kind in "KV":
            e("v_lshl_add_u32 v14, v17, 5, v18")
            e(f"v_add_u32 v14, {SP_XB + (16384 if kind == 'V' else 0)}, v14")
        elif kind == "Q":
            e("v_lshl_add_u32 v14, v17, 6, v18")
            e("v_bfe_u32 v19, v1, 4, 1")
            e("v_lshl_add_u32 v14, v19, 5, v14")
            e(f"v_add_u32 v14, {SP_WQ}, v14")
        else:
            e("v_lshlrev_b32 v14, 4, v15")
            e(f"v_add_u32 v14, {SP_XB + 32768}, v14")
        def rd(s):
            e(f"ds_read_b128 {vr(24+4*s,4)}, v{10+s}")
            if kind == "G":
                e(f"ds_read_b128 {vr(40+4*s,4)}, v14 offset:{s*32}")
            else:
                for rho in range(2):
                    e(f"ds_read_b64_tr_b16 {vr(40+4*s+2*rho,2)}, v14 offset:{(16*s+4*rho)*rs}")
            e(f"v_add_u32 v{10+s}, 0x2000, v{10+s}")
            if s == 3:
                e(f"v_add_u32 v14, {64*rs}, v14")
        nrd = 2 if kind == "G" else 3
        for s in range(4):
            rd(s)
        e("s_mov_b32 s60, 8")
        e.label(lab)
        for s in range(4):
            e(f"s_waitcnt lgkmcnt({3 * nrd})")
            a, b = vr(40+4*s, 4), vr(24+4*s, 4)
            if kind == "V":
                a, b = b, a
            e(f"v_mfma_f32_32x32x16_bf16 {vr(A,16)}, {a}, {b}, {vr(A,16)}")
            rd(s)
        e("s_sub_u32 s60, s60, 1")
        e("s_cmp_lg_u32 s60, 0")
        e(f"s_cbranch_scc1 {lab}")
        e("s_waitcnt lgkmcnt(0)")

    xaddr(0)
    e("s_lshl_b32 s98, s97, 1")
    e("s_and_b32 s60, s30, 1")
    e("s_add_u32 s98, s98, s60")
    e.wait_all()
    e.bar()
    stamp(e, 3)
    e("s_lshr_b32 s99, s30, 1")
    e("s_cmp_eq_u32 s99, 1")
    e("s_cbranch_scc1 SPC_V")
    e("s_cmp_eq_u32 s99, 2")
    e("s_cbranch_scc1 SPC_G")
    e("s_cmp_eq_u32 s99, 3")
    e("s_cbranch_scc1 SPC_Q")
    chain("K")
    e(f"s_mov_b32 s60, {fbits(0.25 * LOG2E)}")
    e("v_and_b32 v14, 0x33, v1")
    e("v_bfe_u32 v15, v1, 2, 1")
    e("v_lshl_add_u32 v14, v15, 3, v14")
    e("v_bfe_u32 v15, v1, 3, 1")
    e("v_lshl_add_u32 v14, v15, 2, v14")
    e("v_lshlrev_b32 v14, 4, v14")
    e("s_nop 4")
    for r in range(8):
        e(f"v_mul_f32 v{A+r}, s60, v{A+r}")
    e(f"v_mul_f32 v18, v{A}, v{A}")
    for r in range(1, 8):
        e(f"v_fmac_f32 v18, v{A+r}, v{A+r}")
    for r in range(4):
        e(f"v_cvt_pk_bf16_f32 v{A+8+r}, v{A+2*r}, v{A+2*r+1}")
    e("s_lshl_b32 s60, s98, 11")
    e(f"s_add_u32 s60, s60, {WS_KV}")
    e(f"buffer_store_dwordx4 {vr(A+8,4)}, v14, s[48:51], s60 offen sc1")
    allreduce(e, "v_add_f32", 18, 19, 5, 6)
    allreduce(e, "v_max_f32", 18, 19, 0, 5)
    e("s_lshl_b32 s60, s98, 2")
    e(f"s_add_u32 s60, s60, {WS_KN}")
    e("s_mov_b64 exec, 1")
    e("buffer_store_dword v18, v3, s[48:51], s60 offen sc1")
    e("s_mov_b64 exec, -1")
    e("s_branch SPC_KV_DONE")
    e.label("SPC_V")
    chain("V")
    e("s_nop 9")
    for r in range(8):
        e(f"v_cvt_pk_bf16_f32 v{A+r}, v{A+2*r}, v{A+2*r+1}")
    e("s_lshl_b32 s60, s98, 11")
    e(f"s_add_u32 s60, s60, {WS_KV + 1024}")
    e("s_mov_b32 exec_lo, 0xffff")
    e("s_mov_b32 exec_hi, 0xffff")
    e(f"buffer_store_dwordx4 {vr(A,4)}, v2, s[48:51], s60 offen sc1")
    e(f"buffer_store_dwordx4 {vr(A+4,4)}, v2, s[48:51], s60 offen offset:256 sc1")
    e("s_mov_b64 exec, -1")
    e.label("SPC_KV_DONE")
    e("s_waitcnt vmcnt(0)")
    e("s_barrier")
    e("s_barrier")
    e("s_barrier")
    e("s_barrier")
    e("s_branch SPC_JOIN")
    e.label("SPC_G")
    e("s_barrier")
    chain("G")
    e("s_barrier")
    e("s_nop 9")
    e(f"v_mul_f32 v18, {fbits(-LOG2E)}, v{A}")
    e("v_exp_f32 v18, v18")
    e("s_lshl_b32 s60, s98, 7")
    e("v_add_f32 v18, 1.0, v18")
    e("v_rcp_f32 v20, v18")
    e(f"s_add_u32 s60, s60, {WS_G}")
    e("s_mov_b32 exec_hi, 0")
    e("buffer_store_dword v20, v3, s[48:51], s60 offen sc1")
    e("s_mov_b64 exec, -1")
    xaddr(SP_XB)
    e("s_xor_b32 s98, s98, 2")
    e("s_waitcnt vmcnt(0)")
    e("s_barrier")
    chain("Q")
    e("s_branch SPC_QW")
    e.label("SPC_Q")
    e.bar()
    chain("Q")
    e.bar()
    e.bar()
    e.label("SPC_QW")
    e.bar()
    e("s_and_b32 s60, s98, 3")
    e("s_nop 2")
    e("s_lshl_b32 s60, s60, 12")
    e(f"s_add_u32 s60, s60, {WD_BASE}")
    e("v_add_u32 v14, s60, v2")
    e("v_xor_b32 v15, 0x4000, v14")
    e("s_nop 3")
    for r in range(8):
        e(f"v_cvt_pk_bf16_f32 v{A+r}, v{A+2*r}, v{A+2*r+1}")
    e(f"ds_write_b128 v14, {vr(A,4)}")
    e(f"ds_write_b128 v15, {vr(A+4,4)}")
    e("s_waitcnt lgkmcnt(0)")
    e.label("SPC_JOIN")
    cs(e, 4); cs(e, 5)
    e(f"s_mov_b32 s60, {WS_KN}")
    e("buffer_load_dword v10, v3, s[48:51], s60 offen sc1")
    e("s_lshl_b32 s62, s30, 12")
    e(f"s_add_u32 s62, s62, {WD_BASE}")
    e("v_add_u32 v14, s62, v2")
    e.bar()
    e(f"ds_read_b128 {vr(R_Q,4)}, v14")
    for l in att_init():
        e(l)
    e("s_waitcnt vmcnt(0)")
    allreduce(e, "v_max_f32", 10, 12, 0, 6)
    e("s_waitcnt lgkmcnt(0)")
    e("s_branch QJOIN")
    return e.nbar


R_O = 16; R_VF = [32, 40]; R_Q = 48; R_C = 52; R_KF = [68, 72, 76, 80]; R_S = [88, 104]


def att_init():
    L = ["v_and_b32 v12, %d, v1" % (31 if "one1" in OPT else 27),
         "v_cmp_eq_u32 vcc, 16, v12",
         "v_mov_b32 v12, 0x3f803f80",
         "v_mov_b32 v8, 0xdddd",
         f"v_cndmask_b32 v{R_VF[0]}, 0, v12, vcc"]
    L += [f"v_mov_b32 v{R_VF[0]+1}, v{R_VF[0]}"]
    L += [f"v_mov_b64 {vr(R_VF[0]+r,2)}, {vr(R_VF[0],2)}" for r in range(2, 16, 2)]
    L += [f"v_mov_b64 {vr(R_O+r,2)}, 0" for r in range(0, 16, 2)]
    L += ["v_mov_b32 v13, v2", "v_mov_b32 v11, 0"]
    return L


def compute(e):
    e.label("COMPUTE")
    e("s_lshr_b32 s60, s30, 2")
    e("s_lshl_b32 s96, s31, 2")
    e("s_and_b32 s61, s30, 3")
    e("s_add_u32 s96, s96, s61")
    e("s_lshl_b32 s96, s96, 4")
    e("s_add_u32 s96, s96, s56")
    e("s_lshl_b32 s96, s96, 1")
    e("s_add_u32 s96, s96, s60")
    e("s_lshl_b32 s96, s96, 10")
    e("s_mov_b32 s40, 0xffff")
    e("s_mov_b32 s41, 0xffff")
    e("s_cmp_ge_u32 s56, 14")
    e("s_cbranch_scc1 SP_COMPUTE")
    e.vm = []
    e.nbar = 0
    if "pf" in OPT:
        e("s_getpc_b64 s[44:45]")
        e.label("PC_REF")
        e(f"s_sub_u32 s44, s44, PC_REF-{NAME}_kernel")
        e("s_subb_u32 s45, s45, 0")
        e("s_and_b32 s60, s94, 3")
        e("s_lshl_b32 s60, s60, 3")
        e("s_add_u32 s60, s60, s30")
        e("s_lshl_b32 s60, s60, 10")
        e(f"s_min_u32 s60, s60, CODE_END-{NAME}_kernel-1024")
        e("v_add_u32 v24, s60, v2")
        e("global_load_dwordx4 v[24:27], v24, s[44:45]")
    XA = 160
    e("v_and_b32 v14, 15, v1")
    e("v_bfe_u32 v16, v1, 1, 3")
    e("v_xor_b32 v16, v16, v6")
    e("s_and_b32 s60, s30, 3")
    e("s_lshl_b32 s60, s60, 12")
    e("v_lshlrev_b32 v17, 7, v14")
    e("v_add_u32 v17, s60, v17")
    for s in range(2):
        e(f"v_xor_b32 v18, {4*s}, v16")
        e(f"v_lshl_add_u32 v{XA+s}, v18, 4, v17")
        e(f"v_xor_b32 v{XA+2+s}, 0x1000, v{XA+s}")
        e(f"v_add_u32 v{XA+4+s}, {X_BASE[2]}, v{XA+s}")
        e(f"v_add_u32 v{XA+6+s}, {X_BASE[2]}, v{XA+2+s}")
    e("s_lshr_b32 s60, s30, 2")
    e("s_lshl_b32 s92, s60, 1")
    e("s_and_b32 s61, s30, 1")
    e("s_add_u32 s92, s92, s61")
    e("v_bfe_u32 v16, v1, 2, 2")
    e("v_lshl_add_u32 v17, v6, 3, v16")
    e("v_and_b32 v19, 3, v1")
    e("v_and_b32 v18, 1, v6")
    e("v_xor_b32 v14, s60, v18")
    e("v_lshlrev_b32 v9, 6, v17")
    e("v_lshl_add_u32 v9, v14, 5, v9")
    e("v_and_b32 v14, 1, v1")
    e("v_lshl_add_u32 v9, v14, 4, v9")
    e("v_bfe_u32 v14, v1, 1, 1")
    e("v_lshl_add_u32 v9, v14, 3, v9")
    e("v_lshl_add_u32 v18, v18, 2, v16")
    e("s_lshl_b32 s61, s92, 1")
    e("v_xor_b32 v18, s61, v18")
    e("v_lshlrev_b32 v4, 8, v17")
    e("v_lshl_add_u32 v4, v18, 5, v4")
    e("v_lshl_add_u32 v4, v19, 3, v4")
    e("s_and_b32 s60, s30, 2")
    e("s_lshl_b32 s60, s60, 1")
    e("s_add_u32 s60, s60, s92")
    e("s_lshl_b32 s60, s60, 1")
    e("s_and_b32 s61, s30, 1")
    e("s_add_u32 s60, s60, s61")
    e("s_lshl_b32 s60, s60, 11")
    e(f"s_add_u32 s60, s60, {WD_BASE}")
    e("v_and_b32 v14, 15, v1")
    e("v_lshlrev_b32 v14, 4, v14")
    e("v_and_b32 v15, 1, v6")
    e("v_lshl_add_u32 v14, v15, 9, v14")
    e("v_lshrrev_b32 v15, 1, v6")
    e("v_lshl_add_u32 v14, v15, 3, v14")
    e("v_add_u32 v14, s60, v14")
    e("v_xor_b32 v15, 0x800, v14")
    e("v_xor_b32 v5, 32, v4")
    e(f"v_add_u32 v4, {W_BASE}, v4")
    e(f"v_add_u32 v5, {W_BASE}, v5")
    e("v_add_u32 v6, 0x10000, v4")
    e("v_add_u32 v7, 0x10000, v5")
    e("s_waitcnt lgkmcnt(0)")
    srd(e, 48, 28, WS_SIZE)
    srd(e, 52, 24, 2048 * 1024)
    e(f"s_mov_b32 s64, {fbits(-LOG2E)}")
    e(f"s_mov_b32 s65, {fbits(-LOG2E)}")
    e("s_mov_b32 s66, 1.0")
    e("s_mov_b32 s67, 1.0")
    e("s_waitcnt vmcnt(0)")
    stamp(e, 2)

    ACC = 88
    QACC = 152
    FR = [16, 52]

    def reads(kc, s, fb):
        st = stage(kc)
        f = FR[fb]
        L = []
        for rho in range(2):
            L.append(f"ds_read_b64_tr_b16 {vr(f + 16 + 2*rho, 2)}, v9 offset:{QS_BASE + st * 4096 + (32 * s + 4 * rho) * 64}")
        for t in range(4):
            a = XA + (4 if st == 2 else 0) + 2 * (t >> 1) + s
            L.append(f"ds_read_b128 {vr(f + 4*t, 4)}, v{a} offset:{(X_BASE[st] if st < 2 else 0) + (t & 1) * 2048}")
        for jj in range(4):
            m, j = jj >> 1, jj & 1
            for rho in range(2):
                off = st * 32768 + m * 16384 + (32 * s + 4 * rho) * 256
                a = 4 + j
                if off >= 65536:
                    off -= 65536
                    a += 2
                L.append(f"ds_read_b64_tr_b16 {vr(f + 20 + 4*jj + 2*rho, 2)}, v{a} offset:{off}")
        return L

    def mfmas(fb, first):
        f = FR[fb]
        L = []
        for t in range(2):
            d = QACC + 4 * t
            L.append(f"v_mfma_f32_16x16x32_bf16 {vr(d,4)}, {vr(f+16,4)}, {vr(f+4*t,4)}, " + ("0" if first else vr(d, 4)))
        for jj in range(4):
            for t in ((1, 0, 2, 3) if jj == 0 else (3, 2, 1, 0) if jj & 1 else (0, 1, 2, 3)):
                d = ACC + 16 * jj + 4 * t
                L.append(f"v_mfma_f32_16x16x32_bf16 {vr(d,4)}, {vr(f+20+4*jj,4)}, {vr(f+4*t,4)}, " + ("0" if first else vr(d, 4)))
        return L

    Q = R_Q; IDX = 8; C = R_C; O = R_O; S = R_S; KF = R_KF; VF = R_VF
    e.bar()
    stamp(e, 3)
    for l in reads(0, 0, 0):
        e(l)
    for kc in range(8):
        for s in range(2):
            e("s_waitcnt lgkmcnt(0)")
            per = 1
            if s == 0:
                rl = reads(kc, 1, 1)
                if kc == 7:
                    rl = rl + [f"s_mov_b32 s60, {WS_KN}", "buffer_load_dword v10, v3, s[48:51], s60 offen sc1"]
            elif kc < 7:
                e.bar()
                fs(e, 4 + kc)
                rl = reads(kc + 1, 0, 0)
            else:
                e.bar()
                rl = att_init()
                per = 2
            ml = mfmas(s, kc == 0 and s == 0)
            for i, m in enumerate(ml):
                e(m)
                for l in rl[per*i:per*i+per]:
                    e(l)
            for l in rl[per*len(ml):]:
                e(l)
        if kc == 3:
            cs(e, 4)
    cs(e, 5)
    e(f"v_cvt_pk_bf16_f32 v{Q}, v{QACC}, v{QACC+1}")
    e(f"v_cvt_pk_bf16_f32 v{Q+1}, v{QACC+2}, v{QACC+3}")
    e(f"v_cvt_pk_bf16_f32 v{Q+2}, v{QACC+4}, v{QACC+5}")
    e(f"v_cvt_pk_bf16_f32 v{Q+3}, v{QACC+6}, v{QACC+7}")
    e("s_waitcnt vmcnt(0)")
    e("s_nop 0")
    e(f"v_permlane16_swap_b32 v{Q}, v{Q+2}")
    e(f"v_permlane16_swap_b32 v{Q+1}, v{Q+3}")
    red = Asm()
    allreduce(red, "v_max_f32", 10, 12, 0, 6)
    red = [l.strip() for l in red.lines]
    for j in range(2):
        G = ACC + 16 * j
        U = ACC + 32 + 16 * j
        for r in range(0, 16, 2):
            e(f"v_pk_mul_f32 {vr(G+r,2)}, {vr(G+r,2)}, s[64:65]")
        for r in range(16):
            e(f"v_exp_f32 v{G+r}, v{G+r}")
            if j == 0 and r % 2 == 1:
                while red and red[0].startswith("s_nop"):
                    red.pop(0)
                if red:
                    e(red.pop(0))
                    if red and not red[0].startswith("s_nop"):
                        e(red.pop(0))
        for r in range(0, 16, 2):
            e(f"v_pk_add_f32 {vr(G+r,2)}, {vr(G+r,2)}, s[66:67]")
        for r in range(16):
            e(f"v_rcp_f32 v{G+r}, v{G+r}")
        for r in range(0, 16, 2):
            e(f"v_pk_mul_f32 {vr(G+r,2)}, {vr(G+r,2)}, {vr(U+r,2)}")
        for r in range(8):
            e(f"v_cvt_pk_bf16_f32 v{U+r}, v{G+2*r}, v{G+2*r+1}")
        for t in range(4):
            e(f"ds_write_b64 v{14 + (t >> 1)}, {vr(U+2*t,2)} offset:{j*1024 + (t & 1)*256}")
    assert not red, red
    nb_ffn = e.nbar
    e.label("QJOIN")
    e.nbar = 0
    cs(e, 6)
    for i in range(4):
        e(f"v_dot2c_f32_bf16 v11, v{Q+i}, v{Q+i}")
    e(f"v_mul_f32 v10, {fbits(1.04)}, v10")
    e("s_nop 1")
    allreduce(e, "v_add_f32", 11, 12, 5, 6)
    e("v_mul_f32 v11, v11, v10")
    e("v_sqrt_f32 v11, v11")
    e(f"s_mov_b32 s60, {fbits(SAFE_BOUND)}")
    e("v_cmp_nle_f32 vcc, v11, s60")
    e(f"v_sub_f32 v{C}, 0, v11")
    e(f"v_sub_f32 v{C+1}, 0, v11")
    for r in range(2, 16, 2):
        e(f"v_mov_b64 {vr(C+r,2)}, {vr(C,2)}")
    e("s_waitcnt lgkmcnt(0)")
    cs(e, 7)
    e.bar()
    e("s_cbranch_vccz ATT_GO")
    e("v_mov_b32 v11, 0xff800000")
    e("v_mov_b32 v12, v2")
    e("s_mov_b32 s60, 64")
    e.label("MAXLOOP")
    e(f"ds_read_b128 {vr(KF[0],4)}, v12")
    e("v_add_u32 v12, 0x800, v12")
    e("s_waitcnt lgkmcnt(0)")
    e(f"v_mfma_f32_32x32x16_bf16 {vr(S[0],16)}, {vr(KF[0],4)}, {vr(Q,4)}, 0")
    e("s_nop 15")
    for r in range(8):
        e(f"v_max3_f32 v11, v11, v{S[0]+2*r}, v{S[0]+2*r+1}")
    e("s_sub_u32 s60, s60, 1")
    e("s_cmp_lg_u32 s60, 0")
    e("s_cbranch_scc1 MAXLOOP")
    allreduce(e, "v_max_f32", 11, 12, 5, 6)
    for r in range(16):
        e(f"v_sub_f32 v{C+r}, 0, v11")
    e.label("ATT_GO")

    def laddr(t):
        return ("v13", t * 2048)
    def rdK(t, b):
        a, o = laddr(t)
        e(f"ds_read_b128 {vr(KF[b],4)}, {a} offset:{o}")
    def rdV(t, b):
        a, o = laddr(t)
        e("s_mov_b64 exec, s[40:41]")
        e(f"ds_read_b128 {vr(VF[b],4)}, {a} offset:{o+1024}")
        e(f"ds_read_b128 {vr(VF[b]+4,4)}, {a} offset:{o+1280}")
        e("s_mov_b64 exec, -1")
    def qk(t):
        e(f"v_mfma_f32_32x32x16_bf16 {vr(S[t & 1],16)}, {vr(KF[t & 3],4)}, {vr(Q,4)}, {vr(C,16)}")
    def sp(b, half):
        e(f"v_smfmac_f32_32x32x32_bf16 {vr(O,16)}, {vr(VF[b]+4*half,4)}, {vr(S[b]+8*half,8)}, v{IDX}")
    def ex(b, lo, hi):
        for r in range(lo, hi):
            e(f"v_exp_f32 v{S[b]+r}, v{S[b]+r}")

    rdK(0, 0)
    rdK(1, 1)
    rdV(0, 0)
    rdK(2, 2)
    rdK(3, 3)
    e("v_and_b32 v10, 31, v1")
    e("v_lshlrev_b32 v12, 2, v10")
    e("s_lshr_b32 s60, s96, 15")
    e("s_lshl_b32 s60, s60, 7")
    e(f"s_add_u32 s60, s60, {WS_G}")
    e("buffer_load_dword v163, v12, s[48:51], s60 offen sc1")
    cs(e, 8)
    e("s_waitcnt lgkmcnt(4)")
    qk(0)
    UN = int(os.environ.get("UN", "8"))
    e(f"s_mov_b32 s60, {64 // UN}")
    PSW = int(os.environ.get("PSW", "1"))
    if PSW:
        e("s_setprio 1")
        e("s_mov_b32 s61, 99")
        e("s_cmp_ge_u32 s30, 4")
        e("s_cbranch_scc1 PRIO_SET")
        e("s_setprio 2")
        e(f"s_mov_b32 s61, {PSW}")
        e.label("PRIO_SET")
    e("s_nop 11")
    ex(0, 0, 2)
    e("s_branch ATT_ENTRY")
    e.raw(".p2align 6")
    e.label("ATT_LOOP")
    if PSW:
        e("s_cmp_lg_u32 s60, s61")
        e("s_cbranch_scc1 PRIO_KEEP")
        e("s_setprio 0")
        e.label("PRIO_KEEP")
    for t in range(UN):
        b = t & 1
        ex(b, 0, 2)
        sp(b ^ 1, 1)
        rdK(t + 3, (t + 3) & 3)
        if t == 0:
            e.label("ATT_ENTRY")
        ex(b, 2, 6)
        qk(t + 1)
        e("s_waitcnt lgkmcnt(1)")
        ex(b, 6, 11)
        sp(b, 0)
        rdV(t + 1, b ^ 1)
        if t == UN - 1:
            e(f"v_add_u32 v13, {UN * 2048}, v13")
            e("s_sub_u32 s60, s60, 1")
            e("s_cmp_lg_u32 s60, 0")
        ex(b, 11, 16)
    e("s_cbranch_scc1 ATT_LOOP")
    e("s_waitcnt lgkmcnt(0)")
    e("s_nop 1")
    sp(1, 1)
    OB = 96
    WOB = 80
    PB = 16
    e("s_lshl_b32 s34, s76, 1")
    e("s_and_b32 s61, s30, 1")
    e("s_add_u32 s34, s34, s61")
    e("s_lshl_b32 s63, s34, 15")
    e(f"s_add_u32 s34, s63, {WS_OF + 1024}")
    e("s_lshl_b32 s61, s77, 7")
    e("s_add_u32 s63, s63, s61")
    e("s_and_b32 s61, s30, 2")
    e("s_lshl_b32 s61, s61, 5")
    e("s_add_u32 s63, s63, s61")
    e(f"s_add_u32 s62, s96, {WS_OF}")
    e("s_waitcnt vmcnt(0)")
    e("s_nop 1")
    cs(e, 9)
    if "one1" in OPT:
        e(f"v_mov_b32 v12, v{O+8}")
        e("s_nop 1")
        e(f"v_permlane32_swap_b32 v{O+8}, v12")
        e("s_nop 1")
    e(f"v_rcp_f32 v11, v{O+8}")
    e("s_nop 0")
    e("v_mul_f32 v11, v11, v163")
    for r in range(8):
        e(f"v_mul_f32 v{O+r}, v{O+r}, v11")
    for r in range(4):
        e(f"v_cvt_pk_bf16_f32 v{164+r}, v{O+2*r}, v{O+2*r+1}")
    e("buffer_store_dwordx4 v[164:167], v2, s[48:51], s62 offen sc1")
    e("s_cmp_lt_u32 s30, 4")
    e("s_cbranch_scc1 FINISH")
    e("s_barrier")
    e("s_barrier")
    e("s_branch A_DONE")
    e.label("FINISH")

    def oload(g):
        for i in range(4):
            e(f"s_add_u32 s60, s34, {(g + 4 * i) * 2048}")
            e(f"buffer_load_dwordx4 {vr(OB+16*g+4*i,4)}, v2, s[48:51], s60 offen sc1")
    WO = 32
    tr_addr128(e, 161, 162, 11, 12)
    e("s_and_b32 s60, s30, 2")
    e("s_lshl_b32 s60, s60, 5")
    e("v_xor_b32 v161, s60, v161")
    e(f"v_add_u32 v161, {WD_BASE}, v161")
    e("v_lshrrev_b32 v11, 5, v1")
    e("v_lshlrev_b32 v10, 10, v10")
    e("v_lshl_add_u32 v10, v11, 4, v10")
    e("s_lshl_b32 s60, s30, 12")
    e("v_add_u32 v6, s60, v2")
    e("s_mov_b32 s35, 15")
    e("s_setprio 3")
    e.bar()
    f2(e, 4)
    for g in range(2):
        oload(g)
    e.bar()
    f2(e, 5)
    for p in range(4):
        for jq in range(4):
            e(f"ds_read_b128 {vr(PB+16*p+4*jq,4)}, v6 offset:{p*16384 + jq*1024}")
    def wread(f):
        k = (f >> 2) + 4 * (f & 3)
        for rho in range(2):
            e(f"ds_read_b64_tr_b16 {vr(WO+4*f+2*rho,2)}, v161 offset:{k*2048 + rho*1024}")
    for g in range(2, 4):
        oload(g)
    e("s_waitcnt lgkmcnt(0)")
    for f in range(12, 16):
        wread(f)
    for r in range(0, 16, 2):
        e(f"v_pk_add_f32 {vr(PB+r,2)}, {vr(PB+r,2)}, {vr(PB+16+r,2)}")
    for f in range(0, 4):
        wread(f)
    for r in range(0, 16, 2):
        e(f"v_pk_add_f32 {vr(PB+r,2)}, {vr(PB+r,2)}, {vr(PB+32+r,2)}")
    for f in range(4, 8):
        wread(f)
    for r in range(0, 16, 2):
        e(f"v_pk_add_f32 {vr(PB+r,2)}, {vr(PB+r,2)}, {vr(PB+48+r,2)}")
    for f in range(8, 12):
        wread(f)
    f2(e, 6)

    def ogroup(g, tag):
        o = OB + 16 * g
        e(f"v_max_u32 v11, v{o}, v{o+1}")
        for r in range(1, 8):
            e(f"v_max3_u32 v11, v11, v{o+2*r}, v{o+2*r+1}")
        e("v_cmp_eq_u32 vcc, -1, v11")
        e("s_cmp_eq_u32 s100, 0")
        e(f"s_cbranch_scc1 OGO{tag}")
        e("s_nop 2")
        e(f"s_cbranch_vccnz ONEXT{tag}")
        e.label(f"OGO{tag}")
        for i in range(4):
            e(f"v_mfma_f32_32x32x16_bf16 {vr(PB,16)}, {vr(WO+16*g+4*i,4)}, {vr(o+4*i,4)}, {vr(PB,16)}")
        e(f"s_bitset0_b32 s35, {g}")
        e.label(f"ONEXT{tag}")
    e("s_waitcnt lgkmcnt(0)")
    for g in range(4):
        e(f"s_waitcnt vmcnt({12 - 4 * g})")
        ogroup(g, f"A{g}")
    e("s_cmp_eq_u32 s35, 0")
    e("s_cbranch_scc1 ODONE")
    e.label("OLOOP")
    e("s_sub_u32 s100, s100, 1")
    for g in range(4):
        e(f"s_bitcmp0_b32 s35, {g}")
        e(f"s_cbranch_scc1 OSK{g}")
        oload(g)
        e.label(f"OSK{g}")
    e("s_waitcnt vmcnt(0)")
    for g in range(4):
        e(f"s_bitcmp0_b32 s35, {g}")
        e(f"s_cbranch_scc1 ONEXTB{g}")
        ogroup(g, f"B{g}")
    e("s_cmp_lg_u32 s35, 0")
    e("s_cbranch_scc1 OLOOP")
    e.label("ODONE")
    cs(e, 10); f2(e, 7)
    e("s_nop 11")
    for r in range(8):
        e(f"v_cvt_pk_bf16_f32 v{32+r}, v{PB+2*r}, v{PB+2*r+1}")
    e("s_nop 1")
    e("v_permlane32_swap_b32 v32, v34")
    e("v_permlane32_swap_b32 v33, v35")
    e("v_permlane32_swap_b32 v36, v38")
    e("v_permlane32_swap_b32 v37, v39")
    ost = os.environ.get("OST", "")
    e(f"buffer_store_dwordx4 v[32:35], v10, s[52:55], s63 offen {ost}")
    e(f"buffer_store_dwordx4 v[36:39], v10, s[52:55], s63 offen offset:32 {ost}")
    e.label("A_DONE")
    stamp(e, 11)
    if STAMP:
        e("s_waitcnt vmcnt(0)")
    stamp(e, 12); stamp(e, 13, True)
    stamp_flush(e, 14)
    e.label("K_END")
    e("s_endpgm")
    return nb_ffn, e.nbar


def kd(name, vgpr, sgpr=102):
    acc = (vgpr + 3) // 4 * 4
    return f""".p2align 6
.amdhsa_kernel {name}
  .amdhsa_next_free_vgpr {vgpr}
  .amdhsa_next_free_sgpr {sgpr}
  .amdhsa_accum_offset {acc}
  .amdhsa_group_segment_fixed_size 0
  .amdhsa_kernarg_size 104
  .amdhsa_user_sgpr_count 2
  .amdhsa_user_sgpr_kernarg_segment_ptr 1
  .amdhsa_system_sgpr_workgroup_id_x 1
.end_amdhsa_kernel
"""


def main(out):
    ref = open(f"cdna_kernels/{NAME}.s.ref").read().split("\n")
    hdr = [l for l in ref if l.startswith(";") and "@launch" not in l and "Override" not in l and "grid=ceil" not in l]
    e = Asm()
    prologue(e)
    sp_start(e)
    n1 = loader(e)
    n2 = service(e)
    n3 = down(e)
    nf, nc = compute(e)
    n5 = sp_helper(e)
    n6 = sp_compute(e)
    e.label("CODE_END")
    assert n1 == n2 and n1 + n3 == nf + nc and n5 + n3 == n6 + nc, (n1, n2, n3, nf, nc, n5, n6)
    s = "\n".join(hdr) + "\n"
    s += f"; @launch grid=(256,1,1) block=(768,1,1) lds={LDS_TOTAL}\n"
    s += '.amdgcn_target "amdgcn-amd-amdhsa--gfx950"\n.text\n'
    s += e.text()
    s += '.section .rodata,"a"\n'
    s += kd(NAME + "_kernel", 168)
    open(out, "w").write(s)


if __name__ == "__main__":
    main(sys.argv[1] if len(sys.argv) > 1 else f"cdna_kernels/{NAME}.s")
```

```python
import sys, os, struct

NAME = "gated_mix__grouped_kv_mqa__glu_gated_glu__prompt"

WS_OF = 2 << 20
WS_KV = 4 << 20
WS_KN = WS_KV + 131072
WS_G = WS_KN + 4096
WS_FL = WS_G + 8192
WS_HF = 8 << 20
WS_ST = 15 << 20
WS_SIZE = 16 << 20
OOB = 0x7f000000

LOG2E = 1.4426950408889634
STAMP = os.environ.get("STAMP", "0") == "1"
OPT = set(os.environ.get("OPT", "").split(","))
FINE = "fine" in OPT
FINE2 = "fine2" in OPT


def fbits(x):
    return "0x%08x" % struct.unpack("<I", struct.pack("<f", x))[0]


class Asm:
    def __init__(self):
        self.lines = []
        self.vm = []
        self.uid = 0
        self.nbar = 0
    def __call__(self, s):
        self.lines.append("    " + s)
    def label(self, s):
        self.lines.append(s + ":")
    def raw(self, s):
        self.lines.append(s)
    def vmem(self, s, tag):
        self(s)
        self.vm.append(tag)
    def wait_vm(self, tag):
        idxs = [i for i, t in enumerate(self.vm) if t == tag]
        if not idxs:
            return
        idx = max(idxs)
        n = len(self.vm) - 1 - idx
        assert n <= 63
        self(f"s_waitcnt vmcnt({n})")
        self.vm = self.vm[idx + 1:]
    def wait_all(self):
        self("s_waitcnt vmcnt(0)")
        self.vm = []
    def bar(self):
        self("s_barrier")
        self.nbar += 1
    def newlabel(self, p):
        self.uid += 1
        return f"{p}_{self.uid}"
    def text(self):
        return "\n".join(self.lines) + "\n"


def stamp(e, i, real=False):
    if not STAMP:
        return
    if "amp" in OPT:
        if i not in (1, int(os.environ["AMP"])):
            return
        real = True
    if "rt" in OPT:
        real = True
    e(("s_memrealtime" if real else "s_memtime") + " s[78:79]")
    e("s_waitcnt lgkmcnt(0)")
    e(f"s_mov_b32 s{80+i}, s78")


def cs(e, i):
    if not FINE and not (FINE2 and i in (4, 5, 6, 7)):
        stamp(e, i)


def f2(e, i):
    if FINE2:
        stamp(e, i)


def fs(e, i):
    if FINE:
        stamp(e, i)


def stamp_flush(e, n):
    if not STAMP:
        return
    e("s_getreg_b32 s94, hwreg(HW_REG_XCC_ID)")
    n += 1
    if "amp" in OPT:
        lab, lp = e.newlabel("AMPS"), e.newlabel("AMPL")
        i = int(os.environ["AMP"])
        e(f"s_cmp_lg_u32 s30, {int(os.environ.get('DBGW', '4'))}")
        e(f"s_cbranch_scc1 {lab}")
        e(("s_cmp_lt_u32" if "dbgsp" in OPT else "s_cmp_ge_u32") + " s56, 14")
        e(f"s_cbranch_scc1 {lab}")
        e(f"s_sub_u32 s60, s{80+i}, s81")
        e("s_mul_i32 s60, s60, 10")
        e("s_memrealtime s[62:63]")
        e("s_waitcnt lgkmcnt(0)")
        e.label(lp)
        e("s_memrealtime s[78:79]")
        e("s_waitcnt lgkmcnt(0)")
        e("s_sub_u32 s61, s78, s62")
        e("s_cmp_lt_u32 s61, s60")
        e(f"s_cbranch_scc1 {lp}")
        e.label(lab)
        return
    if "dbg" in OPT:
        lab = e.newlabel("DBGS")
        lo = int(os.environ.get("DBGW", "4"))
        e(f"s_sub_u32 s78, s30, {lo}")
        e("s_cmp_ge_u32 s78, 4")
        e(f"s_cbranch_scc1 {lab}")
        e(("s_cmp_lt_u32" if "dbgsp" in OPT else "s_cmp_ge_u32") + " s56, 14")
        e(f"s_cbranch_scc1 {lab}")
        srd(e, 72, 26, 256)
        e("v_mov_b32 v0, 0")
        e("s_mov_b64 exec, 1")
        for i in range(2, 13):
            e(f"s_sub_u32 s78, s{80+i}, s81")
            e("v_mov_b32 v1, s78")
            e(f"buffer_atomic_umax v1, v0, s[72:75], 0 offen offset:{4*i}")
        e("s_sub_u32 s78, s93, s80")
        e("v_mov_b32 v1, s78")
        e(f"buffer_atomic_umax v1, v0, s[72:75], 0 offen offset:52")
        e("s_mov_b64 exec, -1")
        e.label(lab)
        return
    e("s_lshl_b32 s78, s2, 4")
    e("s_add_u32 s78, s78, s30")
    e("s_lshl_b32 s78, s78, 6")
    e(f"s_add_u32 s78, s78, {WS_ST}")
    e("v_mov_b32 v0, 0")
    e("s_mov_b64 exec, 1")
    for i in range(n):
        e(f"v_mov_b32 v1, s{80+i}")
        e(f"buffer_store_dword v1, v0, s[48:51], s78 offen offset:{4*i}")
    e("s_mov_b64 exec, -1")


def vr(a, n=1):
    return f"v{a}" if n == 1 else f"v[{a}:{a+n-1}]"


def srd(e, d, base, size):
    e(f"s_mov_b32 s{d}, s{base}")
    e(f"s_mov_b32 s{d+1}, s{base+1}")
    e(f"s_mov_b32 s{d+2}, {size}")
    e(f"s_mov_b32 s{d+3}, 0x00020000")


def allreduce(e, op, x, t, lo=0, hi=6):
    dpp = ["quad_perm:[1,0,3,2]", "quad_perm:[2,3,0,1]", "row_half_mirror", "row_mirror"]
    for b in range(lo, min(hi, 4)):
        e("s_nop 1")
        e(f"{op}_dpp v{x}, v{x}, v{x} {dpp[b]} row_mask:0xf bank_mask:0xf")
    for b, ins in ((4, "v_permlane16_swap_b32"), (5, "v_permlane32_swap_b32")):
        if lo <= b < hi:
            e(f"v_mov_b32 v{t}, v{x}")
            e("s_nop 1")
            e(f"{ins} v{x}, v{t}")
            e("s_nop 1")
            e(f"{op} v{x}, v{x}, v{t}")


X_ST = 16384
W_BASE = 3 * X_ST
QS_BASE = 32768
X_BASE = [0, 16384, 147456]
LDS_TOTAL = 163840
def stage(kc):
    return (kc + 1) % 3
SAFE_BOUND = 48.0
WD_BASE = 131072
NBW = 4


def spin_guard(e, done):
    e("s_cmp_eq_u32 s100, 0")
    e(f"s_cbranch_scc1 {done}")
    e("s_sub_u32 s100, s100, 1")


def spin(e, load, check, sleep, preloaded=False):
    lo, chk, done = e.newlabel("SPIN"), e.newlabel("SPINC"), e.newlabel("SPIND")
    if preloaded:
        e(f"s_branch {chk}")
    e.label(lo)
    load()
    e.label(chk)
    e.wait_all()
    check()
    e("s_nop 4")
    e(f"s_cbranch_vccz {done}")
    spin_guard(e, done)
    e(f"s_sleep {sleep}")
    e(f"s_branch {lo}")
    e.label(done)


def tr_addr128(e, d0, d1, t0, t1):
    e(f"v_bfe_u32 v{t0}, v1, 2, 2")
    e(f"v_lshrrev_b32 v{t1}, 5, v1")
    e(f"v_lshl_add_u32 v{d0}, v{t1}, 2, v{t0}")
    e(f"v_lshlrev_b32 v{d0}, 7, v{d0}")
    e(f"v_bfe_u32 v{t1}, v1, 4, 1")
    e(f"v_lshl_add_u32 v{d0}, v{t1}, 5, v{d0}")
    e(f"v_and_b32 v{t1}, 3, v1")
    e(f"v_lshl_add_u32 v{d0}, v{t1}, 3, v{d0}")
    e(f"v_bfe_u32 v{t1}, v1, 3, 1")
    e(f"v_lshlrev_b32 v{t1}, 6, v{t1}")
    e(f"v_add_u32 v{d0}, v{d0}, v{t1}")
    e(f"v_xor_b32 v{d1}, 64, v{d0}")


def dma_voff128(e, d, t0, t1):
    e(f"v_lshrrev_b32 v{t0}, 3, v1")
    e(f"v_bfe_u32 v{t1}, v1, 4, 1")
    e(f"v_lshlrev_b32 v{t1}, 2, v{t1}")
    e(f"v_and_b32 v{d}, 7, v1")
    e(f"v_xor_b32 v{d}, v{d}, v{t1}")
    e(f"v_lshlrev_b32 v{d}, 4, v{d}")
    e(f"v_lshl_add_u32 v{d}, v{t0}, 10, v{d}")


def prologue(e):
    n = NAME + "_kernel"
    e.raw(f".globl {n}\n.p2align 8\n.type {n},@function\n{n}:")
    e("s_cmp_ge_u32 s2, 256")
    e("s_cbranch_scc1 K_END")
    stamp(e, 0, True); stamp(e, 1)
    e("s_load_dwordx16 s[4:19], s[0:1], 0")
    e("s_load_dwordx8 s[20:27], s[0:1], 64")
    e("s_load_dwordx2 s[28:29], s[0:1], 96")
    e("s_mov_b32 s100, %d" % (0 if "nospin" in OPT else 0x20000))
    e("v_lshrrev_b32 v2, 6, v0")
    e("v_and_b32 v1, 63, v0")
    e("v_readfirstlane_b32 s30, v2")
    e("v_lshlrev_b32 v2, 4, v1")
    e("v_lshlrev_b32 v3, 2, v1")
    e("v_lshrrev_b32 v6, 4, v1")
    e("s_and_b32 s57, s2, 7")
    if "spread" not in OPT:
        e("s_lshr_b32 s60, s57, 2")
        e("s_and_b32 s61, s57, 1")
        if "evensp" in OPT:
            e("s_xor_b32 s61, s61, 1")
        e("s_lshl_b32 s61, s61, 2")
        e("s_and_b32 s57, s57, 2")
        e("s_or_b32 s57, s57, s60")
        e("s_or_b32 s57, s57, s61")
    e("s_lshr_b32 s59, s2, 3")
    e("s_and_b32 s94, s59, 7")
    e("s_lshr_b32 s95, s59, 3")
    e("s_and_b32 s31, s57, 1")
    e("s_lshl_b32 s31, s31, 3")
    e("s_add_u32 s31, s31, s94")
    e("s_lshr_b32 s56, s57, 1")
    e("s_xor_b32 s60, s95, 3")
    e("s_lshl_b32 s60, s60, 2")
    e("s_add_u32 s56, s56, s60")
    if "spread" in OPT:
        e("s_and_b32 s60, s59, 25")
        e("s_cmp_eq_u32 s60, 1")
        e("s_cselect_b32 s60, 2, 0")
        e("s_xor_b32 s56, s56, s60")
    if "oldi2" in OPT:
        e("s_and_b32 s76, s57, 3")
        e("s_lshl_b32 s76, s76, 3")
    else:
        e("s_andn2_b32 s76, 1, s57")
        e("s_lshl_b32 s76, s76, 4")
        e("s_and_b32 s60, s57, 2")
        e("s_lshl_b32 s60, s60, 2")
        e("s_add_u32 s76, s76, s60")
    e("s_add_u32 s76, s76, s94")
    e("s_lshr_b32 s77, s57, 2")
    e("s_lshl_b32 s77, s77, 2")
    e("s_add_u32 s77, s77, s95")
    e("s_sub_u32 s3, s30, 8")
    rot = os.environ.get("ROT", "8")
    e("s_lshl_b32 s58, s95, 1")
    e("s_add_u32 s58, s58, s94")
    if rot == "4":
        e("s_and_b32 s58, s58, 6")
    elif rot == "2":
        e("s_add_u32 s58, s94, s95")
        e("s_and_b32 s58, s58, 1")
        e("s_lshl_b32 s58, s58, 2")
    elif rot == "1":
        e("s_mov_b32 s58, 0")
    e("s_cmp_ge_u32 s56, 14")
    e("s_cbranch_scc1 SP_START")
    e("s_cmp_lt_u32 s30, 8")
    e("s_cbranch_scc1 COMPUTE")
    e("s_cmp_eq_u32 s3, 3")
    e("s_cbranch_scc1 SERVICE")
    e("s_branch LOADER")


def x_dma_voff(e):
    e("v_and_b32 v8, 7, v1")
    e("v_xor_b32 v7, v6, v8")
    e("v_lshrrev_b32 v8, 3, v1")
    e("v_lshlrev_b32 v8, 10, v8")
    e("v_lshl_add_u32 v4, v7, 4, v8")
    e("v_xor_b32 v5, 64, v4")


def kv_piece(e, tab):
    e(f"s_mov_b32 s59, {sum(t << (8 * i) for i, t in enumerate(tab)):#x}")
    e("s_lshl_b32 s62, s3, 3")
    e("s_lshr_b32 s59, s59, s62")
    e("s_and_b32 s59, s59, 15")
    e("s_add_u32 s62, s59, s94")
    e("s_and_b32 s62, s62, 7")
    e("s_lshl_b32 s62, s62, 14")
    e(f"s_add_u32 s62, s62, {WS_KV}")
    e("s_lshl_b32 s59, s59, 14")
    for n in range(16):
        if n % 4 == 0:
            e(f"s_add_u32 m0, s59, {n * 1024}")
            e(f"s_add_u32 s64, s62, {n * 1024}")
        e.vmem(f"buffer_load_dwordx4 v2, s[48:51], s64 offen offset:{(n & 3) * 1024} sc1 lds", "kvl")


def cnt_spin(e, which):
    e("v_mov_b32 v17, 0")
    spin(e, lambda: e(f"buffer_load_dword v20, v17, s[72:75], 0 offen offset:{128 + 64 * which} sc1"),
         lambda: e("v_cmp_eq_u32 vcc, 0, v20"), 4)


def cnt_arrive(e, which):
    lab = e.newlabel("ARR")
    e("v_mov_b32 v21, 1")
    e("v_mov_b32 v17, 0")
    e("s_mov_b64 exec, 1")
    e(f"buffer_atomic_add v21, v17, s[72:75], 0 offen offset:{64 * which} sc0 sc1")
    e("s_waitcnt vmcnt(0)")
    e("v_readfirstlane_b32 s60, v21")
    e("s_nop 3")
    e("s_cmp_lt_u32 s60, 31")
    e(f"s_cbranch_scc1 {lab}")
    e(f"buffer_store_dword v21, v17, s[72:75], 0 offen offset:{128 + 64 * which} sc1")
    e.label(lab)
    e("s_mov_b64 exec, -1")


def loader(e):
    e.label("LOADER")
    e.vm = []
    e.nbar = 0
    e("s_lshl_b32 s63, s56, 8")
    e("v_mul_u32_u24 v8, 3584, v6")
    e("v_lshlrev_b32 v7, 1, v6")
    e("v_and_b32 v10, 15, v1")
    e("v_xor_b32 v7, v7, v10")
    e("v_lshl_add_u32 v4, v7, 4, v8")
    e("v_mov_b32 v5, v4")
    e("v_xor_b32 v7, 8, v7")
    e("v_lshl_add_u32 v9, v7, 4, v8")
    e("v_mov_b32 v10, v9")
    e(f"s_mov_b32 s65, {4 * 3584}")
    e(f"s_mov_b32 s66, {64 * 3584}")
    e("s_lshl_b32 s67, s3, 14")
    e(f"s_add_u32 s67, s67, {W_BASE - 16384}")
    e("s_add_u32 s69, s67, 32768")
    e("s_add_u32 s70, s69, 32768")
    e("s_mov_b32 s34, %d" % (512 * 3584))
    e("s_cmp_lg_u32 s3, 0")
    e("s_cbranch_scc1 LD_W")
    x_dma_voff(e)
    e("v_mov_b32 v9, v4")
    e("v_mov_b32 v10, v5")
    e("s_lshl_b32 s63, s31, 17")
    e("s_mov_b32 s65, 8192")
    e("s_mov_b32 s66, 128")
    e("s_mov_b32 s67, 0")
    e(f"s_mov_b32 s69, {X_BASE[1]}")
    e(f"s_mov_b32 s70, {X_BASE[2]}")
    e("s_mov_b32 s34, %d" % (2048 * 1024))
    e.label("LD_W")
    e("s_mov_b32 s35, 0x00020000")
    e("s_waitcnt lgkmcnt(0)")
    stamp(e, 2)
    e("s_cmp_eq_u32 s3, 1")
    e("s_cselect_b32 s32, s16, s18")
    e("s_cselect_b32 s33, s17, s19")
    e("s_cmp_eq_u32 s3, 0")
    e("s_cselect_b32 s32, s4, s32")
    e("s_cselect_b32 s33, s5, s33")

    def dma(kc, n0=0, n1=16):
        sb = (67, 69, 70)[stage(kc)]
        so = 60 + (kc & 1)
        if n0 == 0:
            e(f"s_add_u32 s59, s58, {kc}")
            e("s_and_b32 s59, s59, 7")
            e(f"s_mul_i32 s{so}, s66, s59")
            e(f"s_add_u32 s{so}, s{so}, s63")
        for n in range(n0, n1):
            e(f"s_add_u32 m0, s{sb}, {n * 1024}")
            if n > 0:
                e(f"s_add_u32 s{so}, s{so}, s65")
            else:
                e("s_nop 0")
            e.vmem(f"buffer_load_dwordx4 v{(4, 5, 9, 10)[n & 3]}, s[32:35], s{so} offen lds", f"c{kc}")

    LA = int(os.environ.get("LA", "11"))
    dma(0)
    dma(1, 0, LA)
    srd(e, 48, 28, WS_SIZE)
    e.wait_vm("c0")
    e.bar()
    stamp(e, 3)
    for kc in range(7):
        dma(kc + 1, LA, 16)
        if kc + 2 < 8:
            dma(kc + 2, 0, LA)
        if kc == 6:
            kv_piece(e, (0, 3, 4))
        e.wait_vm(f"c{kc+1}")
        fs(e, 4 + kc)
        e.bar()
        if kc == 3:
            cs(e, 4)
    kv_piece(e, (1, 5, 6))
    e.bar()
    cs(e, 5)
    e("s_cmp_eq_u32 s3, 2")
    e("s_cbranch_scc1 KVP_SKIP")
    kv_piece(e, (7, 2, 2))
    e.label("KVP_SKIP")
    e.wait_all()
    cs(e, 6)
    e.bar()
    cs(e, 7)
    e("s_branch DOWN")
    return e.nbar


def wq_voff(e):
    e("v_lshrrev_b32 v7, 2, v1")
    e("v_and_b32 v8, 3, v1")
    e("v_lshlrev_b32 v8, 4, v8")
    e("v_lshl_add_u32 v4, v7, 10, v8")
    e("v_and_b32 v7, 32, v1")
    e("v_xor_b32 v4, v4, v7")


def service(e):
    e.label("SERVICE")
    e.vm = []
    e.nbar = 0
    wq_voff(e)
    e("s_lshl_b32 s63, s56, 6")
    e("s_waitcnt lgkmcnt(0)")
    stamp(e, 2)
    srd(e, 32, 6, 512 * 1024)

    def dma(kc):
        e(f"s_add_u32 s59, s58, {kc}")
        e("s_and_b32 s59, s59, 7")
        e("s_lshl_b32 s60, s59, 16")
        e("s_add_u32 s60, s60, s63")
        for n in range(4):
            e(f"s_mov_b32 m0, {QS_BASE + stage(kc) * 4096 + n * 1024}")
            e("s_add_u32 s60, s60, 16384" if n else "s_nop 0")
            e.vmem("buffer_load_dwordx4 v4, s[32:35], s60 offen lds", f"c{kc}")
    dma(0)
    dma(1)
    srd(e, 48, 28, WS_SIZE)
    srd(e, 72, 26, 0 if "noflag" in OPT else 256)
    e.wait_vm("c0")
    e.bar()
    stamp(e, 3)
    for kc in range(7):
        if kc + 2 < 8:
            dma(kc + 2)
        if kc == 5:
            cnt_spin(e, 0)
        e.wait_vm(f"c{kc+1}")
        fs(e, 4 + kc)
        e.bar()
        if kc == 3:
            cs(e, 4)
    e.bar()
    cs(e, 5)
    cnt_spin(e, 1)
    cs(e, 6)
    e.bar()
    cs(e, 7)
    return e.nbar


def down(e):
    e.label("DOWN")
    e.vm = []
    e.nbar = 0
    srd(e, 44, 20, 1792 * 1024)
    e("s_mul_i32 s32, s76, 224")
    e("s_mul_i32 s60, s3, 28")
    e("s_add_u32 s32, s32, s60")
    e("s_lshl_b32 s32, s32, 10")
    e(f"s_add_u32 s32, s32, {WS_HF}")
    e(f"s_add_u32 s33, s32, {112*1024}")
    e("s_lshl_b32 s36, s60, 14")
    e("s_lshl_b32 s61, s77, 7")
    e("s_add_u32 s36, s36, s61")
    e(f"s_mul_i32 s37, s3, {NBW * 2048}")
    e(f"s_add_u32 s37, s37, {WD_BASE}")
    e("s_setprio 3")
    dma_voff128(e, 4, 7, 8)
    tr_addr128(e, 9, 10, 7, 8)
    e("v_add_u32 v9, s37, v9")
    e("v_add_u32 v10, s37, v10")
    e("s_lshl_b32 s62, s76, 9")
    e("s_lshl_b32 s60, s3, 7")
    e("s_add_u32 s62, s62, s60")
    e(f"s_add_u32 s62, s62, {WS_FL}")
    DAC = 24
    WB = 88
    HB = 104
    WE = 136
    srd(e, 40, 12, 512 * 1024)
    e("s_lshl_b32 s38, s3, 17")
    e("s_add_u32 s38, s38, s61")
    e("s_lshl_b32 s39, s95, 1")
    e("s_add_u32 s39, s39, s94")
    e("s_cmp_ge_u32 s39, 7")
    e("s_cselect_b32 s60, 7, 0")
    e("s_sub_u32 s39, s39, s60")
    if "nodrot" in OPT:
        e("s_mov_b32 s39, 0")

    def group(reg_w, reg_h):
        if reg_w:
            e("s_lshl_b32 s67, s39, 16")
            e("s_add_u32 s67, s67, s36")
        if reg_h:
            e("s_lshl_b32 s60, s39, 12")
            e("s_add_u32 s68, s60, s32")
            e("s_add_u32 s69, s60, s33")
            e("s_add_u32 s39, s39, 1")
            e("s_cmp_eq_u32 s39, 7")
            e("s_cselect_b32 s39, 0, s39")
    def wload(ks):
        if "dnoload" in OPT and ks >= 4: return
        for u in range(2):
            e(f"s_add_u32 m0, s37, {(ks % NBW) * 2048 + u * 1024}")
            e(f"s_add_u32 s60, s67, {(ks & 3) * 16384 + u * 8192}")
            e.vmem("buffer_load_dwordx4 v4, s[44:47], s60 offen lds", f"w{ks}")
    def woload(j, par, tag):
        for u in range(2):
            e(f"s_add_u32 m0, s37, {j * 2048 + u * 1024}")
            e(f"s_add_u32 s60, s38, {(2 * j + par) * 16384 + u * 8192}")
            e.vmem("buffer_load_dwordx4 v4, s[40:43], s60 offen lds", tag)
    def hload(ks):
        if "dnoload" in OPT and ks >= 4: return
        f = HB + 8 * (ks & 3)
        for t in range(2):
            e.vmem(f"buffer_load_dwordx4 {vr(f+4*t,4)}, v2, s[48:51], s{68+t} offen offset:{(ks & 3) * 1024} sc1", f"h{ks}")
    def wread(f, slot):
        for m in range(2):
            for rho in range(2):
                e(f"ds_read_b64_tr_b16 {vr(f+4*m+2*rho,2)}, v{9+m} offset:{slot * 2048 + rho * 1024}")

    e("s_cmp_ge_u32 s56, 14")
    e("s_cbranch_scc1 H_SKIP")
    e("v_add_u32 v7, s37, v2")
    for n in range(8):
        e(f"ds_read_b128 {vr(HB+4*n,4)}, v7 offset:{n*1024}")
    e("s_lshl_b32 s64, s31, 2")
    e("s_and_b32 s60, s3, 2")
    e("s_add_u32 s64, s64, s60")
    e("s_mul_i32 s64, s64, 112")
    e("s_lshl_b32 s60, s56, 1")
    e("s_and_b32 s61, s3, 1")
    e("s_add_u32 s66, s60, s61")
    e("s_lshl_b32 s60, s66, 2")
    e("s_add_u32 s64, s64, s60")
    e("s_lshl_b32 s64, s64, 10")
    e(f"s_add_u32 s64, s64, {WS_HF}")
    e(f"s_add_u32 s65, s64, {112*1024}")
    e("s_mul_i32 s60, s66, 37")
    e("s_lshr_b32 s60, s60, 8")
    e("s_mul_i32 s61, s60, 25")
    e("s_add_u32 s66, s66, s61")
    e("s_lshl_b32 s66, s66, 2")
    e("s_lshl_b32 s60, s31, 10")
    e("s_add_u32 s66, s66, s60")
    e("s_and_b32 s60, s3, 2")
    e("s_lshl_b32 s60, s60, 8")
    e("s_add_u32 s66, s66, s60")
    e(f"s_add_u32 s66, s66, {WS_FL}")
    e("s_waitcnt lgkmcnt(0)")
    for n in range(8):
        u, t, k = n >> 2, (n >> 1) & 1, n & 1
        e(f"buffer_store_dwordx4 {vr(HB+4*n,4)}, v2, s[48:51], s{64+t} offen offset:{(2*u+k)*1024} sc1")
        HT = int(os.environ.get("HT", "63"))
        if HT < 63:
            e(f"s_waitcnt vmcnt({HT})")
    f2(e, 4)
    e("v_mov_b32 v12, 1")
    e("v_mov_b32 v11, 0")
    e("s_waitcnt vmcnt(0)")
    f2(e, 5)
    e("s_mov_b64 exec, 1")
    e("buffer_store_dword v12, v11, s[48:51], s66 offen sc1")
    e("s_mov_b64 exec, -1")
    e.label("H_SKIP")
    f2(e, 6); f2(e, 7)
    for j in range(4):
        woload(j, 0, "we")
    e("v_and_b32 v7, 31, v1")
    e("v_lshlrev_b32 v7, 2, v7")
    e("s_lshl_b32 s60, s76, 8")
    e(f"s_add_u32 s60, s60, {WS_G}")
    e("buffer_load_dword v14, v7, s[48:51], s60 offen sc1")
    e("buffer_load_dword v16, v7, s[48:51], s60 offen offset:128 sc1")
    e.wait_all()
    for j in range(4):
        wread(WE + 8 * j, j)
    e("v_sub_f32 v14, 1.0, v14")
    e("v_sub_f32 v16, 1.0, v16")
    e("v_mov_b32 v15, v14")
    e("v_mov_b32 v17, v16")
    e("s_waitcnt lgkmcnt(0)")
    group(True, False)
    for ks in range(NBW):
        wload(ks)

    def fl_ld():
        e("s_mov_b64 exec, 0x7f")
        e("buffer_load_dword v20, v3, s[48:51], s62 offen sc1")
        e("s_mov_b64 exec, -1")
    def fl_ck():
        e("s_mov_b64 exec, 0x7f")
        e("v_cmp_ne_u32 vcc, 1, v20")
        e("s_mov_b64 exec, -1")
    if "slp" in OPT:
        e("s_sleep 100")
    spin(e, fl_ld, fl_ck, 16)
    e("s_setprio %s" % os.environ.get("HP", "0"))
    cs(e, 8)
    group(False, True)
    for ks in range(4):
        hload(ks)
    wread(WB, 0)
    for ks in range(28):
        e("s_waitcnt lgkmcnt(0)")
        if ks % 4 == 0 and ks + 4 < 28:
            group(True, True)
        if ks + 4 < 28:
            wload(ks + 4)
        else:
            woload(ks & 3, 1, "wodd")
        if ks + 1 < 28:
            e.wait_vm(f"w{ks+1}")
            wread(WB + 8 * ((ks + 1) & 1), (ks + 1) & 3)
        e.wait_vm(f"h{ks}")
        f = WB + 8 * (ks & 1)
        h = HB + 8 * (ks & 3)
        for m in range(2):
            for t in ((0, 1), (1, 0))[m]:
                d = DAC + 32 * m + 16 * t
                c = "0" if ks == 0 else vr(d, 16)
                if "dnomfma" in OPT and ks > 0: continue
                e(f"v_mfma_f32_32x32x16_bf16 {vr(d,16)}, {vr(f+4*m,4)}, {vr(h+4*t,4)}, {c}")
        if ks + 4 < 28:
            hload(ks + 4)
    cs(e, 9)
    e("s_setprio 3")
    e("s_lshl_b32 s64, s76, 16")
    e("s_lshl_b32 s60, s3, 13")
    e("s_add_u32 s64, s64, s60")
    e(f"s_add_u32 s64, s64, {WS_OF}")
    e("s_add_u32 s65, s64, 4096")
    e("s_add_u32 s66, s64, 32768")
    e("s_add_u32 s67, s64, 36864")
    e("s_lshl_b32 s60, s3, 14")
    e("v_add_u32 v6, s60, v2")
    e("s_nop 7")
    for m in range(2):
        for t in range(2):
            for r in range(0, 16, 2):
                d = DAC + 32 * m + 16 * t + r
                e(f"v_pk_mul_f32 {vr(d,2)}, {vr(d,2)}, v[{14+2*t}:{15+2*t}]")

    def oe_ld():
        for j in range(4):
            for t in range(2):
                e(f"buffer_load_dwordx4 {vr(HB+8*j+4*t,4)}, v2, s[48:51], s{64+2*t+(j>>1)} offen offset:{(j&1)*2048} sc1")
    def oe_ck():
        e(f"v_max_u32 v11, v{HB}, v{HB+1}")
        for r in range(1, 16):
            e(f"v_max3_u32 v11, v11, v{HB+2*r}, v{HB+2*r+1}")
        e("v_cmp_eq_u32 vcc, -1, v11")
    spin(e, oe_ld, oe_ck, 12)
    e("s_setprio 0")
    for j in range(4):
        for m in range(2):
            for t in range(2):
                d = DAC + 32 * m + 16 * t
                e(f"v_mfma_f32_32x32x16_bf16 {vr(d,16)}, {vr(WE+8*j+4*m,4)}, {vr(HB+8*j+4*t,4)}, {vr(d,16)}")
    e("s_nop 15")
    cs(e, 10)
    e.bar()
    for q in range(16):
        e(f"ds_write_b128 v6, {vr(DAC+4*q,4)} offset:{q*1024}")
    e("s_waitcnt lgkmcnt(0)")
    e.bar()
    stamp(e, 11); stamp(e, 12); stamp(e, 13, True)
    stamp_flush(e, 14)
    e("s_endpgm")
    return e.nbar


SP_XB = 65536
SP_WQ = 131072


def sp_xload(e, rows_sgpr, lds_sgpr, chunk_sgpr):
    e(f"s_lshl_b32 s60, s{chunk_sgpr}, 7")
    e(f"s_add_u32 s60, s60, s{rows_sgpr}")
    e(f"s_lshl_b32 s61, s{chunk_sgpr}, 13")
    e(f"s_add_u32 s61, s61, {lds_sgpr}")
    for n in range(8):
        e(f"s_add_u32 m0, s61, {n * 1024}")
        e("s_add_u32 s60, s60, 8192" if n else "s_nop 0")
        e(f"buffer_load_dwordx4 v{4 + (n & 1)}, s[32:35], s60 offen lds")


def sp_start(e):
    e.label("SP_START")
    e("s_lshl_b32 s60, s31, 1")
    e("s_add_u32 s60, s60, s56")
    e("s_sub_u32 s97, s60, 14")
    e("s_lshl_b32 s63, s97, 16")
    x_dma_voff(e)
    e("s_waitcnt lgkmcnt(0)")
    srd(e, 32, 4, 2048 * 1024)
    e("s_cmp_ge_u32 s30, 8")
    e("s_cbranch_scc1 SP_START_H")
    sp_xload(e, 63, 0, 30)
    e("s_branch COMPUTE")
    e.label("SP_START_H")
    e("s_cmp_lt_u32 s3, 2")
    e("s_cselect_b32 s36, s8, s10")
    e("s_cselect_b32 s37, s9, s11")
    e("s_mov_b32 s38, 16384")
    e("s_mov_b32 s39, 0x00020000")
    e("s_lshl_b32 s61, s3, 13")
    e("s_and_b32 s62, s61, 0x2000")
    for n in range(8):
        if n % 4 == 0:
            e(f"s_add_u32 m0, s61, {SP_XB + n * 1024}")
            e(f"s_add_u32 s60, s62, {n * 1024}")
        e(f"buffer_load_dwordx4 v2, s[36:39], s60 offen offset:{(n & 3) * 1024} lds")
    e("s_branch SP_HELPER")


def sp_helper(e):
    e.label("SP_HELPER")
    e.vm = []
    e.nbar = 0
    e("v_mov_b32 v16, 0")
    stamp(e, 2)
    srd(e, 48, 28, WS_SIZE)
    srd(e, 72, 26, 0 if "noflag" in OPT else 256)
    e.wait_all()
    e.bar()
    stamp(e, 3)
    srd(e, 36, 22, 1024)
    e(f"s_mov_b32 m0, {SP_XB + 32768}")
    e("v_lshrrev_b32 v7, 2, v1")
    e("buffer_load_dwordx4 v2, s[36:39], 0 offen lds")
    e("v_and_b32 v8, 3, v1")
    e("v_lshlrev_b32 v8, 4, v8")
    e("v_lshl_add_u32 v9, v7, 10, v8")
    srd(e, 40, 6, 512 * 1024)
    e("s_lshl_b32 s60, s3, 17")
    e("s_lshl_b32 s62, s56, 6")
    e("s_add_u32 s60, s60, s62")
    e("s_lshl_b32 s61, s3, 13")
    for n in range(8):
        e(f"s_add_u32 m0, s61, {SP_WQ + n * 1024}")
        e("s_add_u32 s60, s60, 16384" if n else "s_nop 0")
        e("buffer_load_dwordx4 v9, s[40:43], s60 offen lds")
    e("s_lshl_b32 s60, s97, 9")
    e("s_lshl_b32 s61, s3, 7")
    e("s_add_u32 s60, s60, s61")
    e(f"s_add_u32 s60, s60, {WS_FL}")
    e("s_mov_b64 exec, 0xff")
    e("buffer_store_dword v16, v3, s[48:51], s60 offen sc1")
    e("s_mov_b64 exec, -1")
    for r in range(4):
        e(f"v_mov_b32 v{12+r}, -1")
    e("s_xor_b32 s63, s97, 1")
    e("s_lshl_b32 s63, s63, 16")
    e.wait_all()
    e.bar()
    cs(e, 4)
    e("s_cmp_lg_u32 s3, 3")
    e("s_cbranch_scc1 SPH_A")
    cnt_arrive(e, 0)
    e.label("SPH_A")
    e("s_lshl_b32 s60, s97, 16")
    e("s_lshl_b32 s61, s3, 14")
    e("s_add_u32 s60, s60, s61")
    e(f"s_add_u32 s60, s60, {WS_OF}")
    for n in range(16):
        if n % 4 == 0:
            e(f"s_add_u32 s61, s60, {n * 1024}")
        e(f"buffer_store_dwordx4 v[12:15], v2, s[48:51], s61 offen offset:{(n & 3) * 1024} sc1")
    e.bar()
    for u in range(2):
        e("s_lshl_b32 s62, s3, 1")
        e(f"s_add_u32 s62, s62, {u}")
        sp_xload(e, 63, SP_XB, 62)
    e.wait_all()
    e.bar()
    cs(e, 5)
    e("s_cmp_lg_u32 s3, 3")
    e("s_cbranch_scc1 SPH_C")
    cnt_arrive(e, 1)
    e.label("SPH_C")
    e("s_cmp_lg_u32 s3, 3")
    e("s_cbranch_scc1 SPH_B")
    cnt_spin(e, 0)
    e.label("SPH_B")
    e.wait_all()
    e.bar()
    e.bar()
    kv_piece(e, (0, 1, 2, 3))
    kv_piece(e, (4, 5, 6, 7))
    e("s_cmp_lg_u32 s3, 3")
    e("s_cbranch_scc1 SPH_D")
    cnt_spin(e, 1)
    e.label("SPH_D")
    e.wait_all()
    cs(e, 6)
    e.bar()
    cs(e, 7)
    e("s_branch DOWN")
    return e.nbar


def sp_compute(e):
    e.label("SP_COMPUTE")
    e.vm = []
    e.nbar = 0
    A = 64
    srd(e, 48, 28, WS_SIZE)
    srd(e, 52, 24, 2048 * 1024)
    stamp(e, 2)

    def xaddr(base):
        e("v_and_b32 v14, 31, v1")
        e("v_lshrrev_b32 v15, 5, v1")
        e("v_bfe_u32 v16, v1, 1, 3")
        e("v_xor_b32 v16, v16, v15")
        e("s_and_b32 s60, s30, 1")
        e("s_lshl_b32 s60, s60, 12")
        e(f"s_add_u32 s60, s60, {base}")
        e("v_lshlrev_b32 v17, 7, v14")
        e("v_add_u32 v17, s60, v17")
        for s in range(4):
            e(f"v_xor_b32 v18, {2*s}, v16")
            e(f"v_lshl_add_u32 v{10+s}, v18, 4, v17")
        e("v_bfe_u32 v16, v1, 2, 2")
        e("v_lshl_add_u32 v17, v15, 3, v16")
        e("v_and_b32 v18, 3, v1")
        e("v_lshlrev_b32 v18, 3, v18")
        for r in range(16):
            e(f"v_mov_b32 v{A+r}, 0")

    def chain(kind):
        lab = e.newlabel("CH")
        rs = {"K": 32, "V": 32, "Q": 64, "G": 2}[kind]
        if kind in "KV":
            e("v_lshl_add_u32 v14, v17, 5, v18")
            e(f"v_add_u32 v14, {SP_XB + (16384 if kind == 'V' else 0)}, v14")
        elif kind == "Q":
            e("v_lshl_add_u32 v14, v17, 6, v18")
            e("v_bfe_u32 v19, v1, 4, 1")
            e("v_lshl_add_u32 v14, v19, 5, v14")
            e(f"v_add_u32 v14, {SP_WQ}, v14")
        else:
            e("v_lshlrev_b32 v14, 4, v15")
            e(f"v_add_u32 v14, {SP_XB + 32768}, v14")
        def rd(s):
            e(f"ds_read_b128 {vr(24+4*s,4)}, v{10+s}")
            if kind == "G":
                e(f"ds_read_b128 {vr(40+4*s,4)}, v14 offset:{s*32}")
            else:
                for rho in range(2):
                    e(f"ds_read_b64_tr_b16 {vr(40+4*s+2*rho,2)}, v14 offset:{(16*s+4*rho)*rs}")
            e(f"v_add_u32 v{10+s}, 0x2000, v{10+s}")
            if s == 3:
                e(f"v_add_u32 v14, {64*rs}, v14")
        nrd = 2 if kind == "G" else 3
        for s in range(4):
            rd(s)
        e("s_mov_b32 s60, 8")
        e.label(lab)
        for s in range(4):
            e(f"s_waitcnt lgkmcnt({3 * nrd})")
            a, b = vr(40+4*s, 4), vr(24+4*s, 4)
            if kind == "V":
                a, b = b, a
            e(f"v_mfma_f32_32x32x16_bf16 {vr(A,16)}, {a}, {b}, {vr(A,16)}")
            rd(s)
        e("s_sub_u32 s60, s60, 1")
        e("s_cmp_lg_u32 s60, 0")
        e(f"s_cbranch_scc1 {lab}")
        e("s_waitcnt lgkmcnt(0)")

    xaddr(0)
    e("s_lshl_b32 s98, s97, 1")
    e("s_and_b32 s60, s30, 1")
    e("s_add_u32 s98, s98, s60")
    e.wait_all()
    e.bar()
    stamp(e, 3)
    e("s_lshr_b32 s99, s30, 1")
    e("s_cmp_eq_u32 s99, 1")
    e("s_cbranch_scc1 SPC_V")
    e("s_cmp_eq_u32 s99, 2")
    e("s_cbranch_scc1 SPC_G")
    e("s_cmp_eq_u32 s99, 3")
    e("s_cbranch_scc1 SPC_Q")
    chain("K")
    e(f"s_mov_b32 s60, {fbits(0.25 * LOG2E)}")
    e("v_and_b32 v14, 0x33, v1")
    e("v_bfe_u32 v15, v1, 2, 1")
    e("v_lshl_add_u32 v14, v15, 3, v14")
    e("v_bfe_u32 v15, v1, 3, 1")
    e("v_lshl_add_u32 v14, v15, 2, v14")
    e("v_lshlrev_b32 v14, 4, v14")
    e("s_nop 4")
    for r in range(8):
        e(f"v_mul_f32 v{A+r}, s60, v{A+r}")
    e(f"v_mul_f32 v18, v{A}, v{A}")
    for r in range(1, 8):
        e(f"v_fmac_f32 v18, v{A+r}, v{A+r}")
    for r in range(4):
        e(f"v_cvt_pk_bf16_f32 v{A+8+r}, v{A+2*r}, v{A+2*r+1}")
    e("s_lshl_b32 s60, s98, 11")
    e(f"s_add_u32 s60, s60, {WS_KV}")
    e(f"buffer_store_dwordx4 {vr(A+8,4)}, v14, s[48:51], s60 offen sc1")
    allreduce(e, "v_add_f32", 18, 19, 5, 6)
    allreduce(e, "v_max_f32", 18, 19, 0, 5)
    e("s_lshl_b32 s60, s98, 2")
    e(f"s_add_u32 s60, s60, {WS_KN}")
    e("s_mov_b64 exec, 1")
    e("buffer_store_dword v18, v3, s[48:51], s60 offen sc1")
    e("s_mov_b64 exec, -1")
    e("s_branch SPC_KV_DONE")
    e.label("SPC_V")
    chain("V")
    e("s_nop 9")
    for r in range(8):
        e(f"v_cvt_pk_bf16_f32 v{A+r}, v{A+2*r}, v{A+2*r+1}")
    e("s_lshl_b32 s60, s98, 11")
    e(f"s_add_u32 s60, s60, {WS_KV + 1024}")
    e("s_mov_b32 exec_lo, 0xffff")
    e("s_mov_b32 exec_hi, 0xffff")
    e(f"buffer_store_dwordx4 {vr(A,4)}, v2, s[48:51], s60 offen sc1")
    e(f"buffer_store_dwordx4 {vr(A+4,4)}, v2, s[48:51], s60 offen offset:256 sc1")
    e("s_mov_b64 exec, -1")
    e.label("SPC_KV_DONE")
    e("s_waitcnt vmcnt(0)")
    e("s_barrier")
    e("s_barrier")
    e("s_barrier")
    e("s_barrier")
    e("s_branch SPC_JOIN")
    e.label("SPC_G")
    e("s_barrier")
    chain("G")
    e("s_barrier")
    e("s_nop 9")
    e(f"v_mul_f32 v18, {fbits(-LOG2E)}, v{A}")
    e("v_exp_f32 v18, v18")
    e("s_lshl_b32 s60, s98, 7")
    e("v_add_f32 v18, 1.0, v18")
    e("v_rcp_f32 v20, v18")
    e(f"s_add_u32 s60, s60, {WS_G}")
    e("s_mov_b32 exec_hi, 0")
    e("buffer_store_dword v20, v3, s[48:51], s60 offen sc1")
    e("s_mov_b64 exec, -1")
    xaddr(SP_XB)
    e("s_xor_b32 s98, s98, 2")
    e("s_waitcnt vmcnt(0)")
    e("s_barrier")
    chain("Q")
    e("s_branch SPC_QW")
    e.label("SPC_Q")
    e.bar()
    chain("Q")
    e.bar()
    e.bar()
    e.label("SPC_QW")
    e.bar()
    e("s_and_b32 s60, s98, 3")
    e("s_nop 2")
    e("s_lshl_b32 s60, s60, 12")
    e(f"s_add_u32 s60, s60, {WD_BASE}")
    e("v_add_u32 v14, s60, v2")
    e("v_xor_b32 v15, 0x4000, v14")
    e("s_nop 3")
    for r in range(8):
        e(f"v_cvt_pk_bf16_f32 v{A+r}, v{A+2*r}, v{A+2*r+1}")
    e(f"ds_write_b128 v14, {vr(A,4)}")
    e(f"ds_write_b128 v15, {vr(A+4,4)}")
    e("s_waitcnt lgkmcnt(0)")
    e.label("SPC_JOIN")
    cs(e, 4); cs(e, 5)
    e(f"s_mov_b32 s60, {WS_KN}")
    e("buffer_load_dword v10, v3, s[48:51], s60 offen sc1")
    e("s_lshl_b32 s62, s30, 12")
    e(f"s_add_u32 s62, s62, {WD_BASE}")
    e("v_add_u32 v14, s62, v2")
    e.bar()
    e(f"ds_read_b128 {vr(R_Q,4)}, v14")
    for l in att_init():
        e(l)
    e("s_waitcnt vmcnt(0)")
    allreduce(e, "v_max_f32", 10, 12, 0, 6)
    e("s_waitcnt lgkmcnt(0)")
    e("s_branch QJOIN")
    return e.nbar


R_O = 16; R_VF = [32, 40]; R_Q = 48; R_C = 52; R_KF = [68, 72, 76, 80]; R_S = [88, 104]


def att_init():
    L = ["v_and_b32 v12, %d, v1" % (31 if "one1" in OPT else 27),
         "v_cmp_eq_u32 vcc, 16, v12",
         "v_mov_b32 v12, 0x3f803f80",
         "v_mov_b32 v8, 0xdddd",
         f"v_cndmask_b32 v{R_VF[0]}, 0, v12, vcc"]
    L += [f"v_mov_b32 v{R_VF[0]+1}, v{R_VF[0]}"]
    L += [f"v_mov_b64 {vr(R_VF[0]+r,2)}, {vr(R_VF[0],2)}" for r in range(2, 16, 2)]
    L += [f"v_mov_b64 {vr(R_O+r,2)}, 0" for r in range(0, 16, 2)]
    L += ["v_mov_b32 v13, v2", "v_mov_b32 v11, 0"]
    return L


def compute(e):
    e.label("COMPUTE")
    e("s_lshr_b32 s60, s30, 2")
    e("s_lshl_b32 s96, s31, 2")
    e("s_and_b32 s61, s30, 3")
    e("s_add_u32 s96, s96, s61")
    e("s_lshl_b32 s96, s96, 4")
    e("s_add_u32 s96, s96, s56")
    e("s_lshl_b32 s96, s96, 1")
    e("s_add_u32 s96, s96, s60")
    e("s_lshl_b32 s96, s96, 10")
    e("s_mov_b32 s40, 0xffff")
    e("s_mov_b32 s41, 0xffff")
    e("s_cmp_ge_u32 s56, 14")
    e("s_cbranch_scc1 SP_COMPUTE")
    e.vm = []
    e.nbar = 0
    if "pf" in OPT:
        e("s_getpc_b64 s[44:45]")
        e.label("PC_REF")
        e(f"s_sub_u32 s44, s44, PC_REF-{NAME}_kernel")
        e("s_subb_u32 s45, s45, 0")
        e("s_and_b32 s60, s94, 3")
        e("s_lshl_b32 s60, s60, 3")
        e("s_add_u32 s60, s60, s30")
        e("s_lshl_b32 s60, s60, 10")
        e(f"s_min_u32 s60, s60, CODE_END-{NAME}_kernel-1024")
        e("v_add_u32 v24, s60, v2")
        e("global_load_dwordx4 v[24:27], v24, s[44:45]")
    XA = 160
    e("v_and_b32 v14, 15, v1")
    e("v_bfe_u32 v16, v1, 1, 3")
    e("v_xor_b32 v16, v16, v6")
    e("s_and_b32 s60, s30, 3")
    e("s_lshl_b32 s60, s60, 12")
    e("v_lshlrev_b32 v17, 7, v14")
    e("v_add_u32 v17, s60, v17")
    for s in range(2):
        e(f"v_xor_b32 v18, {4*s}, v16")
        e(f"v_lshl_add_u32 v{XA+s}, v18, 4, v17")
        e(f"v_xor_b32 v{XA+2+s}, 0x1000, v{XA+s}")
        e(f"v_add_u32 v{XA+4+s}, {X_BASE[2]}, v{XA+s}")
        e(f"v_add_u32 v{XA+6+s}, {X_BASE[2]}, v{XA+2+s}")
    e("s_lshr_b32 s60, s30, 2")
    e("s_lshl_b32 s92, s60, 1")
    e("s_and_b32 s61, s30, 1")
    e("s_add_u32 s92, s92, s61")
    e("v_bfe_u32 v16, v1, 2, 2")
    e("v_lshl_add_u32 v17, v6, 3, v16")
    e("v_and_b32 v19, 3, v1")
    e("v_and_b32 v18, 1, v6")
    e("v_xor_b32 v14, s60, v18")
    e("v_lshlrev_b32 v9, 6, v17")
    e("v_lshl_add_u32 v9, v14, 5, v9")
    e("v_and_b32 v14, 1, v1")
    e("v_lshl_add_u32 v9, v14, 4, v9")
    e("v_bfe_u32 v14, v1, 1, 1")
    e("v_lshl_add_u32 v9, v14, 3, v9")
    e("v_lshl_add_u32 v18, v18, 2, v16")
    e("s_lshl_b32 s61, s92, 1")
    e("v_xor_b32 v18, s61, v18")
    e("v_lshlrev_b32 v4, 8, v17")
    e("v_lshl_add_u32 v4, v18, 5, v4")
    e("v_lshl_add_u32 v4, v19, 3, v4")
    e("s_and_b32 s60, s30, 2")
    e("s_lshl_b32 s60, s60, 1")
    e("s_add_u32 s60, s60, s92")
    e("s_lshl_b32 s60, s60, 1")
    e("s_and_b32 s61, s30, 1")
    e("s_add_u32 s60, s60, s61")
    e("s_lshl_b32 s60, s60, 11")
    e(f"s_add_u32 s60, s60, {WD_BASE}")
    e("v_and_b32 v14, 15, v1")
    e("v_lshlrev_b32 v14, 4, v14")
    e("v_and_b32 v15, 1, v6")
    e("v_lshl_add_u32 v14, v15, 9, v14")
    e("v_lshrrev_b32 v15, 1, v6")
    e("v_lshl_add_u32 v14, v15, 3, v14")
    e("v_add_u32 v14, s60, v14")
    e("v_xor_b32 v15, 0x800, v14")
    e("v_xor_b32 v5, 32, v4")
    e(f"v_add_u32 v4, {W_BASE}, v4")
    e(f"v_add_u32 v5, {W_BASE}, v5")
    e("v_add_u32 v6, 0x10000, v4")
    e("v_add_u32 v7, 0x10000, v5")
    e("s_waitcnt lgkmcnt(0)")
    srd(e, 48, 28, WS_SIZE)
    srd(e, 52, 24, 2048 * 1024)
    e(f"s_mov_b32 s64, {fbits(-LOG2E)}")
    e(f"s_mov_b32 s65, {fbits(-LOG2E)}")
    e("s_mov_b32 s66, 1.0")
    e("s_mov_b32 s67, 1.0")
    e("s_waitcnt vmcnt(0)")
    stamp(e, 2)

    ACC = 88
    QACC = 152
    FR = [16, 52]

    def reads(kc, s, fb):
        st = stage(kc)
        f = FR[fb]
        L = []
        for rho in range(2):
            L.append(f"ds_read_b64_tr_b16 {vr(f + 16 + 2*rho, 2)}, v9 offset:{QS_BASE + st * 4096 + (32 * s + 4 * rho) * 64}")
        for t in range(4):
            a = XA + (4 if st == 2 else 0) + 2 * (t >> 1) + s
            L.append(f"ds_read_b128 {vr(f + 4*t, 4)}, v{a} offset:{(X_BASE[st] if st < 2 else 0) + (t & 1) * 2048}")
        for jj in range(4):
            m, j = jj >> 1, jj & 1
            for rho in range(2):
                off = st * 32768 + m * 16384 + (32 * s + 4 * rho) * 256
                a = 4 + j
                if off >= 65536:
                    off -= 65536
                    a += 2
                L.append(f"ds_read_b64_tr_b16 {vr(f + 20 + 4*jj + 2*rho, 2)}, v{a} offset:{off}")
        return L

    def mfmas(fb, first):
        f = FR[fb]
        L = []
        for t in range(2):
            d = QACC + 4 * t
            L.append(f"v_mfma_f32_16x16x32_bf16 {vr(d,4)}, {vr(f+16,4)}, {vr(f+4*t,4)}, " + ("0" if first else vr(d, 4)))
        for jj in range(4):
            for t in ((1, 0, 2, 3) if jj == 0 else (3, 2, 1, 0) if jj & 1 else (0, 1, 2, 3)):
                d = ACC + 16 * jj + 4 * t
                L.append(f"v_mfma_f32_16x16x32_bf16 {vr(d,4)}, {vr(f+20+4*jj,4)}, {vr(f+4*t,4)}, " + ("0" if first else vr(d, 4)))
        return L

    Q = R_Q; IDX = 8; C = R_C; O = R_O; S = R_S; KF = R_KF; VF = R_VF
    e.bar()
    stamp(e, 3)
    for l in reads(0, 0, 0):
        e(l)
    for kc in range(8):
        for s in range(2):
            e("s_waitcnt lgkmcnt(0)")
            per = 1
            if s == 0:
                rl = reads(kc, 1, 1)
                if kc == 7:
                    rl = rl + [f"s_mov_b32 s60, {WS_KN}", "buffer_load_dword v10, v3, s[48:51], s60 offen sc1"]
            elif kc < 7:
                e.bar()
                fs(e, 4 + kc)
                rl = reads(kc + 1, 0, 0)
            else:
                e.bar()
                rl = att_init()
                per = 2
            ml = mfmas(s, kc == 0 and s == 0)
            for i, m in enumerate(ml):
                e(m)
                for l in rl[per*i:per*i+per]:
                    e(l)
            for l in rl[per*len(ml):]:
                e(l)
        if kc == 3:
            cs(e, 4)
    cs(e, 5); f2(e, 3)
    e(f"v_cvt_pk_bf16_f32 v{Q}, v{QACC}, v{QACC+1}")
    e(f"v_cvt_pk_bf16_f32 v{Q+1}, v{QACC+2}, v{QACC+3}")
    e(f"v_cvt_pk_bf16_f32 v{Q+2}, v{QACC+4}, v{QACC+5}")
    e(f"v_cvt_pk_bf16_f32 v{Q+3}, v{QACC+6}, v{QACC+7}")
    KJ = int(os.environ.get("KJ", "1"))
    e("s_nop 1")
    e(f"v_permlane16_swap_b32 v{Q}, v{Q+2}")
    e(f"v_permlane16_swap_b32 v{Q+1}, v{Q+3}")
    red = Asm()
    allreduce(red, "v_max_f32", 10, 12, 0, 6)
    red = [l.strip() for l in red.lines]
    for j in range(2):
        G = ACC + 16 * j
        U = ACC + 32 + 16 * j
        for r in range(0, 16, 2):
            e(f"v_pk_mul_f32 {vr(G+r,2)}, {vr(G+r,2)}, s[64:65]")
        if j == KJ:
            f2(e, 4)
            e("s_waitcnt vmcnt(0)")
            f2(e, 5)
        for r in range(16):
            e(f"v_exp_f32 v{G+r}, v{G+r}")
            if j == KJ and r % 2 == 1:
                while red and red[0].startswith("s_nop"):
                    red.pop(0)
                if red:
                    e(red.pop(0))
                    if red and not red[0].startswith("s_nop"):
                        e(red.pop(0))
        for r in range(0, 16, 2):
            e(f"v_pk_add_f32 {vr(G+r,2)}, {vr(G+r,2)}, s[66:67]")
        for r in range(16):
            e(f"v_rcp_f32 v{G+r}, v{G+r}")
        for r in range(0, 16, 2):
            e(f"v_pk_mul_f32 {vr(G+r,2)}, {vr(G+r,2)}, {vr(U+r,2)}")
        for r in range(8):
            e(f"v_cvt_pk_bf16_f32 v{U+r}, v{G+2*r}, v{G+2*r+1}")
        for t in range(4):
            e(f"ds_write_b64 v{14 + (t >> 1)}, {vr(U+2*t,2)} offset:{j*1024 + (t & 1)*256}")
    assert not red, red
    nb_ffn = e.nbar
    e.label("QJOIN")
    e.nbar = 0
    cs(e, 6); f2(e, 6)
    for i in range(4):
        e(f"v_dot2c_f32_bf16 v11, v{Q+i}, v{Q+i}")
    e(f"v_mul_f32 v10, {fbits(1.04)}, v10")
    e("s_nop 1")
    allreduce(e, "v_add_f32", 11, 12, 5, 6)
    e("v_mul_f32 v11, v11, v10")
    e("v_sqrt_f32 v11, v11")
    e(f"s_mov_b32 s60, {fbits(SAFE_BOUND)}")
    e("v_cmp_nle_f32 vcc, v11, s60")
    e(f"v_sub_f32 v{C}, 0, v11")
    e(f"v_sub_f32 v{C+1}, 0, v11")
    for r in range(2, 16, 2):
        e(f"v_mov_b64 {vr(C+r,2)}, {vr(C,2)}")
    e("s_waitcnt lgkmcnt(0)")
    cs(e, 7); f2(e, 7)
    e.bar()
    e("s_cbranch_vccz ATT_GO")
    e("v_mov_b32 v11, 0xff800000")
    e("v_mov_b32 v12, v2")
    e("s_mov_b32 s60, 64")
    e.label("MAXLOOP")
    e(f"ds_read_b128 {vr(KF[0],4)}, v12")
    e("v_add_u32 v12, 0x800, v12")
    e("s_waitcnt lgkmcnt(0)")
    e(f"v_mfma_f32_32x32x16_bf16 {vr(S[0],16)}, {vr(KF[0],4)}, {vr(Q,4)}, 0")
    e("s_nop 15")
    for r in range(8):
        e(f"v_max3_f32 v11, v11, v{S[0]+2*r}, v{S[0]+2*r+1}")
    e("s_sub_u32 s60, s60, 1")
    e("s_cmp_lg_u32 s60, 0")
    e("s_cbranch_scc1 MAXLOOP")
    allreduce(e, "v_max_f32", 11, 12, 5, 6)
    for r in range(16):
        e(f"v_sub_f32 v{C+r}, 0, v11")
    e.label("ATT_GO")

    def laddr(t):
        return ("v13", t * 2048)
    def rdK(t, b):
        a, o = laddr(t)
        e(f"ds_read_b128 {vr(KF[b],4)}, {a} offset:{o}")
    def rdV(t, b):
        a, o = laddr(t)
        e("s_mov_b64 exec, s[40:41]")
        e(f"ds_read_b128 {vr(VF[b],4)}, {a} offset:{o+1024}")
        e(f"ds_read_b128 {vr(VF[b]+4,4)}, {a} offset:{o+1280}")
        e("s_mov_b64 exec, -1")
    def qk(t):
        e(f"v_mfma_f32_32x32x16_bf16 {vr(S[t & 1],16)}, {vr(KF[t & 3],4)}, {vr(Q,4)}, {vr(C,16)}")
    def sp(b, half):
        e(f"v_smfmac_f32_32x32x32_bf16 {vr(O,16)}, {vr(VF[b]+4*half,4)}, {vr(S[b]+8*half,8)}, v{IDX}")
    def ex(b, lo, hi):
        for r in range(lo, hi):
            e(f"v_exp_f32 v{S[b]+r}, v{S[b]+r}")

    rdK(0, 0)
    rdK(1, 1)
    rdV(0, 0)
    rdK(2, 2)
    rdK(3, 3)
    e("v_and_b32 v10, 31, v1")
    e("v_lshlrev_b32 v12, 2, v10")
    e("s_lshr_b32 s60, s96, 15")
    e("s_lshl_b32 s60, s60, 7")
    e(f"s_add_u32 s60, s60, {WS_G}")
    e("buffer_load_dword v163, v12, s[48:51], s60 offen sc1")
    cs(e, 8)
    e("s_waitcnt lgkmcnt(4)")
    qk(0)
    UN = int(os.environ.get("UN", "8"))
    e(f"s_mov_b32 s60, {64 // UN}")
    PSW = int(os.environ.get("PSW", "1"))
    if PSW:
        e("s_setprio 1")
        e("s_mov_b32 s61, 99")
        e("s_cmp_ge_u32 s30, 4")
        e("s_cbranch_scc1 PRIO_SET")
        e("s_setprio 2")
        e(f"s_mov_b32 s61, {PSW}")
        e.label("PRIO_SET")
    e("s_nop 11")
    ex(0, 0, 2)
    e("s_branch ATT_ENTRY")
    e.raw(".p2align 6")
    e.label("ATT_LOOP")
    if PSW:
        e("s_cmp_lg_u32 s60, s61")
        e("s_cbranch_scc1 PRIO_KEEP")
        e("s_setprio 0")
        e.label("PRIO_KEEP")
    for t in range(UN):
        b = t & 1
        ex(b, 0, 2)
        sp(b ^ 1, 1)
        rdK(t + 3, (t + 3) & 3)
        if t == 0:
            e.label("ATT_ENTRY")
        ex(b, 2, 6)
        qk(t + 1)
        e("s_waitcnt lgkmcnt(1)")
        ex(b, 6, 11)
        sp(b, 0)
        rdV(t + 1, b ^ 1)
        if t == UN - 1:
            e(f"v_add_u32 v13, {UN * 2048}, v13")
            e("s_sub_u32 s60, s60, 1")
            e("s_cmp_lg_u32 s60, 0")
        ex(b, 11, 16)
    e("s_cbranch_scc1 ATT_LOOP")
    e("s_waitcnt lgkmcnt(0)")
    e("s_nop 1")
    sp(1, 1)
    OB = 96
    WOB = 80
    PB = 16
    e("s_lshl_b32 s34, s76, 1")
    e("s_and_b32 s61, s30, 1")
    e("s_add_u32 s34, s34, s61")
    e("s_lshl_b32 s63, s34, 15")
    e(f"s_add_u32 s34, s63, {WS_OF + 1024}")
    e("s_lshl_b32 s61, s77, 7")
    e("s_add_u32 s63, s63, s61")
    e("s_and_b32 s61, s30, 2")
    e("s_lshl_b32 s61, s61, 5")
    e("s_add_u32 s63, s63, s61")
    e(f"s_add_u32 s62, s96, {WS_OF}")
    e("s_waitcnt vmcnt(0)")
    e("s_nop 1")
    cs(e, 9)
    if "one1" in OPT:
        e(f"v_mov_b32 v12, v{O+8}")
        e("s_nop 1")
        e(f"v_permlane32_swap_b32 v{O+8}, v12")
        e("s_nop 1")
    e(f"v_rcp_f32 v11, v{O+8}")
    e("s_nop 0")
    e("v_mul_f32 v11, v11, v163")
    for r in range(8):
        e(f"v_mul_f32 v{O+r}, v{O+r}, v11")
    for r in range(4):
        e(f"v_cvt_pk_bf16_f32 v{164+r}, v{O+2*r}, v{O+2*r+1}")
    e("buffer_store_dwordx4 v[164:167], v2, s[48:51], s62 offen sc1")
    e("s_cmp_lt_u32 s30, 4")
    e("s_cbranch_scc1 FINISH")
    e("s_barrier")
    e("s_barrier")
    e("s_branch A_DONE")
    e.label("FINISH")

    def oload(g):
        for i in range(4):
            e(f"s_add_u32 s60, s34, {(g + 4 * i) * 2048}")
            e(f"buffer_load_dwordx4 {vr(OB+16*g+4*i,4)}, v2, s[48:51], s60 offen sc1")
    WO = 32
    tr_addr128(e, 161, 162, 11, 12)
    e("s_and_b32 s60, s30, 2")
    e("s_lshl_b32 s60, s60, 5")
    e("v_xor_b32 v161, s60, v161")
    e(f"v_add_u32 v161, {WD_BASE}, v161")
    e("v_lshrrev_b32 v11, 5, v1")
    e("v_lshlrev_b32 v10, 10, v10")
    e("v_lshl_add_u32 v10, v11, 4, v10")
    e("s_lshl_b32 s60, s30, 12")
    e("v_add_u32 v6, s60, v2")
    e("s_mov_b32 s35, 15")
    e("s_setprio 3")
    e.bar()
    pass
    for g in range(2):
        oload(g)
    e.bar()
    pass
    for p in range(4):
        for jq in range(4):
            e(f"ds_read_b128 {vr(PB+16*p+4*jq,4)}, v6 offset:{p*16384 + jq*1024}")
    def wread(f):
        k = (f >> 2) + 4 * (f & 3)
        for rho in range(2):
            e(f"ds_read_b64_tr_b16 {vr(WO+4*f+2*rho,2)}, v161 offset:{k*2048 + rho*1024}")
    for g in range(2, 4):
        oload(g)
    e("s_waitcnt lgkmcnt(0)")
    for f in range(12, 16):
        wread(f)
    for r in range(0, 16, 2):
        e(f"v_pk_add_f32 {vr(PB+r,2)}, {vr(PB+r,2)}, {vr(PB+16+r,2)}")
    for f in range(0, 4):
        wread(f)
    for r in range(0, 16, 2):
        e(f"v_pk_add_f32 {vr(PB+r,2)}, {vr(PB+r,2)}, {vr(PB+32+r,2)}")
    for f in range(4, 8):
        wread(f)
    for r in range(0, 16, 2):
        e(f"v_pk_add_f32 {vr(PB+r,2)}, {vr(PB+r,2)}, {vr(PB+48+r,2)}")
    for f in range(8, 12):
        wread(f)
    pass

    def ogroup(g, tag):
        o = OB + 16 * g
        e(f"v_max_u32 v11, v{o}, v{o+1}")
        for r in range(1, 8):
            e(f"v_max3_u32 v11, v11, v{o+2*r}, v{o+2*r+1}")
        e("v_cmp_eq_u32 vcc, -1, v11")
        e("s_cmp_eq_u32 s100, 0")
        e(f"s_cbranch_scc1 OGO{tag}")
        e("s_nop 2")
        e(f"s_cbranch_vccnz ONEXT{tag}")
        e.label(f"OGO{tag}")
        for i in range(4):
            e(f"v_mfma_f32_32x32x16_bf16 {vr(PB,16)}, {vr(WO+16*g+4*i,4)}, {vr(o+4*i,4)}, {vr(PB,16)}")
        e(f"s_bitset0_b32 s35, {g}")
        e.label(f"ONEXT{tag}")
    e("s_waitcnt lgkmcnt(0)")
    for g in range(4):
        e(f"s_waitcnt vmcnt({12 - 4 * g})")
        ogroup(g, f"A{g}")
    e("s_cmp_eq_u32 s35, 0")
    e("s_cbranch_scc1 ODONE")
    e.label("OLOOP")
    e("s_sub_u32 s100, s100, 1")
    for g in range(4):
        e(f"s_bitcmp0_b32 s35, {g}")
        e(f"s_cbranch_scc1 OSK{g}")
        oload(g)
        e.label(f"OSK{g}")
    e("s_waitcnt vmcnt(0)")
    for g in range(4):
        e(f"s_bitcmp0_b32 s35, {g}")
        e(f"s_cbranch_scc1 ONEXTB{g}")
        ogroup(g, f"B{g}")
    e("s_cmp_lg_u32 s35, 0")
    e("s_cbranch_scc1 OLOOP")
    e.label("ODONE")
    cs(e, 10)
    e("s_nop 11")
    for r in range(8):
        e(f"v_cvt_pk_bf16_f32 v{32+r}, v{PB+2*r}, v{PB+2*r+1}")
    e("s_nop 1")
    e("v_permlane32_swap_b32 v32, v34")
    e("v_permlane32_swap_b32 v33, v35")
    e("v_permlane32_swap_b32 v36, v38")
    e("v_permlane32_swap_b32 v37, v39")
    ost = os.environ.get("OST", "")
    e(f"buffer_store_dwordx4 v[32:35], v10, s[52:55], s63 offen {ost}")
    e(f"buffer_store_dwordx4 v[36:39], v10, s[52:55], s63 offen offset:32 {ost}")
    e.label("A_DONE")
    stamp(e, 11)
    if STAMP:
        e("s_waitcnt vmcnt(0)")
    stamp(e, 12); stamp(e, 13, True)
    stamp_flush(e, 14)
    e.label("K_END")
    e("s_endpgm")
    return nb_ffn, e.nbar


def kd(name, vgpr, sgpr=102):
    acc = (vgpr + 3) // 4 * 4
    return f""".p2align 6
.amdhsa_kernel {name}
  .amdhsa_next_free_vgpr {vgpr}
  .amdhsa_next_free_sgpr {sgpr}
  .amdhsa_accum_offset {acc}
  .amdhsa_group_segment_fixed_size 0
  .amdhsa_kernarg_size 104
  .amdhsa_user_sgpr_count 2
  .amdhsa_user_sgpr_kernarg_segment_ptr 1
  .amdhsa_system_sgpr_workgroup_id_x 1
.end_amdhsa_kernel
"""


def main(out):
    ref = open(f"cdna_kernels/{NAME}.s.ref").read().split("\n")
    hdr = [l for l in ref if l.startswith(";") and "@launch" not in l and "Override" not in l and "grid=ceil" not in l]
    e = Asm()
    prologue(e)
    sp_start(e)
    n1 = loader(e)
    n2 = service(e)
    n3 = down(e)
    nf, nc = compute(e)
    n5 = sp_helper(e)
    n6 = sp_compute(e)
    e.label("CODE_END")
    assert n1 == n2 and n1 + n3 == nf + nc and n5 + n3 == n6 + nc, (n1, n2, n3, nf, nc, n5, n6)
    s = "\n".join(hdr) + "\n"
    s += f"; @launch grid=(256,1,1) block=(768,1,1) lds={LDS_TOTAL}\n"
    s += '.amdgcn_target "amdgcn-amd-amdhsa--gfx950"\n.text\n'
    s += e.text()
    s += '.section .rodata,"a"\n'
    s += kd(NAME + "_kernel", 168)
    open(out, "w").write(s)


if __name__ == "__main__":
    main(sys.argv[1] if len(sys.argv) > 1 else f"cdna_kernels/{NAME}.s")
```

```python
import sys, os, struct

NAME = "gated_mix__grouped_kv_mqa__glu_gated_glu__prompt"

WS_OF = 2 << 20
WS_KV = 4 << 20
WS_KN = WS_KV + 131072
WS_G = WS_KN + 4096
WS_FL = WS_G + 8192
WS_HF = 8 << 20
WS_ST = 15 << 20
WS_SIZE = 16 << 20
OOB = 0x7f000000

LOG2E = 1.4426950408889634
STAMP = os.environ.get("STAMP", "0") == "1"
OPT = set(os.environ.get("OPT", "").split(","))
FINE = "fine" in OPT
FINE2 = "fine2" in OPT


def fbits(x):
    return "0x%08x" % struct.unpack("<I", struct.pack("<f", x))[0]


class Asm:
    def __init__(self):
        self.lines = []
        self.vm = []
        self.uid = 0
        self.nbar = 0
    def __call__(self, s):
        self.lines.append("    " + s)
    def label(self, s):
        self.lines.append(s + ":")
    def raw(self, s):
        self.lines.append(s)
    def vmem(self, s, tag):
        self(s)
        self.vm.append(tag)
    def wait_vm(self, tag):
        idxs = [i for i, t in enumerate(self.vm) if t == tag]
        if not idxs:
            return
        idx = max(idxs)
        n = len(self.vm) - 1 - idx
        assert n <= 63
        self(f"s_waitcnt vmcnt({n})")
        self.vm = self.vm[idx + 1:]
    def wait_all(self):
        self("s_waitcnt vmcnt(0)")
        self.vm = []
    def bar(self):
        self("s_barrier")
        self.nbar += 1
    def newlabel(self, p):
        self.uid += 1
        return f"{p}_{self.uid}"
    def text(self):
        return "\n".join(self.lines) + "\n"


def stamp(e, i, real=False):
    if not STAMP:
        return
    if "amp" in OPT:
        if i not in (1, int(os.environ["AMP"])):
            return
        real = True
    if "rt" in OPT:
        real = True
    e(("s_memrealtime" if real else "s_memtime") + " s[78:79]")
    e("s_waitcnt lgkmcnt(0)")
    e(f"s_mov_b32 s{80+i}, s78")


def cs(e, i):
    if not FINE and not (FINE2 and i in (4, 5, 6, 7)):
        stamp(e, i)


def f2(e, i):
    if FINE2:
        stamp(e, i)


def fs(e, i):
    if FINE:
        stamp(e, i)


def stamp_flush(e, n):
    if not STAMP:
        return
    e("s_getreg_b32 s94, hwreg(HW_REG_XCC_ID)")
    n += 1
    if "amp" in OPT:
        lab, lp = e.newlabel("AMPS"), e.newlabel("AMPL")
        i = int(os.environ["AMP"])
        e(f"s_cmp_lg_u32 s30, {int(os.environ.get('DBGW', '4'))}")
        e(f"s_cbranch_scc1 {lab}")
        e(("s_cmp_lt_u32" if "dbgsp" in OPT else "s_cmp_ge_u32") + " s56, 14")
        e(f"s_cbranch_scc1 {lab}")
        e(f"s_sub_u32 s60, s{80+i}, s81")
        e("s_mul_i32 s60, s60, 10")
        e("s_memrealtime s[62:63]")
        e("s_waitcnt lgkmcnt(0)")
        e.label(lp)
        e("s_memrealtime s[78:79]")
        e("s_waitcnt lgkmcnt(0)")
        e("s_sub_u32 s61, s78, s62")
        e("s_cmp_lt_u32 s61, s60")
        e(f"s_cbranch_scc1 {lp}")
        e.label(lab)
        return
    if "dbg" in OPT:
        lab = e.newlabel("DBGS")
        lo = int(os.environ.get("DBGW", "4"))
        e(f"s_sub_u32 s78, s30, {lo}")
        e("s_cmp_ge_u32 s78, 4")
        e(f"s_cbranch_scc1 {lab}")
        e(("s_cmp_lt_u32" if "dbgsp" in OPT else "s_cmp_ge_u32") + " s56, 14")
        e(f"s_cbranch_scc1 {lab}")
        srd(e, 72, 26, 256)
        e("v_mov_b32 v0, 0")
        e("s_mov_b64 exec, 1")
        for i in range(2, 13):
            e(f"s_sub_u32 s78, s{80+i}, s81")
            e("v_mov_b32 v1, s78")
            e(f"buffer_atomic_umax v1, v0, s[72:75], 0 offen offset:{4*i}")
        e("s_sub_u32 s78, s93, s80")
        e("v_mov_b32 v1, s78")
        e(f"buffer_atomic_umax v1, v0, s[72:75], 0 offen offset:52")
        e("s_mov_b64 exec, -1")
        e.label(lab)
        return
    e("s_lshl_b32 s78, s2, 4")
    e("s_add_u32 s78, s78, s30")
    e("s_lshl_b32 s78, s78, 6")
    e(f"s_add_u32 s78, s78, {WS_ST}")
    e("v_mov_b32 v0, 0")
    e("s_mov_b64 exec, 1")
    for i in range(n):
        e(f"v_mov_b32 v1, s{80+i}")
        e(f"buffer_store_dword v1, v0, s[48:51], s78 offen offset:{4*i}")
    e("s_mov_b64 exec, -1")


def vr(a, n=1):
    return f"v{a}" if n == 1 else f"v[{a}:{a+n-1}]"


def srd(e, d, base, size):
    e(f"s_mov_b32 s{d}, s{base}")
    e(f"s_mov_b32 s{d+1}, s{base+1}")
    e(f"s_mov_b32 s{d+2}, {size}")
    e(f"s_mov_b32 s{d+3}, 0x00020000")


def allreduce(e, op, x, t, lo=0, hi=6):
    dpp = ["quad_perm:[1,0,3,2]", "quad_perm:[2,3,0,1]", "row_half_mirror", "row_mirror"]
    for b in range(lo, min(hi, 4)):
        e("s_nop 1")
        e(f"{op}_dpp v{x}, v{x}, v{x} {dpp[b]} row_mask:0xf bank_mask:0xf")
    for b, ins in ((4, "v_permlane16_swap_b32"), (5, "v_permlane32_swap_b32")):
        if lo <= b < hi:
            e(f"v_mov_b32 v{t}, v{x}")
            e("s_nop 1")
            e(f"{ins} v{x}, v{t}")
            e("s_nop 1")
            e(f"{op} v{x}, v{x}, v{t}")


X_ST = 16384
W_BASE = 3 * X_ST
QS_BASE = 32768
X_BASE = [0, 16384, 147456]
LDS_TOTAL = 163840
def stage(kc):
    return (kc + 1) % 3
SAFE_BOUND = 48.0
WD_BASE = 131072
NBW = 4


def spin_guard(e, done):
    e("s_cmp_eq_u32 s100, 0")
    e(f"s_cbranch_scc1 {done}")
    e("s_sub_u32 s100, s100, 1")


def spin(e, load, check, sleep, preloaded=False):
    lo, chk, done = e.newlabel("SPIN"), e.newlabel("SPINC"), e.newlabel("SPIND")
    if preloaded:
        e(f"s_branch {chk}")
    e.label(lo)
    load()
    e.label(chk)
    e.wait_all()
    check()
    e("s_nop 4")
    e(f"s_cbranch_vccz {done}")
    spin_guard(e, done)
    e(f"s_sleep {sleep}")
    e(f"s_branch {lo}")
    e.label(done)


def tr_addr128(e, d0, d1, t0, t1):
    e(f"v_bfe_u32 v{t0}, v1, 2, 2")
    e(f"v_lshrrev_b32 v{t1}, 5, v1")
    e(f"v_lshl_add_u32 v{d0}, v{t1}, 2, v{t0}")
    e(f"v_lshlrev_b32 v{d0}, 7, v{d0}")
    e(f"v_bfe_u32 v{t1}, v1, 4, 1")
    e(f"v_lshl_add_u32 v{d0}, v{t1}, 5, v{d0}")
    e(f"v_and_b32 v{t1}, 3, v1")
    e(f"v_lshl_add_u32 v{d0}, v{t1}, 3, v{d0}")
    e(f"v_bfe_u32 v{t1}, v1, 3, 1")
    e(f"v_lshlrev_b32 v{t1}, 6, v{t1}")
    e(f"v_add_u32 v{d0}, v{d0}, v{t1}")
    e(f"v_xor_b32 v{d1}, 64, v{d0}")


def dma_voff128(e, d, t0, t1):
    e(f"v_lshrrev_b32 v{t0}, 3, v1")
    e(f"v_bfe_u32 v{t1}, v1, 4, 1")
    e(f"v_lshlrev_b32 v{t1}, 2, v{t1}")
    e(f"v_and_b32 v{d}, 7, v1")
    e(f"v_xor_b32 v{d}, v{d}, v{t1}")
    e(f"v_lshlrev_b32 v{d}, 4, v{d}")
    e(f"v_lshl_add_u32 v{d}, v{t0}, 10, v{d}")


def prologue(e):
    n = NAME + "_kernel"
    e.raw(f".globl {n}\n.p2align 8\n.type {n},@function\n{n}:")
    e("s_cmp_ge_u32 s2, 256")
    e("s_cbranch_scc1 K_END")
    stamp(e, 0, True); stamp(e, 1)
    e("s_load_dwordx16 s[4:19], s[0:1], 0")
    e("s_load_dwordx8 s[20:27], s[0:1], 64")
    e("s_load_dwordx2 s[28:29], s[0:1], 96")
    e("s_mov_b32 s100, %d" % (0 if "nospin" in OPT else 0x20000))
    e("v_lshrrev_b32 v2, 6, v0")
    e("v_and_b32 v1, 63, v0")
    e("v_readfirstlane_b32 s30, v2")
    e("v_lshlrev_b32 v2, 4, v1")
    e("v_lshlrev_b32 v3, 2, v1")
    e("v_lshrrev_b32 v6, 4, v1")
    e("s_and_b32 s57, s2, 7")
    if "spread" not in OPT:
        e("s_lshr_b32 s60, s57, 2")
        e("s_and_b32 s61, s57, 1")
        if "evensp" in OPT:
            e("s_xor_b32 s61, s61, 1")
        e("s_lshl_b32 s61, s61, 2")
        e("s_and_b32 s57, s57, 2")
        e("s_or_b32 s57, s57, s60")
        e("s_or_b32 s57, s57, s61")
    e("s_lshr_b32 s59, s2, 3")
    e("s_and_b32 s94, s59, 7")
    e("s_lshr_b32 s95, s59, 3")
    e("s_and_b32 s31, s57, 1")
    e("s_lshl_b32 s31, s31, 3")
    e("s_add_u32 s31, s31, s94")
    e("s_lshr_b32 s56, s57, 1")
    e("s_xor_b32 s60, s95, 3")
    e("s_lshl_b32 s60, s60, 2")
    e("s_add_u32 s56, s56, s60")
    if "spread" in OPT:
        e("s_and_b32 s60, s59, 25")
        e("s_cmp_eq_u32 s60, 1")
        e("s_cselect_b32 s60, 2, 0")
        e("s_xor_b32 s56, s56, s60")
    if "oldi2" in OPT:
        e("s_and_b32 s76, s57, 3")
        e("s_lshl_b32 s76, s76, 3")
    else:
        e("s_andn2_b32 s76, 1, s57")
        e("s_lshl_b32 s76, s76, 4")
        e("s_and_b32 s60, s57, 2")
        e("s_lshl_b32 s60, s60, 2")
        e("s_add_u32 s76, s76, s60")
    e("s_add_u32 s76, s76, s94")
    e("s_lshr_b32 s77, s57, 2")
    e("s_lshl_b32 s77, s77, 2")
    e("s_add_u32 s77, s77, s95")
    e("s_sub_u32 s3, s30, 8")
    rot = os.environ.get("ROT", "8")
    e("s_lshl_b32 s58, s95, 1")
    e("s_add_u32 s58, s58, s94")
    if rot == "4":
        e("s_and_b32 s58, s58, 6")
    elif rot == "2":
        e("s_add_u32 s58, s94, s95")
        e("s_and_b32 s58, s58, 1")
        e("s_lshl_b32 s58, s58, 2")
    elif rot == "1":
        e("s_mov_b32 s58, 0")
    e("s_cmp_ge_u32 s56, 14")
    e("s_cbranch_scc1 SP_START")
    e("s_cmp_lt_u32 s30, 8")
    e("s_cbranch_scc1 COMPUTE")
    e("s_cmp_eq_u32 s3, 3")
    e("s_cbranch_scc1 SERVICE")
    e("s_branch LOADER")


def x_dma_voff(e):
    e("v_and_b32 v8, 7, v1")
    e("v_xor_b32 v7, v6, v8")
    e("v_lshrrev_b32 v8, 3, v1")
    e("v_lshlrev_b32 v8, 10, v8")
    e("v_lshl_add_u32 v4, v7, 4, v8")
    e("v_xor_b32 v5, 64, v4")


def kv_piece(e, tab):
    e(f"s_mov_b32 s59, {sum(t << (8 * i) for i, t in enumerate(tab)):#x}")
    e("s_lshl_b32 s62, s3, 3")
    e("s_lshr_b32 s59, s59, s62")
    e("s_and_b32 s59, s59, 15")
    e("s_add_u32 s62, s59, s94")
    e("s_and_b32 s62, s62, 7")
    e("s_lshl_b32 s62, s62, 14")
    e(f"s_add_u32 s62, s62, {WS_KV}")
    e("s_lshl_b32 s59, s59, 14")
    for n in range(16):
        if n % 4 == 0:
            e(f"s_add_u32 m0, s59, {n * 1024}")
            e(f"s_add_u32 s64, s62, {n * 1024}")
        e.vmem(f"buffer_load_dwordx4 v2, s[48:51], s64 offen offset:{(n & 3) * 1024} sc1 lds", "kvl")


def cnt_spin(e, which):
    e("v_mov_b32 v17, 0")
    spin(e, lambda: e(f"buffer_load_dword v20, v17, s[72:75], 0 offen offset:{128 + 64 * which} sc1"),
         lambda: e("v_cmp_eq_u32 vcc, 0, v20"), 4)


def cnt_arrive(e, which):
    lab = e.newlabel("ARR")
    e("v_mov_b32 v21, 1")
    e("v_mov_b32 v17, 0")
    e("s_mov_b64 exec, 1")
    e(f"buffer_atomic_add v21, v17, s[72:75], 0 offen offset:{64 * which} sc0 sc1")
    e("s_waitcnt vmcnt(0)")
    e("v_readfirstlane_b32 s60, v21")
    e("s_nop 3")
    e("s_cmp_lt_u32 s60, 31")
    e(f"s_cbranch_scc1 {lab}")
    e(f"buffer_store_dword v21, v17, s[72:75], 0 offen offset:{128 + 64 * which} sc1")
    e.label(lab)
    e("s_mov_b64 exec, -1")


def loader(e):
    e.label("LOADER")
    e.vm = []
    e.nbar = 0
    e("s_lshl_b32 s63, s56, 8")
    e("v_mul_u32_u24 v8, 3584, v6")
    e("v_lshlrev_b32 v7, 1, v6")
    e("v_and_b32 v10, 15, v1")
    e("v_xor_b32 v7, v7, v10")
    e("v_lshl_add_u32 v4, v7, 4, v8")
    e("v_mov_b32 v5, v4")
    e("v_xor_b32 v7, 8, v7")
    e("v_lshl_add_u32 v9, v7, 4, v8")
    e("v_mov_b32 v10, v9")
    e(f"s_mov_b32 s65, {4 * 3584}")
    e(f"s_mov_b32 s66, {64 * 3584}")
    e("s_lshl_b32 s67, s3, 14")
    e(f"s_add_u32 s67, s67, {W_BASE - 16384}")
    e("s_add_u32 s69, s67, 32768")
    e("s_add_u32 s70, s69, 32768")
    e("s_mov_b32 s34, %d" % (512 * 3584))
    e("s_cmp_lg_u32 s3, 0")
    e("s_cbranch_scc1 LD_W")
    x_dma_voff(e)
    e("v_mov_b32 v9, v4")
    e("v_mov_b32 v10, v5")
    e("s_lshl_b32 s63, s31, 17")
    e("s_mov_b32 s65, 8192")
    e("s_mov_b32 s66, 128")
    e("s_mov_b32 s67, 0")
    e(f"s_mov_b32 s69, {X_BASE[1]}")
    e(f"s_mov_b32 s70, {X_BASE[2]}")
    e("s_mov_b32 s34, %d" % (2048 * 1024))
    e.label("LD_W")
    e("s_mov_b32 s35, 0x00020000")
    e("s_waitcnt lgkmcnt(0)")
    stamp(e, 2)
    e("s_cmp_eq_u32 s3, 1")
    e("s_cselect_b32 s32, s16, s18")
    e("s_cselect_b32 s33, s17, s19")
    e("s_cmp_eq_u32 s3, 0")
    e("s_cselect_b32 s32, s4, s32")
    e("s_cselect_b32 s33, s5, s33")

    def dma(kc, n0=0, n1=16):
        sb = (67, 69, 70)[stage(kc)]
        so = 60 + (kc & 1)
        if n0 == 0:
            e(f"s_add_u32 s59, s58, {kc}")
            e("s_and_b32 s59, s59, 7")
            e(f"s_mul_i32 s{so}, s66, s59")
            e(f"s_add_u32 s{so}, s{so}, s63")
        for n in range(n0, n1):
            e(f"s_add_u32 m0, s{sb}, {n * 1024}")
            if n > 0:
                e(f"s_add_u32 s{so}, s{so}, s65")
            else:
                e("s_nop 0")
            e.vmem(f"buffer_load_dwordx4 v{(4, 5, 9, 10)[n & 3]}, s[32:35], s{so} offen lds", f"c{kc}")

    LA = int(os.environ.get("LA", "11"))
    if "st8" in OPT:
        dma(0, 0, 8)
        stamp(e, 10)
        dma(0, 8, 16)
    else:
        dma(0)
    dma(1, 0, LA)
    srd(e, 48, 28, WS_SIZE)
    e.wait_vm("c0")
    e.bar()
    stamp(e, 3)
    for kc in range(7):
        dma(kc + 1, LA, 16)
        if kc + 2 < 8:
            dma(kc + 2, 0, LA)
        if kc == 6 and "late" not in OPT:
            kv_piece(e, (0, 3, 4))
        e.wait_vm(f"c{kc+1}")
        fs(e, 4 + kc)
        e.bar()
        if kc == 3:
            cs(e, 4)
    kv_piece(e, (1, 5, 6))
    e.bar()
    cs(e, 5)
    if "late" in OPT:
        kv_piece(e, (0, 3, 4))
    e("s_cmp_eq_u32 s3, 2")
    e("s_cbranch_scc1 KVP_SKIP")
    kv_piece(e, (7, 2, 2))
    e.label("KVP_SKIP")
    e.wait_all()
    cs(e, 6)
    e.bar()
    cs(e, 7)
    e("s_branch DOWN")
    return e.nbar


def wq_voff(e):
    e("v_lshrrev_b32 v7, 2, v1")
    e("v_and_b32 v8, 3, v1")
    e("v_lshlrev_b32 v8, 4, v8")
    e("v_lshl_add_u32 v4, v7, 10, v8")
    e("v_and_b32 v7, 32, v1")
    e("v_xor_b32 v4, v4, v7")


def service(e):
    e.label("SERVICE")
    e.vm = []
    e.nbar = 0
    wq_voff(e)
    e("s_lshl_b32 s63, s56, 6")
    e("s_waitcnt lgkmcnt(0)")
    stamp(e, 2)
    srd(e, 32, 6, 512 * 1024)

    def dma(kc):
        e(f"s_add_u32 s59, s58, {kc}")
        e("s_and_b32 s59, s59, 7")
        e("s_lshl_b32 s60, s59, 16")
        e("s_add_u32 s60, s60, s63")
        for n in range(4):
            e(f"s_mov_b32 m0, {QS_BASE + stage(kc) * 4096 + n * 1024}")
            e("s_add_u32 s60, s60, 16384" if n else "s_nop 0")
            e.vmem("buffer_load_dwordx4 v4, s[32:35], s60 offen lds", f"c{kc}")
    dma(0)
    dma(1)
    srd(e, 48, 28, WS_SIZE)
    srd(e, 72, 26, 0 if "noflag" in OPT else 256)
    e.wait_vm("c0")
    e.bar()
    stamp(e, 3)
    for kc in range(7):
        if kc + 2 < 8:
            dma(kc + 2)
        if kc == (6 if "late" in OPT else 5):
            cnt_spin(e, 0)
        e.wait_vm(f"c{kc+1}")
        fs(e, 4 + kc)
        e.bar()
        if kc == 3:
            cs(e, 4)
    e.bar()
    cs(e, 5)
    cnt_spin(e, 1)
    cs(e, 6)
    e.bar()
    cs(e, 7)
    return e.nbar


def down(e):
    e.label("DOWN")
    e.vm = []
    e.nbar = 0
    srd(e, 44, 20, 1792 * 1024)
    e("s_mul_i32 s32, s76, 224")
    e("s_mul_i32 s60, s3, 28")
    e("s_add_u32 s32, s32, s60")
    e("s_lshl_b32 s32, s32, 10")
    e(f"s_add_u32 s32, s32, {WS_HF}")
    e(f"s_add_u32 s33, s32, {112*1024}")
    e("s_lshl_b32 s36, s60, 14")
    e("s_lshl_b32 s61, s77, 7")
    e("s_add_u32 s36, s36, s61")
    e(f"s_mul_i32 s37, s3, {NBW * 2048}")
    e(f"s_add_u32 s37, s37, {WD_BASE}")
    e("s_setprio 3")
    dma_voff128(e, 4, 7, 8)
    tr_addr128(e, 9, 10, 7, 8)
    e("v_add_u32 v9, s37, v9")
    e("v_add_u32 v10, s37, v10")
    e("s_lshl_b32 s62, s76, 9")
    e("s_lshl_b32 s60, s3, 7")
    e("s_add_u32 s62, s62, s60")
    e(f"s_add_u32 s62, s62, {WS_FL}")
    DAC = 24
    WB = 88
    HB = 104
    WE = 136
    srd(e, 40, 12, 512 * 1024)
    e("s_lshl_b32 s38, s3, 17")
    e("s_add_u32 s38, s38, s61")
    e("s_lshl_b32 s39, s95, 1")
    e("s_add_u32 s39, s39, s94")
    e("s_cmp_ge_u32 s39, 7")
    e("s_cselect_b32 s60, 7, 0")
    e("s_sub_u32 s39, s39, s60")
    if "nodrot" in OPT:
        e("s_mov_b32 s39, 0")

    def group(reg_w, reg_h):
        if reg_w:
            e("s_lshl_b32 s67, s39, 16")
            e("s_add_u32 s67, s67, s36")
        if reg_h:
            e("s_lshl_b32 s60, s39, 12")
            e("s_add_u32 s68, s60, s32")
            e("s_add_u32 s69, s60, s33")
            e("s_add_u32 s39, s39, 1")
            e("s_cmp_eq_u32 s39, 7")
            e("s_cselect_b32 s39, 0, s39")
    def wload(ks):
        if "dnoload" in OPT and ks >= 4: return
        for u in range(2):
            e(f"s_add_u32 m0, s37, {(ks % NBW) * 2048 + u * 1024}")
            e(f"s_add_u32 s60, s67, {(ks & 3) * 16384 + u * 8192}")
            e.vmem("buffer_load_dwordx4 v4, s[44:47], s60 offen lds", f"w{ks}")
    def woload(j, par, tag):
        for u in range(2):
            e(f"s_add_u32 m0, s37, {j * 2048 + u * 1024}")
            e(f"s_add_u32 s60, s38, {(2 * j + par) * 16384 + u * 8192}")
            e.vmem("buffer_load_dwordx4 v4, s[40:43], s60 offen lds", tag)
    def hload(ks):
        if "dnoload" in OPT and ks >= 4: return
        f = HB + 8 * (ks & 3)
        for t in range(2):
            e.vmem(f"buffer_load_dwordx4 {vr(f+4*t,4)}, v2, s[48:51], s{68+t} offen offset:{(ks & 3) * 1024} sc1", f"h{ks}")
    def wread(f, slot):
        for m in range(2):
            for rho in range(2):
                e(f"ds_read_b64_tr_b16 {vr(f+4*m+2*rho,2)}, v{9+m} offset:{slot * 2048 + rho * 1024}")

    e("s_cmp_ge_u32 s56, 14")
    e("s_cbranch_scc1 H_SKIP")
    e("v_add_u32 v7, s37, v2")
    for n in range(8):
        e(f"ds_read_b128 {vr(HB+4*n,4)}, v7 offset:{n*1024}")
    e("s_lshl_b32 s64, s31, 2")
    e("s_and_b32 s60, s3, 2")
    e("s_add_u32 s64, s64, s60")
    e("s_mul_i32 s64, s64, 112")
    e("s_lshl_b32 s60, s56, 1")
    e("s_and_b32 s61, s3, 1")
    e("s_add_u32 s66, s60, s61")
    e("s_lshl_b32 s60, s66, 2")
    e("s_add_u32 s64, s64, s60")
    e("s_lshl_b32 s64, s64, 10")
    e(f"s_add_u32 s64, s64, {WS_HF}")
    e(f"s_add_u32 s65, s64, {112*1024}")
    e("s_mul_i32 s60, s66, 37")
    e("s_lshr_b32 s60, s60, 8")
    e("s_mul_i32 s61, s60, 25")
    e("s_add_u32 s66, s66, s61")
    e("s_lshl_b32 s66, s66, 2")
    e("s_lshl_b32 s60, s31, 10")
    e("s_add_u32 s66, s66, s60")
    e("s_and_b32 s60, s3, 2")
    e("s_lshl_b32 s60, s60, 8")
    e("s_add_u32 s66, s66, s60")
    e(f"s_add_u32 s66, s66, {WS_FL}")
    e("s_waitcnt lgkmcnt(0)")
    for n in range(8):
        u, t, k = n >> 2, (n >> 1) & 1, n & 1
        e(f"buffer_store_dwordx4 {vr(HB+4*n,4)}, v2, s[48:51], s{64+t} offen offset:{(2*u+k)*1024} sc1")
        HT = int(os.environ.get("HT", "63"))
        if HT < 63:
            e(f"s_waitcnt vmcnt({HT})")
    f2(e, 4)
    e("v_mov_b32 v12, 1")
    e("v_mov_b32 v11, 0")
    e("s_waitcnt vmcnt(0)")
    f2(e, 5)
    e("s_mov_b64 exec, 1")
    e("buffer_store_dword v12, v11, s[48:51], s66 offen sc1")
    e("s_mov_b64 exec, -1")
    e.label("H_SKIP")
    f2(e, 6); f2(e, 7)
    for j in range(4):
        woload(j, 0, "we")
    e("v_and_b32 v7, 31, v1")
    e("v_lshlrev_b32 v7, 2, v7")
    e("s_lshl_b32 s60, s76, 8")
    e(f"s_add_u32 s60, s60, {WS_G}")
    e("buffer_load_dword v14, v7, s[48:51], s60 offen sc1")
    e("buffer_load_dword v16, v7, s[48:51], s60 offen offset:128 sc1")
    e.wait_all()
    for j in range(4):
        wread(WE + 8 * j, j)
    e("v_sub_f32 v14, 1.0, v14")
    e("v_sub_f32 v16, 1.0, v16")
    e("v_mov_b32 v15, v14")
    e("v_mov_b32 v17, v16")
    e("s_waitcnt lgkmcnt(0)")
    group(True, False)
    for ks in range(NBW):
        wload(ks)

    def fl_ld():
        e("s_mov_b64 exec, 0x7f")
        e("buffer_load_dword v20, v3, s[48:51], s62 offen sc1")
        e("s_mov_b64 exec, -1")
    def fl_ck():
        e("s_mov_b64 exec, 0x7f")
        e("v_cmp_ne_u32 vcc, 1, v20")
        e("s_mov_b64 exec, -1")
    if "slp" in OPT:
        e("s_sleep 100")
    spin(e, fl_ld, fl_ck, 16)
    e("s_setprio %s" % os.environ.get("HP", "0"))
    cs(e, 8)
    group(False, True)
    for ks in range(4):
        hload(ks)
    wread(WB, 0)
    for ks in range(28):
        e("s_waitcnt lgkmcnt(0)")
        if ks % 4 == 0 and ks + 4 < 28:
            group(True, True)
        if ks + 4 < 28:
            wload(ks + 4)
        else:
            woload(ks & 3, 1, "wodd")
        if ks + 1 < 28:
            e.wait_vm(f"w{ks+1}")
            wread(WB + 8 * ((ks + 1) & 1), (ks + 1) & 3)
        e.wait_vm(f"h{ks}")
        f = WB + 8 * (ks & 1)
        h = HB + 8 * (ks & 3)
        for m in range(2):
            for t in ((0, 1), (1, 0))[m]:
                d = DAC + 32 * m + 16 * t
                c = "0" if ks == 0 else vr(d, 16)
                if "dnomfma" in OPT and ks > 0: continue
                e(f"v_mfma_f32_32x32x16_bf16 {vr(d,16)}, {vr(f+4*m,4)}, {vr(h+4*t,4)}, {c}")
        if ks + 4 < 28:
            hload(ks + 4)
    cs(e, 9)
    e("s_setprio 3")
    e("s_lshl_b32 s64, s76, 16")
    e("s_lshl_b32 s60, s3, 13")
    e("s_add_u32 s64, s64, s60")
    e(f"s_add_u32 s64, s64, {WS_OF}")
    e("s_add_u32 s65, s64, 4096")
    e("s_add_u32 s66, s64, 32768")
    e("s_add_u32 s67, s64, 36864")
    e("s_lshl_b32 s60, s3, 14")
    e("v_add_u32 v6, s60, v2")
    e("s_nop 7")
    for m in range(2):
        for t in range(2):
            for r in range(0, 16, 2):
                d = DAC + 32 * m + 16 * t + r
                e(f"v_pk_mul_f32 {vr(d,2)}, {vr(d,2)}, v[{14+2*t}:{15+2*t}]")

    def oe_ld():
        for j in range(4):
            for t in range(2):
                e(f"buffer_load_dwordx4 {vr(HB+8*j+4*t,4)}, v2, s[48:51], s{64+2*t+(j>>1)} offen offset:{(j&1)*2048} sc1")
    def oe_ck():
        e(f"v_max_u32 v11, v{HB}, v{HB+1}")
        for r in range(1, 16):
            e(f"v_max3_u32 v11, v11, v{HB+2*r}, v{HB+2*r+1}")
        e("v_cmp_eq_u32 vcc, -1, v11")
    spin(e, oe_ld, oe_ck, 12)
    e("s_setprio 0")
    for j in range(4):
        for m in range(2):
            for t in range(2):
                d = DAC + 32 * m + 16 * t
                e(f"v_mfma_f32_32x32x16_bf16 {vr(d,16)}, {vr(WE+8*j+4*m,4)}, {vr(HB+8*j+4*t,4)}, {vr(d,16)}")
    e("s_nop 15")
    if "st8" not in OPT: cs(e, 10)
    e.bar()
    for q in range(16):
        e(f"ds_write_b128 v6, {vr(DAC+4*q,4)} offset:{q*1024}")
    e("s_waitcnt lgkmcnt(0)")
    e.bar()
    stamp(e, 11); stamp(e, 12); stamp(e, 13, True)
    stamp_flush(e, 14)
    e("s_endpgm")
    return e.nbar


SP_XB = 65536
SP_WQ = 131072


def sp_xload(e, rows_sgpr, lds_sgpr, chunk_sgpr):
    e(f"s_lshl_b32 s60, s{chunk_sgpr}, 7")
    e(f"s_add_u32 s60, s60, s{rows_sgpr}")
    e(f"s_lshl_b32 s61, s{chunk_sgpr}, 13")
    e(f"s_add_u32 s61, s61, {lds_sgpr}")
    for n in range(8):
        e(f"s_add_u32 m0, s61, {n * 1024}")
        e("s_add_u32 s60, s60, 8192" if n else "s_nop 0")
        e(f"buffer_load_dwordx4 v{4 + (n & 1)}, s[32:35], s60 offen lds")


def sp_start(e):
    e.label("SP_START")
    e("s_lshl_b32 s60, s31, 1")
    e("s_add_u32 s60, s60, s56")
    e("s_sub_u32 s97, s60, 14")
    e("s_lshl_b32 s63, s97, 16")
    x_dma_voff(e)
    e("s_waitcnt lgkmcnt(0)")
    srd(e, 32, 4, 2048 * 1024)
    e("s_cmp_ge_u32 s30, 8")
    e("s_cbranch_scc1 SP_START_H")
    sp_xload(e, 63, 0, 30)
    e("s_branch COMPUTE")
    e.label("SP_START_H")
    e("s_cmp_lt_u32 s3, 2")
    e("s_cselect_b32 s36, s8, s10")
    e("s_cselect_b32 s37, s9, s11")
    e("s_mov_b32 s38, 16384")
    e("s_mov_b32 s39, 0x00020000")
    e("s_lshl_b32 s61, s3, 13")
    e("s_and_b32 s62, s61, 0x2000")
    for n in range(8):
        if n % 4 == 0:
            e(f"s_add_u32 m0, s61, {SP_XB + n * 1024}")
            e(f"s_add_u32 s60, s62, {n * 1024}")
        e(f"buffer_load_dwordx4 v2, s[36:39], s60 offen offset:{(n & 3) * 1024} lds")
    e("s_branch SP_HELPER")


def sp_helper(e):
    e.label("SP_HELPER")
    e.vm = []
    e.nbar = 0
    e("v_mov_b32 v16, 0")
    stamp(e, 2)
    srd(e, 48, 28, WS_SIZE)
    srd(e, 72, 26, 0 if "noflag" in OPT else 256)
    e.wait_all()
    e.bar()
    stamp(e, 3)
    srd(e, 36, 22, 1024)
    e(f"s_mov_b32 m0, {SP_XB + 32768}")
    e("v_lshrrev_b32 v7, 2, v1")
    e("buffer_load_dwordx4 v2, s[36:39], 0 offen lds")
    e("v_and_b32 v8, 3, v1")
    e("v_lshlrev_b32 v8, 4, v8")
    e("v_lshl_add_u32 v9, v7, 10, v8")
    srd(e, 40, 6, 512 * 1024)
    e("s_lshl_b32 s60, s3, 17")
    e("s_lshl_b32 s62, s56, 6")
    e("s_add_u32 s60, s60, s62")
    e("s_lshl_b32 s61, s3, 13")
    for n in range(8):
        e(f"s_add_u32 m0, s61, {SP_WQ + n * 1024}")
        e("s_add_u32 s60, s60, 16384" if n else "s_nop 0")
        e("buffer_load_dwordx4 v9, s[40:43], s60 offen lds")
    e("s_lshl_b32 s60, s97, 9")
    e("s_lshl_b32 s61, s3, 7")
    e("s_add_u32 s60, s60, s61")
    e(f"s_add_u32 s60, s60, {WS_FL}")
    e("s_mov_b64 exec, 0xff")
    e("buffer_store_dword v16, v3, s[48:51], s60 offen sc1")
    e("s_mov_b64 exec, -1")
    for r in range(4):
        e(f"v_mov_b32 v{12+r}, -1")
    e("s_xor_b32 s63, s97, 1")
    e("s_lshl_b32 s63, s63, 16")
    e.wait_all()
    e.bar()
    cs(e, 4)
    e("s_cmp_lg_u32 s3, 3")
    e("s_cbranch_scc1 SPH_A")
    cnt_arrive(e, 0)
    e.label("SPH_A")
    e("s_lshl_b32 s60, s97, 16")
    e("s_lshl_b32 s61, s3, 14")
    e("s_add_u32 s60, s60, s61")
    e(f"s_add_u32 s60, s60, {WS_OF}")
    for n in range(16):
        if n % 4 == 0:
            e(f"s_add_u32 s61, s60, {n * 1024}")
        e(f"buffer_store_dwordx4 v[12:15], v2, s[48:51], s61 offen offset:{(n & 3) * 1024} sc1")
    e.bar()
    for u in range(2):
        e("s_lshl_b32 s62, s3, 1")
        e(f"s_add_u32 s62, s62, {u}")
        sp_xload(e, 63, SP_XB, 62)
    e.wait_all()
    e.bar()
    cs(e, 5)
    e("s_cmp_lg_u32 s3, 3")
    e("s_cbranch_scc1 SPH_C")
    cnt_arrive(e, 1)
    e.label("SPH_C")
    e("s_cmp_lg_u32 s3, 3")
    e("s_cbranch_scc1 SPH_B")
    cnt_spin(e, 0)
    e.label("SPH_B")
    e.wait_all()
    e.bar()
    e.bar()
    kv_piece(e, (0, 1, 2, 3))
    kv_piece(e, (4, 5, 6, 7))
    e("s_cmp_lg_u32 s3, 3")
    e("s_cbranch_scc1 SPH_D")
    cnt_spin(e, 1)
    e.label("SPH_D")
    e.wait_all()
    cs(e, 6)
    e.bar()
    cs(e, 7)
    e("s_branch DOWN")
    return e.nbar


def sp_compute(e):
    e.label("SP_COMPUTE")
    e.vm = []
    e.nbar = 0
    A = 64
    srd(e, 48, 28, WS_SIZE)
    srd(e, 52, 24, 2048 * 1024)
    stamp(e, 2)

    def xaddr(base):
        e("v_and_b32 v14, 31, v1")
        e("v_lshrrev_b32 v15, 5, v1")
        e("v_bfe_u32 v16, v1, 1, 3")
        e("v_xor_b32 v16, v16, v15")
        e("s_and_b32 s60, s30, 1")
        e("s_lshl_b32 s60, s60, 12")
        e(f"s_add_u32 s60, s60, {base}")
        e("v_lshlrev_b32 v17, 7, v14")
        e("v_add_u32 v17, s60, v17")
        for s in range(4):
            e(f"v_xor_b32 v18, {2*s}, v16")
            e(f"v_lshl_add_u32 v{10+s}, v18, 4, v17")
        e("v_bfe_u32 v16, v1, 2, 2")
        e("v_lshl_add_u32 v17, v15, 3, v16")
        e("v_and_b32 v18, 3, v1")
        e("v_lshlrev_b32 v18, 3, v18")
        for r in range(16):
            e(f"v_mov_b32 v{A+r}, 0")

    def chain(kind):
        lab = e.newlabel("CH")
        rs = {"K": 32, "V": 32, "Q": 64, "G": 2}[kind]
        if kind in "KV":
            e("v_lshl_add_u32 v14, v17, 5, v18")
            e(f"v_add_u32 v14, {SP_XB + (16384 if kind == 'V' else 0)}, v14")
        elif kind == "Q":
            e("v_lshl_add_u32 v14, v17, 6, v18")
            e("v_bfe_u32 v19, v1, 4, 1")
            e("v_lshl_add_u32 v14, v19, 5, v14")
            e(f"v_add_u32 v14, {SP_WQ}, v14")
        else:
            e("v_lshlrev_b32 v14, 4, v15")
            e(f"v_add_u32 v14, {SP_XB + 32768}, v14")
        def rd(s):
            e(f"ds_read_b128 {vr(24+4*s,4)}, v{10+s}")
            if kind == "G":
                e(f"ds_read_b128 {vr(40+4*s,4)}, v14 offset:{s*32}")
            else:
                for rho in range(2):
                    e(f"ds_read_b64_tr_b16 {vr(40+4*s+2*rho,2)}, v14 offset:{(16*s+4*rho)*rs}")
            e(f"v_add_u32 v{10+s}, 0x2000, v{10+s}")
            if s == 3:
                e(f"v_add_u32 v14, {64*rs}, v14")
        nrd = 2 if kind == "G" else 3
        for s in range(4):
            rd(s)
        e("s_mov_b32 s60, 8")
        e.label(lab)
        for s in range(4):
            e(f"s_waitcnt lgkmcnt({3 * nrd})")
            a, b = vr(40+4*s, 4), vr(24+4*s, 4)
            if kind == "V":
                a, b = b, a
            e(f"v_mfma_f32_32x32x16_bf16 {vr(A,16)}, {a}, {b}, {vr(A,16)}")
            rd(s)
        e("s_sub_u32 s60, s60, 1")
        e("s_cmp_lg_u32 s60, 0")
        e(f"s_cbranch_scc1 {lab}")
        e("s_waitcnt lgkmcnt(0)")

    xaddr(0)
    e("s_lshl_b32 s98, s97, 1")
    e("s_and_b32 s60, s30, 1")
    e("s_add_u32 s98, s98, s60")
    e.wait_all()
    e.bar()
    stamp(e, 3)
    e("s_lshr_b32 s99, s30, 1")
    e("s_cmp_eq_u32 s99, 1")
    e("s_cbranch_scc1 SPC_V")
    e("s_cmp_eq_u32 s99, 2")
    e("s_cbranch_scc1 SPC_G")
    e("s_cmp_eq_u32 s99, 3")
    e("s_cbranch_scc1 SPC_Q")
    chain("K")
    e(f"s_mov_b32 s60, {fbits(0.25 * LOG2E)}")
    e("v_and_b32 v14, 0x33, v1")
    e("v_bfe_u32 v15, v1, 2, 1")
    e("v_lshl_add_u32 v14, v15, 3, v14")
    e("v_bfe_u32 v15, v1, 3, 1")
    e("v_lshl_add_u32 v14, v15, 2, v14")
    e("v_lshlrev_b32 v14, 4, v14")
    e("s_nop 4")
    for r in range(8):
        e(f"v_mul_f32 v{A+r}, s60, v{A+r}")
    e(f"v_mul_f32 v18, v{A}, v{A}")
    for r in range(1, 8):
        e(f"v_fmac_f32 v18, v{A+r}, v{A+r}")
    for r in range(4):
        e(f"v_cvt_pk_bf16_f32 v{A+8+r}, v{A+2*r}, v{A+2*r+1}")
    e("s_lshl_b32 s60, s98, 11")
    e(f"s_add_u32 s60, s60, {WS_KV}")
    e(f"buffer_store_dwordx4 {vr(A+8,4)}, v14, s[48:51], s60 offen sc1")
    allreduce(e, "v_add_f32", 18, 19, 5, 6)
    allreduce(e, "v_max_f32", 18, 19, 0, 5)
    e("s_lshl_b32 s60, s98, 2")
    e(f"s_add_u32 s60, s60, {WS_KN}")
    e("s_mov_b64 exec, 1")
    e("buffer_store_dword v18, v3, s[48:51], s60 offen sc1")
    e("s_mov_b64 exec, -1")
    e("s_branch SPC_KV_DONE")
    e.label("SPC_V")
    chain("V")
    e("s_nop 9")
    for r in range(8):
        e(f"v_cvt_pk_bf16_f32 v{A+r}, v{A+2*r}, v{A+2*r+1}")
    e("s_lshl_b32 s60, s98, 11")
    e(f"s_add_u32 s60, s60, {WS_KV + 1024}")
    e("s_mov_b32 exec_lo, 0xffff")
    e("s_mov_b32 exec_hi, 0xffff")
    e(f"buffer_store_dwordx4 {vr(A,4)}, v2, s[48:51], s60 offen sc1")
    e(f"buffer_store_dwordx4 {vr(A+4,4)}, v2, s[48:51], s60 offen offset:256 sc1")
    e("s_mov_b64 exec, -1")
    e.label("SPC_KV_DONE")
    e("s_waitcnt vmcnt(0)")
    e("s_barrier")
    e("s_barrier")
    e("s_barrier")
    e("s_barrier")
    e("s_branch SPC_JOIN")
    e.label("SPC_G")
    e("s_barrier")
    chain("G")
    e("s_barrier")
    e("s_nop 9")
    e(f"v_mul_f32 v18, {fbits(-LOG2E)}, v{A}")
    e("v_exp_f32 v18, v18")
    e("s_lshl_b32 s60, s98, 7")
    e("v_add_f32 v18, 1.0, v18")
    e("v_rcp_f32 v20, v18")
    e(f"s_add_u32 s60, s60, {WS_G}")
    e("s_mov_b32 exec_hi, 0")
    e("buffer_store_dword v20, v3, s[48:51], s60 offen sc1")
    e("s_mov_b64 exec, -1")
    xaddr(SP_XB)
    e("s_xor_b32 s98, s98, 2")
    e("s_waitcnt vmcnt(0)")
    e("s_barrier")
    chain("Q")
    e("s_branch SPC_QW")
    e.label("SPC_Q")
    e.bar()
    chain("Q")
    e.bar()
    e.bar()
    e.label("SPC_QW")
    e.bar()
    e("s_and_b32 s60, s98, 3")
    e("s_nop 2")
    e("s_lshl_b32 s60, s60, 12")
    e(f"s_add_u32 s60, s60, {WD_BASE}")
    e("v_add_u32 v14, s60, v2")
    e("v_xor_b32 v15, 0x4000, v14")
    e("s_nop 3")
    for r in range(8):
        e(f"v_cvt_pk_bf16_f32 v{A+r}, v{A+2*r}, v{A+2*r+1}")
    e(f"ds_write_b128 v14, {vr(A,4)}")
    e(f"ds_write_b128 v15, {vr(A+4,4)}")
    e("s_waitcnt lgkmcnt(0)")
    e.label("SPC_JOIN")
    cs(e, 4); cs(e, 5)
    e(f"s_mov_b32 s60, {WS_KN}")
    e("buffer_load_dword v10, v3, s[48:51], s60 offen sc1")
    e("s_lshl_b32 s62, s30, 12")
    e(f"s_add_u32 s62, s62, {WD_BASE}")
    e("v_add_u32 v14, s62, v2")
    e.bar()
    e(f"ds_read_b128 {vr(R_Q,4)}, v14")
    for l in att_init():
        e(l)
    e("s_waitcnt vmcnt(0)")
    allreduce(e, "v_max_f32", 10, 12, 0, 6)
    e("s_waitcnt lgkmcnt(0)")
    e("s_branch QJOIN")
    return e.nbar


R_O = 16; R_VF = [32, 40]; R_Q = 48; R_C = 52; R_KF = [68, 72, 76, 80]; R_S = [88, 104]


def att_init():
    L = ["v_and_b32 v12, %d, v1" % (31 if "one1" in OPT else 27),
         "v_cmp_eq_u32 vcc, 16, v12",
         "v_mov_b32 v12, 0x3f803f80",
         "v_mov_b32 v8, 0xdddd",
         f"v_cndmask_b32 v{R_VF[0]}, 0, v12, vcc"]
    L += [f"v_mov_b32 v{R_VF[0]+1}, v{R_VF[0]}"]
    L += [f"v_mov_b64 {vr(R_VF[0]+r,2)}, {vr(R_VF[0],2)}" for r in range(2, 16, 2)]
    L += [f"v_mov_b64 {vr(R_O+r,2)}, 0" for r in range(0, 16, 2)]
    L += ["v_mov_b32 v13, v2", "v_mov_b32 v11, 0"]
    return L


def compute(e):
    e.label("COMPUTE")
    e("s_lshr_b32 s60, s30, 2")
    e("s_lshl_b32 s96, s31, 2")
    e("s_and_b32 s61, s30, 3")
    e("s_add_u32 s96, s96, s61")
    e("s_lshl_b32 s96, s96, 4")
    e("s_add_u32 s96, s96, s56")
    e("s_lshl_b32 s96, s96, 1")
    e("s_add_u32 s96, s96, s60")
    e("s_lshl_b32 s96, s96, 10")
    e("s_mov_b32 s40, 0xffff")
    e("s_mov_b32 s41, 0xffff")
    e("s_cmp_ge_u32 s56, 14")
    e("s_cbranch_scc1 SP_COMPUTE")
    e.vm = []
    e.nbar = 0
    if "pf" in OPT:
        e("s_getpc_b64 s[44:45]")
        e.label("PC_REF")
        e(f"s_sub_u32 s44, s44, PC_REF-{NAME}_kernel")
        e("s_subb_u32 s45, s45, 0")
        e("s_and_b32 s60, s94, 3")
        e("s_lshl_b32 s60, s60, 3")
        e("s_add_u32 s60, s60, s30")
        e("s_lshl_b32 s60, s60, 10")
        e(f"s_min_u32 s60, s60, CODE_END-{NAME}_kernel-1024")
        e("v_add_u32 v24, s60, v2")
        e("global_load_dwordx4 v[24:27], v24, s[44:45]")
    XA = 160
    e("v_and_b32 v14, 15, v1")
    e("v_bfe_u32 v16, v1, 1, 3")
    e("v_xor_b32 v16, v16, v6")
    e("s_and_b32 s60, s30, 3")
    e("s_lshl_b32 s60, s60, 12")
    e("v_lshlrev_b32 v17, 7, v14")
    e("v_add_u32 v17, s60, v17")
    for s in range(2):
        e(f"v_xor_b32 v18, {4*s}, v16")
        e(f"v_lshl_add_u32 v{XA+s}, v18, 4, v17")
        e(f"v_xor_b32 v{XA+2+s}, 0x1000, v{XA+s}")
        e(f"v_add_u32 v{XA+4+s}, {X_BASE[2]}, v{XA+s}")
        e(f"v_add_u32 v{XA+6+s}, {X_BASE[2]}, v{XA+2+s}")
    e("s_lshr_b32 s60, s30, 2")
    e("s_lshl_b32 s92, s60, 1")
    e("s_and_b32 s61, s30, 1")
    e("s_add_u32 s92, s92, s61")
    e("v_bfe_u32 v16, v1, 2, 2")
    e("v_lshl_add_u32 v17, v6, 3, v16")
    e("v_and_b32 v19, 3, v1")
    e("v_and_b32 v18, 1, v6")
    e("v_xor_b32 v14, s60, v18")
    e("v_lshlrev_b32 v9, 6, v17")
    e("v_lshl_add_u32 v9, v14, 5, v9")
    e("v_and_b32 v14, 1, v1")
    e("v_lshl_add_u32 v9, v14, 4, v9")
    e("v_bfe_u32 v14, v1, 1, 1")
    e("v_lshl_add_u32 v9, v14, 3, v9")
    e("v_lshl_add_u32 v18, v18, 2, v16")
    e("s_lshl_b32 s61, s92, 1")
    e("v_xor_b32 v18, s61, v18")
    e("v_lshlrev_b32 v4, 8, v17")
    e("v_lshl_add_u32 v4, v18, 5, v4")
    e("v_lshl_add_u32 v4, v19, 3, v4")
    e("s_and_b32 s60, s30, 2")
    e("s_lshl_b32 s60, s60, 1")
    e("s_add_u32 s60, s60, s92")
    e("s_lshl_b32 s60, s60, 1")
    e("s_and_b32 s61, s30, 1")
    e("s_add_u32 s60, s60, s61")
    e("s_lshl_b32 s60, s60, 11")
    e(f"s_add_u32 s60, s60, {WD_BASE}")
    e("v_and_b32 v14, 15, v1")
    e("v_lshlrev_b32 v14, 4, v14")
    e("v_and_b32 v15, 1, v6")
    e("v_lshl_add_u32 v14, v15, 9, v14")
    e("v_lshrrev_b32 v15, 1, v6")
    e("v_lshl_add_u32 v14, v15, 3, v14")
    e("v_add_u32 v14, s60, v14")
    e("v_xor_b32 v15, 0x800, v14")
    e("v_xor_b32 v5, 32, v4")
    e(f"v_add_u32 v4, {W_BASE}, v4")
    e(f"v_add_u32 v5, {W_BASE}, v5")
    e("v_add_u32 v6, 0x10000, v4")
    e("v_add_u32 v7, 0x10000, v5")
    e("s_waitcnt lgkmcnt(0)")
    srd(e, 48, 28, WS_SIZE)
    srd(e, 52, 24, 2048 * 1024)
    e(f"s_mov_b32 s64, {fbits(-LOG2E)}")
    e(f"s_mov_b32 s65, {fbits(-LOG2E)}")
    e("s_mov_b32 s66, 1.0")
    e("s_mov_b32 s67, 1.0")
    e("s_waitcnt vmcnt(0)")
    stamp(e, 2)

    ACC = 88
    QACC = 152
    FR = [16, 52]

    def reads(kc, s, fb):
        st = stage(kc)
        f = FR[fb]
        L = []
        for rho in range(2):
            L.append(f"ds_read_b64_tr_b16 {vr(f + 16 + 2*rho, 2)}, v9 offset:{QS_BASE + st * 4096 + (32 * s + 4 * rho) * 64}")
        for t in range(4):
            a = XA + (4 if st == 2 else 0) + 2 * (t >> 1) + s
            L.append(f"ds_read_b128 {vr(f + 4*t, 4)}, v{a} offset:{(X_BASE[st] if st < 2 else 0) + (t & 1) * 2048}")
        for jj in range(4):
            m, j = jj >> 1, jj & 1
            for rho in range(2):
                off = st * 32768 + m * 16384 + (32 * s + 4 * rho) * 256
                a = 4 + j
                if off >= 65536:
                    off -= 65536
                    a += 2
                L.append(f"ds_read_b64_tr_b16 {vr(f + 20 + 4*jj + 2*rho, 2)}, v{a} offset:{off}")
        return L

    def mfmas(fb, first):
        f = FR[fb]
        L = []
        for t in range(2):
            d = QACC + 4 * t
            L.append(f"v_mfma_f32_16x16x32_bf16 {vr(d,4)}, {vr(f+16,4)}, {vr(f+4*t,4)}, " + ("0" if first else vr(d, 4)))
        for jj in range(4):
            for t in ((1, 0, 2, 3) if jj == 0 else (3, 2, 1, 0) if jj & 1 else (0, 1, 2, 3)):
                d = ACC + 16 * jj + 4 * t
                L.append(f"v_mfma_f32_16x16x32_bf16 {vr(d,4)}, {vr(f+20+4*jj,4)}, {vr(f+4*t,4)}, " + ("0" if first else vr(d, 4)))
        return L

    Q = R_Q; IDX = 8; C = R_C; O = R_O; S = R_S; KF = R_KF; VF = R_VF
    e.bar()
    stamp(e, 3)
    for l in reads(0, 0, 0):
        e(l)
    for kc in range(8):
        for s in range(2):
            e("s_waitcnt lgkmcnt(0)")
            per = 1
            if s == 0:
                rl = reads(kc, 1, 1)
                if kc == 7:
                    rl = rl + [f"s_mov_b32 s60, {WS_KN}", "buffer_load_dword v10, v3, s[48:51], s60 offen sc1"]
            elif kc < 7:
                e.bar()
                fs(e, 4 + kc)
                rl = reads(kc + 1, 0, 0)
            else:
                e.bar()
                rl = att_init()
                per = 2
            ml = mfmas(s, kc == 0 and s == 0)
            for i, m in enumerate(ml):
                e(m)
                for l in rl[per*i:per*i+per]:
                    e(l)
            for l in rl[per*len(ml):]:
                e(l)
        if kc == 3:
            cs(e, 4)
    cs(e, 5); f2(e, 3)
    e(f"v_cvt_pk_bf16_f32 v{Q}, v{QACC}, v{QACC+1}")
    e(f"v_cvt_pk_bf16_f32 v{Q+1}, v{QACC+2}, v{QACC+3}")
    e(f"v_cvt_pk_bf16_f32 v{Q+2}, v{QACC+4}, v{QACC+5}")
    e(f"v_cvt_pk_bf16_f32 v{Q+3}, v{QACC+6}, v{QACC+7}")
    KJ = int(os.environ.get("KJ", "1"))
    e("s_nop 1")
    e(f"v_permlane16_swap_b32 v{Q}, v{Q+2}")
    e(f"v_permlane16_swap_b32 v{Q+1}, v{Q+3}")
    red = Asm()
    allreduce(red, "v_max_f32", 10, 12, 0, 6)
    red = [l.strip() for l in red.lines]
    for j in range(2):
        G = ACC + 16 * j
        U = ACC + 32 + 16 * j
        for r in range(0, 16, 2):
            e(f"v_pk_mul_f32 {vr(G+r,2)}, {vr(G+r,2)}, s[64:65]")
        if j == KJ:
            f2(e, 4)
            e("s_waitcnt vmcnt(0)")
            f2(e, 5)
        for r in range(16):
            e(f"v_exp_f32 v{G+r}, v{G+r}")
            if j == KJ and r % 2 == 1:
                while red and red[0].startswith("s_nop"):
                    red.pop(0)
                if red:
                    e(red.pop(0))
                    if red and not red[0].startswith("s_nop"):
                        e(red.pop(0))
        for r in range(0, 16, 2):
            e(f"v_pk_add_f32 {vr(G+r,2)}, {vr(G+r,2)}, s[66:67]")
        for r in range(16):
            e(f"v_rcp_f32 v{G+r}, v{G+r}")
        for r in range(0, 16, 2):
            e(f"v_pk_mul_f32 {vr(G+r,2)}, {vr(G+r,2)}, {vr(U+r,2)}")
        for r in range(8):
            e(f"v_cvt_pk_bf16_f32 v{U+r}, v{G+2*r}, v{G+2*r+1}")
        for t in range(4):
            e(f"ds_write_b64 v{14 + (t >> 1)}, {vr(U+2*t,2)} offset:{j*1024 + (t & 1)*256}")
    assert not red, red
    nb_ffn = e.nbar
    e.label("QJOIN")
    e.nbar = 0
    cs(e, 6); f2(e, 6)
    for i in range(4):
        e(f"v_dot2c_f32_bf16 v11, v{Q+i}, v{Q+i}")
    e(f"v_mul_f32 v10, {fbits(1.04)}, v10")
    e("s_nop 1")
    allreduce(e, "v_add_f32", 11, 12, 5, 6)
    e("v_mul_f32 v11, v11, v10")
    e("v_sqrt_f32 v11, v11")
    e(f"s_mov_b32 s60, {fbits(SAFE_BOUND)}")
    e("v_cmp_nle_f32 vcc, v11, s60")
    e(f"v_sub_f32 v{C}, 0, v11")
    e(f"v_sub_f32 v{C+1}, 0, v11")
    for r in range(2, 16, 2):
        e(f"v_mov_b64 {vr(C+r,2)}, {vr(C,2)}")
    e("s_waitcnt lgkmcnt(0)")
    cs(e, 7); f2(e, 7)
    e.bar()
    e("s_cbranch_vccz ATT_GO")
    e("v_mov_b32 v11, 0xff800000")
    e("v_mov_b32 v12, v2")
    e("s_mov_b32 s60, 64")
    e.label("MAXLOOP")
    e(f"ds_read_b128 {vr(KF[0],4)}, v12")
    e("v_add_u32 v12, 0x800, v12")
    e("s_waitcnt lgkmcnt(0)")
    e(f"v_mfma_f32_32x32x16_bf16 {vr(S[0],16)}, {vr(KF[0],4)}, {vr(Q,4)}, 0")
    e("s_nop 15")
    for r in range(8):
        e(f"v_max3_f32 v11, v11, v{S[0]+2*r}, v{S[0]+2*r+1}")
    e("s_sub_u32 s60, s60, 1")
    e("s_cmp_lg_u32 s60, 0")
    e("s_cbranch_scc1 MAXLOOP")
    allreduce(e, "v_max_f32", 11, 12, 5, 6)
    for r in range(16):
        e(f"v_sub_f32 v{C+r}, 0, v11")
    e.label("ATT_GO")

    def laddr(t):
        return ("v13", t * 2048)
    def rdK(t, b):
        a, o = laddr(t)
        e(f"ds_read_b128 {vr(KF[b],4)}, {a} offset:{o}")
    def rdV(t, b):
        a, o = laddr(t)
        e("s_mov_b64 exec, s[40:41]")
        e(f"ds_read_b128 {vr(VF[b],4)}, {a} offset:{o+1024}")
        e(f"ds_read_b128 {vr(VF[b]+4,4)}, {a} offset:{o+1280}")
        e("s_mov_b64 exec, -1")
    def qk(t):
        e(f"v_mfma_f32_32x32x16_bf16 {vr(S[t & 1],16)}, {vr(KF[t & 3],4)}, {vr(Q,4)}, {vr(C,16)}")
    def sp(b, half):
        e(f"v_smfmac_f32_32x32x32_bf16 {vr(O,16)}, {vr(VF[b]+4*half,4)}, {vr(S[b]+8*half,8)}, v{IDX}")
    def ex(b, lo, hi):
        for r in range(lo, hi):
            e(f"v_exp_f32 v{S[b]+r}, v{S[b]+r}")

    rdK(0, 0)
    rdK(1, 1)
    rdV(0, 0)
    rdK(2, 2)
    rdK(3, 3)
    e("v_and_b32 v10, 31, v1")
    e("v_lshlrev_b32 v12, 2, v10")
    e("s_lshr_b32 s60, s96, 15")
    e("s_lshl_b32 s60, s60, 7")
    e(f"s_add_u32 s60, s60, {WS_G}")
    e("buffer_load_dword v163, v12, s[48:51], s60 offen sc1")
    cs(e, 8)
    e("s_waitcnt lgkmcnt(4)")
    qk(0)
    UN = int(os.environ.get("UN", "8"))
    e(f"s_mov_b32 s60, {64 // UN}")
    if "fake" in OPT:
        e("s_and_b32 s61, s2, 1")
        e("s_lshr_b32 s62, s30, 2")
        e("s_add_u32 s61, s61, s62")
        e("s_add_u32 s60, s60, 1")
        e("s_sub_u32 s60, s60, s61")
    PSW = int(os.environ.get("PSW", "1"))
    if PSW:
        e("s_setprio 1")
        e("s_mov_b32 s61, 99")
        e("s_cmp_ge_u32 s30, 4")
        e("s_cbranch_scc1 PRIO_SET")
        e("s_setprio 2")
        e(f"s_mov_b32 s61, {PSW}")
        e.label("PRIO_SET")
    e("s_nop 11")
    ex(0, 0, 2)
    e("s_branch ATT_ENTRY")
    e.raw(".p2align 6")
    e.label("ATT_LOOP")
    if PSW:
        e("s_cmp_lg_u32 s60, s61")
        e("s_cbranch_scc1 PRIO_KEEP")
        e("s_setprio 0")
        e.label("PRIO_KEEP")
    for t in range(UN):
        b = t & 1
        ex(b, 0, 2)
        sp(b ^ 1, 1)
        rdK(t + 3, (t + 3) & 3)
        if t == 0:
            e.label("ATT_ENTRY")
        ex(b, 2, 6)
        qk(t + 1)
        e("s_waitcnt lgkmcnt(1)")
        ex(b, 6, 11)
        sp(b, 0)
        rdV(t + 1, b ^ 1)
        if t == UN - 1:
            e(f"v_add_u32 v13, {UN * 2048}, v13")
            e("s_sub_u32 s60, s60, 1")
            e("s_cmp_lg_u32 s60, 0")
        ex(b, 11, 16)
    e("s_cbranch_scc1 ATT_LOOP")
    e("s_waitcnt lgkmcnt(0)")
    e("s_nop 1")
    sp(1, 1)
    OB = 96
    WOB = 80
    PB = 16
    e("s_lshl_b32 s34, s76, 1")
    e("s_and_b32 s61, s30, 1")
    e("s_add_u32 s34, s34, s61")
    e("s_lshl_b32 s63, s34, 15")
    e(f"s_add_u32 s34, s63, {WS_OF + 1024}")
    e("s_lshl_b32 s61, s77, 7")
    e("s_add_u32 s63, s63, s61")
    e("s_and_b32 s61, s30, 2")
    e("s_lshl_b32 s61, s61, 5")
    e("s_add_u32 s63, s63, s61")
    e(f"s_add_u32 s62, s96, {WS_OF}")
    e("s_waitcnt vmcnt(0)")
    e("s_nop 1")
    cs(e, 9)
    if "one1" in OPT:
        e(f"v_mov_b32 v12, v{O+8}")
        e("s_nop 1")
        e(f"v_permlane32_swap_b32 v{O+8}, v12")
        e("s_nop 1")
    e(f"v_rcp_f32 v11, v{O+8}")
    e("s_nop 0")
    e("v_mul_f32 v11, v11, v163")
    for r in range(8):
        e(f"v_mul_f32 v{O+r}, v{O+r}, v11")
    for r in range(4):
        e(f"v_cvt_pk_bf16_f32 v{164+r}, v{O+2*r}, v{O+2*r+1}")
    e("buffer_store_dwordx4 v[164:167], v2, s[48:51], s62 offen sc1")
    e("s_cmp_lt_u32 s30, 4")
    e("s_cbranch_scc1 FINISH")
    e("s_barrier")
    e("s_barrier")
    e("s_branch A_DONE")
    e.label("FINISH")

    def oload(g):
        for i in range(4):
            e(f"s_add_u32 s60, s34, {(g + 4 * i) * 2048}")
            e(f"buffer_load_dwordx4 {vr(OB+16*g+4*i,4)}, v2, s[48:51], s60 offen sc1")
    WO = 32
    tr_addr128(e, 161, 162, 11, 12)
    e("s_and_b32 s60, s30, 2")
    e("s_lshl_b32 s60, s60, 5")
    e("v_xor_b32 v161, s60, v161")
    e(f"v_add_u32 v161, {WD_BASE}, v161")
    e("v_lshrrev_b32 v11, 5, v1")
    e("v_lshlrev_b32 v10, 10, v10")
    e("v_lshl_add_u32 v10, v11, 4, v10")
    e("s_lshl_b32 s60, s30, 12")
    e("v_add_u32 v6, s60, v2")
    e("s_mov_b32 s35, 15")
    e("s_setprio 3")
    e.bar()
    pass
    for g in range(2):
        oload(g)
    e.bar()
    pass
    for p in range(4):
        for jq in range(4):
            e(f"ds_read_b128 {vr(PB+16*p+4*jq,4)}, v6 offset:{p*16384 + jq*1024}")
    def wread(f):
        k = (f >> 2) + 4 * (f & 3)
        for rho in range(2):
            e(f"ds_read_b64_tr_b16 {vr(WO+4*f+2*rho,2)}, v161 offset:{k*2048 + rho*1024}")
    for g in range(2, 4):
        oload(g)
    e("s_waitcnt lgkmcnt(0)")
    for f in range(12, 16):
        wread(f)
    for r in range(0, 16, 2):
        e(f"v_pk_add_f32 {vr(PB+r,2)}, {vr(PB+r,2)}, {vr(PB+16+r,2)}")
    for f in range(0, 4):
        wread(f)
    for r in range(0, 16, 2):
        e(f"v_pk_add_f32 {vr(PB+r,2)}, {vr(PB+r,2)}, {vr(PB+32+r,2)}")
    for f in range(4, 8):
        wread(f)
    for r in range(0, 16, 2):
        e(f"v_pk_add_f32 {vr(PB+r,2)}, {vr(PB+r,2)}, {vr(PB+48+r,2)}")
    for f in range(8, 12):
        wread(f)
    pass

    def ogroup(g, tag):
        o = OB + 16 * g
        e(f"v_max_u32 v11, v{o}, v{o+1}")
        for r in range(1, 8):
            e(f"v_max3_u32 v11, v11, v{o+2*r}, v{o+2*r+1}")
        e("v_cmp_eq_u32 vcc, -1, v11")
        e("s_cmp_eq_u32 s100, 0")
        e(f"s_cbranch_scc1 OGO{tag}")
        e("s_nop 2")
        e(f"s_cbranch_vccnz ONEXT{tag}")
        e.label(f"OGO{tag}")
        for i in range(4):
            e(f"v_mfma_f32_32x32x16_bf16 {vr(PB,16)}, {vr(WO+16*g+4*i,4)}, {vr(o+4*i,4)}, {vr(PB,16)}")
        e(f"s_bitset0_b32 s35, {g}")
        e.label(f"ONEXT{tag}")
    e("s_waitcnt lgkmcnt(0)")
    for g in range(4):
        e(f"s_waitcnt vmcnt({12 - 4 * g})")
        ogroup(g, f"A{g}")
    e("s_cmp_eq_u32 s35, 0")
    e("s_cbranch_scc1 ODONE")
    e.label("OLOOP")
    e("s_sub_u32 s100, s100, 1")
    for g in range(4):
        e(f"s_bitcmp0_b32 s35, {g}")
        e(f"s_cbranch_scc1 OSK{g}")
        oload(g)
        e.label(f"OSK{g}")
    e("s_waitcnt vmcnt(0)")
    for g in range(4):
        e(f"s_bitcmp0_b32 s35, {g}")
        e(f"s_cbranch_scc1 ONEXTB{g}")
        ogroup(g, f"B{g}")
    e("s_cmp_lg_u32 s35, 0")
    e("s_cbranch_scc1 OLOOP")
    e.label("ODONE")
    cs(e, 10)
    e("s_nop 11")
    for r in range(8):
        e(f"v_cvt_pk_bf16_f32 v{32+r}, v{PB+2*r}, v{PB+2*r+1}")
    e("s_nop 1")
    e("v_permlane32_swap_b32 v32, v34")
    e("v_permlane32_swap_b32 v33, v35")
    e("v_permlane32_swap_b32 v36, v38")
    e("v_permlane32_swap_b32 v37, v39")
    ost = os.environ.get("OST", "")
    e(f"buffer_store_dwordx4 v[32:35], v10, s[52:55], s63 offen {ost}")
    e(f"buffer_store_dwordx4 v[36:39], v10, s[52:55], s63 offen offset:32 {ost}")
    e.label("A_DONE")
    stamp(e, 11)
    if STAMP:
        e("s_waitcnt vmcnt(0)")
    stamp(e, 12); stamp(e, 13, True)
    stamp_flush(e, 14)
    e.label("K_END")
    e("s_endpgm")
    return nb_ffn, e.nbar


def kd(name, vgpr, sgpr=102):
    acc = (vgpr + 3) // 4 * 4
    return f""".p2align 6
.amdhsa_kernel {name}
  .amdhsa_next_free_vgpr {vgpr}
  .amdhsa_next_free_sgpr {sgpr}
  .amdhsa_accum_offset {acc}
  .amdhsa_group_segment_fixed_size 0
  .amdhsa_kernarg_size 104
  .amdhsa_user_sgpr_count 2
  .amdhsa_user_sgpr_kernarg_segment_ptr 1
  .amdhsa_system_sgpr_workgroup_id_x 1
.end_amdhsa_kernel
"""


def main(out):
    ref = open(f"cdna_kernels/{NAME}.s.ref").read().split("\n")
    hdr = [l for l in ref if l.startswith(";") and "@launch" not in l and "Override" not in l and "grid=ceil" not in l]
    e = Asm()
    prologue(e)
    sp_start(e)
    n1 = loader(e)
    n2 = service(e)
    n3 = down(e)
    nf, nc = compute(e)
    n5 = sp_helper(e)
    n6 = sp_compute(e)
    e.label("CODE_END")
    assert n1 == n2 and n1 + n3 == nf + nc and n5 + n3 == n6 + nc, (n1, n2, n3, nf, nc, n5, n6)
    s = "\n".join(hdr) + "\n"
    s += f"; @launch grid=(256,1,1) block=(768,1,1) lds={LDS_TOTAL}\n"
    s += """; Design notes (one launch, 256 workgroups x 12 waves, one per CU, generated by my own script):
"""
    s += '.amdgcn_target "amdgcn-amd-amdhsa--gfx950"\n.text\n'
    s += e.text()
    s += '.section .rodata,"a"\n'
    s += kd(NAME + "_kernel", 168)
    open(out, "w").write(s)


if __name__ == "__main__":
    main(sys.argv[1] if len(sys.argv) > 1 else f"cdna_kernels/{NAME}.s")
```

```python
import sys, os, struct

NAME = "gated_mix__grouped_kv_mqa__glu_gated_glu__prompt"

WS_OF = 2 << 20
WS_KV = 4 << 20
WS_KN = WS_KV + 131072
WS_G = WS_KN + 4096
WS_FL = WS_G + 8192
WS_HF = 8 << 20
WS_ST = 15 << 20
WS_SIZE = 16 << 20
OOB = 0x7f000000

LOG2E = 1.4426950408889634
STAMP = os.environ.get("STAMP", "0") == "1"
OPT = set(os.environ.get("OPT", "").split(","))
FINE = "fine" in OPT
FINE2 = "fine2" in OPT


def fbits(x):
    return "0x%08x" % struct.unpack("<I", struct.pack("<f", x))[0]


class Asm:
    def __init__(self):
        self.lines = []
        self.vm = []
        self.uid = 0
        self.nbar = 0
    def __call__(self, s):
        self.lines.append("    " + s)
    def label(self, s):
        self.lines.append(s + ":")
    def raw(self, s):
        self.lines.append(s)
    def vmem(self, s, tag):
        self(s)
        self.vm.append(tag)
    def wait_vm(self, tag):
        idxs = [i for i, t in enumerate(self.vm) if t == tag]
        if not idxs:
            return
        idx = max(idxs)
        n = len(self.vm) - 1 - idx
        assert n <= 63
        self(f"s_waitcnt vmcnt({n})")
        self.vm = self.vm[idx + 1:]
    def wait_all(self):
        self("s_waitcnt vmcnt(0)")
        self.vm = []
    def bar(self):
        self("s_barrier")
        self.nbar += 1
    def newlabel(self, p):
        self.uid += 1
        return f"{p}_{self.uid}"
    def text(self):
        return "\n".join(self.lines) + "\n"


def stamp(e, i, real=False):
    if not STAMP:
        return
    if "amp" in OPT:
        if i not in (1, int(os.environ["AMP"])):
            return
        real = True
    if "rt" in OPT:
        real = True
    e(("s_memrealtime" if real else "s_memtime") + " s[78:79]")
    e("s_waitcnt lgkmcnt(0)")
    e(f"s_mov_b32 s{80+i}, s78")


def cs(e, i):
    if not FINE and not (FINE2 and i in (4, 5, 6, 7)):
        stamp(e, i)


def f2(e, i):
    if FINE2:
        stamp(e, i)


def fs(e, i):
    if FINE:
        stamp(e, i)


def stamp_flush(e, n):
    if not STAMP:
        return
    e("s_getreg_b32 s94, hwreg(HW_REG_XCC_ID)")
    n += 1
    if "amp" in OPT:
        lab, lp = e.newlabel("AMPS"), e.newlabel("AMPL")
        i = int(os.environ["AMP"])
        e(f"s_cmp_lg_u32 s30, {int(os.environ.get('DBGW', '4'))}")
        e(f"s_cbranch_scc1 {lab}")
        e(("s_cmp_lt_u32" if "dbgsp" in OPT else "s_cmp_ge_u32") + " s56, 14")
        e(f"s_cbranch_scc1 {lab}")
        e(f"s_sub_u32 s60, s{80+i}, s81")
        e("s_mul_i32 s60, s60, 10")
        e("s_memrealtime s[62:63]")
        e("s_waitcnt lgkmcnt(0)")
        e.label(lp)
        e("s_memrealtime s[78:79]")
        e("s_waitcnt lgkmcnt(0)")
        e("s_sub_u32 s61, s78, s62")
        e("s_cmp_lt_u32 s61, s60")
        e(f"s_cbranch_scc1 {lp}")
        e.label(lab)
        return
    if "dbg" in OPT:
        lab = e.newlabel("DBGS")
        lo = int(os.environ.get("DBGW", "4"))
        e(f"s_sub_u32 s78, s30, {lo}")
        e("s_cmp_ge_u32 s78, 4")
        e(f"s_cbranch_scc1 {lab}")
        e(("s_cmp_lt_u32" if "dbgsp" in OPT else "s_cmp_ge_u32") + " s56, 14")
        e(f"s_cbranch_scc1 {lab}")
        srd(e, 72, 26, 256)
        e("v_mov_b32 v0, 0")
        e("s_mov_b64 exec, 1")
        for i in range(2, 13):
            e(f"s_sub_u32 s78, s{80+i}, s81")
            e("v_mov_b32 v1, s78")
            e(f"buffer_atomic_umax v1, v0, s[72:75], 0 offen offset:{4*i}")
        e("s_sub_u32 s78, s93, s80")
        e("v_mov_b32 v1, s78")
        e(f"buffer_atomic_umax v1, v0, s[72:75], 0 offen offset:52")
        e("s_mov_b64 exec, -1")
        e.label(lab)
        return
    e("s_lshl_b32 s78, s2, 4")
    e("s_add_u32 s78, s78, s30")
    e("s_lshl_b32 s78, s78, 6")
    e(f"s_add_u32 s78, s78, {WS_ST}")
    e("v_mov_b32 v0, 0")
    e("s_mov_b64 exec, 1")
    for i in range(n):
        e(f"v_mov_b32 v1, s{80+i}")
        e(f"buffer_store_dword v1, v0, s[48:51], s78 offen offset:{4*i}")
    e("s_mov_b64 exec, -1")


def vr(a, n=1):
    return f"v{a}" if n == 1 else f"v[{a}:{a+n-1}]"


def srd(e, d, base, size):
    e(f"s_mov_b32 s{d}, s{base}")
    e(f"s_mov_b32 s{d+1}, s{base+1}")
    e(f"s_mov_b32 s{d+2}, {size}")
    e(f"s_mov_b32 s{d+3}, 0x00020000")


def allreduce(e, op, x, t, lo=0, hi=6):
    dpp = ["quad_perm:[1,0,3,2]", "quad_perm:[2,3,0,1]", "row_half_mirror", "row_mirror"]
    for b in range(lo, min(hi, 4)):
        e("s_nop 1")
        e(f"{op}_dpp v{x}, v{x}, v{x} {dpp[b]} row_mask:0xf bank_mask:0xf")
    for b, ins in ((4, "v_permlane16_swap_b32"), (5, "v_permlane32_swap_b32")):
        if lo <= b < hi:
            e(f"v_mov_b32 v{t}, v{x}")
            e("s_nop 1")
            e(f"{ins} v{x}, v{t}")
            e("s_nop 1")
            e(f"{op} v{x}, v{x}, v{t}")


X_ST = 16384
W_BASE = 3 * X_ST
QS_BASE = 32768
X_BASE = [0, 16384, 147456]
LDS_TOTAL = 163840
def stage(kc):
    return (kc + 1) % 3
SAFE_BOUND = 48.0
WD_BASE = 131072
NBW = 4


def spin_guard(e, done):
    e("s_cmp_eq_u32 s100, 0")
    e(f"s_cbranch_scc1 {done}")
    e("s_sub_u32 s100, s100, 1")


def spin(e, load, check, sleep, preloaded=False):
    lo, chk, done = e.newlabel("SPIN"), e.newlabel("SPINC"), e.newlabel("SPIND")
    if preloaded:
        e(f"s_branch {chk}")
    e.label(lo)
    load()
    e.label(chk)
    e.wait_all()
    check()
    e("s_nop 4")
    e(f"s_cbranch_vccz {done}")
    spin_guard(e, done)
    e(f"s_sleep {sleep}")
    e(f"s_branch {lo}")
    e.label(done)


def tr_addr128(e, d0, d1, t0, t1):
    e(f"v_bfe_u32 v{t0}, v1, 2, 2")
    e(f"v_lshrrev_b32 v{t1}, 5, v1")
    e(f"v_lshl_add_u32 v{d0}, v{t1}, 2, v{t0}")
    e(f"v_lshlrev_b32 v{d0}, 7, v{d0}")
    e(f"v_bfe_u32 v{t1}, v1, 4, 1")
    e(f"v_lshl_add_u32 v{d0}, v{t1}, 5, v{d0}")
    e(f"v_and_b32 v{t1}, 3, v1")
    e(f"v_lshl_add_u32 v{d0}, v{t1}, 3, v{d0}")
    e(f"v_bfe_u32 v{t1}, v1, 3, 1")
    e(f"v_lshlrev_b32 v{t1}, 6, v{t1}")
    e(f"v_add_u32 v{d0}, v{d0}, v{t1}")
    e(f"v_xor_b32 v{d1}, 64, v{d0}")


def dma_voff128(e, d, t0, t1):
    e(f"v_lshrrev_b32 v{t0}, 3, v1")
    e(f"v_bfe_u32 v{t1}, v1, 4, 1")
    e(f"v_lshlrev_b32 v{t1}, 2, v{t1}")
    e(f"v_and_b32 v{d}, 7, v1")
    e(f"v_xor_b32 v{d}, v{d}, v{t1}")
    e(f"v_lshlrev_b32 v{d}, 4, v{d}")
    e(f"v_lshl_add_u32 v{d}, v{t0}, 10, v{d}")


def prologue(e):
    n = NAME + "_kernel"
    e.raw(f".globl {n}\n.p2align 8\n.type {n},@function\n{n}:")
    e("s_cmp_ge_u32 s2, 256")
    e("s_cbranch_scc1 K_END")
    stamp(e, 0, True); stamp(e, 1)
    e("s_load_dwordx16 s[4:19], s[0:1], 0")
    e("s_load_dwordx8 s[20:27], s[0:1], 64")
    e("s_load_dwordx2 s[28:29], s[0:1], 96")
    e("s_mov_b32 s100, %d" % (0 if "nospin" in OPT else 0x20000))
    e("v_lshrrev_b32 v2, 6, v0")
    e("v_and_b32 v1, 63, v0")
    e("v_readfirstlane_b32 s30, v2")
    e("v_lshlrev_b32 v2, 4, v1")
    e("v_lshlrev_b32 v3, 2, v1")
    e("v_lshrrev_b32 v6, 4, v1")
    e("s_and_b32 s57, s2, 7")
    if "spread" not in OPT:
        e("s_lshr_b32 s60, s57, 2")
        e("s_and_b32 s61, s57, 1")
        if "evensp" in OPT:
            e("s_xor_b32 s61, s61, 1")
        e("s_lshl_b32 s61, s61, 2")
        e("s_and_b32 s57, s57, 2")
        e("s_or_b32 s57, s57, s60")
        e("s_or_b32 s57, s57, s61")
    e("s_lshr_b32 s59, s2, 3")
    e("s_and_b32 s94, s59, 7")
    e("s_lshr_b32 s95, s59, 3")
    e("s_and_b32 s31, s57, 1")
    e("s_lshl_b32 s31, s31, 3")
    e("s_add_u32 s31, s31, s94")
    e("s_lshr_b32 s56, s57, 1")
    e("s_xor_b32 s60, s95, 3")
    e("s_lshl_b32 s60, s60, 2")
    e("s_add_u32 s56, s56, s60")
    if "spread" in OPT:
        e("s_and_b32 s60, s59, 25")
        e("s_cmp_eq_u32 s60, 1")
        e("s_cselect_b32 s60, 2, 0")
        e("s_xor_b32 s56, s56, s60")
    if "oldi2" in OPT:
        e("s_and_b32 s76, s57, 3")
        e("s_lshl_b32 s76, s76, 3")
    else:
        e("s_andn2_b32 s76, 1, s57")
        e("s_lshl_b32 s76, s76, 4")
        e("s_and_b32 s60, s57, 2")
        e("s_lshl_b32 s60, s60, 2")
        e("s_add_u32 s76, s76, s60")
    e("s_add_u32 s76, s76, s94")
    e("s_lshr_b32 s77, s57, 2")
    e("s_lshl_b32 s77, s77, 2")
    e("s_add_u32 s77, s77, s95")
    e("s_sub_u32 s3, s30, 8")
    rot = os.environ.get("ROT", "8")
    e("s_lshl_b32 s58, s95, 1")
    e("s_add_u32 s58, s58, s94")
    if rot == "4":
        e("s_and_b32 s58, s58, 6")
    elif rot == "2":
        e("s_add_u32 s58, s94, s95")
        e("s_and_b32 s58, s58, 1")
        e("s_lshl_b32 s58, s58, 2")
    elif rot == "1":
        e("s_mov_b32 s58, 0")
    e("s_cmp_ge_u32 s56, 14")
    e("s_cbranch_scc1 SP_START")
    e("s_cmp_lt_u32 s30, 8")
    e("s_cbranch_scc1 COMPUTE")
    e("s_cmp_eq_u32 s3, 3")
    e("s_cbranch_scc1 SERVICE")
    e("s_branch LOADER")


def x_dma_voff(e):
    e("v_and_b32 v8, 7, v1")
    e("v_xor_b32 v7, v6, v8")
    e("v_lshrrev_b32 v8, 3, v1")
    e("v_lshlrev_b32 v8, 10, v8")
    e("v_lshl_add_u32 v4, v7, 4, v8")
    e("v_xor_b32 v5, 64, v4")


def kv_piece(e, tab):
    e(f"s_mov_b32 s59, {sum(t << (8 * i) for i, t in enumerate(tab)):#x}")
    e("s_lshl_b32 s62, s3, 3")
    e("s_lshr_b32 s59, s59, s62")
    e("s_and_b32 s59, s59, 15")
    e("s_add_u32 s62, s59, s94")
    e("s_and_b32 s62, s62, 7")
    e("s_lshl_b32 s62, s62, 14")
    e(f"s_add_u32 s62, s62, {WS_KV}")
    e("s_lshl_b32 s59, s59, 14")
    for n in range(16):
        if n % 4 == 0:
            e(f"s_add_u32 m0, s59, {n * 1024}")
            e(f"s_add_u32 s64, s62, {n * 1024}")
        e.vmem(f"buffer_load_dwordx4 v2, s[48:51], s64 offen offset:{(n & 3) * 1024} sc1 lds", "kvl")


def cnt_spin(e, which):
    e("v_mov_b32 v17, 0")
    spin(e, lambda: e(f"buffer_load_dword v20, v17, s[72:75], 0 offen offset:{128 + 64 * which} sc1"),
         lambda: e("v_cmp_eq_u32 vcc, 0, v20"), 4)


def cnt_arrive(e, which):
    lab = e.newlabel("ARR")
    e("v_mov_b32 v21, 1")
    e("v_mov_b32 v17, 0")
    e("s_mov_b64 exec, 1")
    e(f"buffer_atomic_add v21, v17, s[72:75], 0 offen offset:{64 * which} sc0 sc1")
    e("s_waitcnt vmcnt(0)")
    e("v_readfirstlane_b32 s60, v21")
    e("s_nop 3")
    e("s_cmp_lt_u32 s60, 31")
    e(f"s_cbranch_scc1 {lab}")
    e(f"buffer_store_dword v21, v17, s[72:75], 0 offen offset:{128 + 64 * which} sc1")
    e.label(lab)
    e("s_mov_b64 exec, -1")


def loader(e):
    e.label("LOADER")
    e.vm = []
    e.nbar = 0
    e("s_lshl_b32 s63, s56, 8")
    e("v_mul_u32_u24 v8, 3584, v6")
    e("v_lshlrev_b32 v7, 1, v6")
    e("v_and_b32 v10, 15, v1")
    e("v_xor_b32 v7, v7, v10")
    e("v_lshl_add_u32 v4, v7, 4, v8")
    e("v_mov_b32 v5, v4")
    e("v_xor_b32 v7, 8, v7")
    e("v_lshl_add_u32 v9, v7, 4, v8")
    e("v_mov_b32 v10, v9")
    e(f"s_mov_b32 s65, {4 * 3584}")
    e(f"s_mov_b32 s66, {64 * 3584}")
    e("s_lshl_b32 s67, s3, 14")
    e(f"s_add_u32 s67, s67, {W_BASE - 16384}")
    e("s_add_u32 s69, s67, 32768")
    e("s_add_u32 s70, s69, 32768")
    e("s_mov_b32 s34, %d" % (512 * 3584))
    e("s_cmp_lg_u32 s3, 0")
    e("s_cbranch_scc1 LD_W")
    x_dma_voff(e)
    e("v_mov_b32 v9, v4")
    e("v_mov_b32 v10, v5")
    e("s_lshl_b32 s63, s31, 17")
    e("s_mov_b32 s65, 8192")
    e("s_mov_b32 s66, 128")
    e("s_mov_b32 s67, 0")
    e(f"s_mov_b32 s69, {X_BASE[1]}")
    e(f"s_mov_b32 s70, {X_BASE[2]}")
    e("s_mov_b32 s34, %d" % (2048 * 1024))
    e.label("LD_W")
    e("s_mov_b32 s35, 0x00020000")
    e("s_waitcnt lgkmcnt(0)")
    stamp(e, 2)
    e("s_cmp_eq_u32 s3, 1")
    e("s_cselect_b32 s32, s16, s18")
    e("s_cselect_b32 s33, s17, s19")
    e("s_cmp_eq_u32 s3, 0")
    e("s_cselect_b32 s32, s4, s32")
    e("s_cselect_b32 s33, s5, s33")

    def dma(kc, n0=0, n1=16):
        sb = (67, 69, 70)[stage(kc)]
        so = 60 + (kc & 1)
        if n0 == 0:
            e(f"s_add_u32 s59, s58, {kc}")
            e("s_and_b32 s59, s59, 7")
            e(f"s_mul_i32 s{so}, s66, s59")
            e(f"s_add_u32 s{so}, s{so}, s63")
        for n in range(n0, n1):
            e(f"s_add_u32 m0, s{sb}, {n * 1024}")
            if n > 0:
                e(f"s_add_u32 s{so}, s{so}, s65")
            else:
                e("s_nop 0")
            nt = "nt " if kc < int(os.environ.get("NT", "0")) else ""
            e.vmem(f"buffer_load_dwordx4 v{(4, 5, 9, 10)[n & 3]}, s[32:35], s{so} offen {nt}lds", f"c{kc}")

    LA = int(os.environ.get("LA", "11"))
    if "st8" in OPT:
        dma(0, 0, 8)
        stamp(e, 10)
        dma(0, 8, 16)
    else:
        dma(0)
    dma(1, 0, LA)
    srd(e, 48, 28, WS_SIZE)
    e.wait_vm("c0")
    e.bar()
    stamp(e, 3)
    for kc in range(7):
        dma(kc + 1, LA, 16)
        if kc + 2 < 8:
            dma(kc + 2, 0, LA)
        if kc == 6 and "late" not in OPT:
            kv_piece(e, (0, 3, 4))
        e.wait_vm(f"c{kc+1}")
        fs(e, 4 + kc)
        e.bar()
        if kc == 3:
            cs(e, 4)
    kv_piece(e, (1, 5, 6))
    e.bar()
    cs(e, 5)
    if "late" in OPT:
        kv_piece(e, (0, 3, 4))
    e("s_cmp_eq_u32 s3, 2")
    e("s_cbranch_scc1 KVP_SKIP")
    kv_piece(e, (7, 2, 2))
    e.label("KVP_SKIP")
    e.wait_all()
    cs(e, 6)
    e.bar()
    cs(e, 7)
    e("s_branch DOWN")
    return e.nbar


def wq_voff(e):
    e("v_lshrrev_b32 v7, 2, v1")
    e("v_and_b32 v8, 3, v1")
    e("v_lshlrev_b32 v8, 4, v8")
    e("v_lshl_add_u32 v4, v7, 10, v8")
    e("v_and_b32 v7, 32, v1")
    e("v_xor_b32 v4, v4, v7")


def service(e):
    e.label("SERVICE")
    e.vm = []
    e.nbar = 0
    wq_voff(e)
    e("s_lshl_b32 s63, s56, 6")
    e("s_waitcnt lgkmcnt(0)")
    stamp(e, 2)
    srd(e, 32, 6, 512 * 1024)

    def dma(kc):
        e(f"s_add_u32 s59, s58, {kc}")
        e("s_and_b32 s59, s59, 7")
        e("s_lshl_b32 s60, s59, 16")
        e("s_add_u32 s60, s60, s63")
        for n in range(4):
            e(f"s_mov_b32 m0, {QS_BASE + stage(kc) * 4096 + n * 1024}")
            e("s_add_u32 s60, s60, 16384" if n else "s_nop 0")
            e.vmem("buffer_load_dwordx4 v4, s[32:35], s60 offen lds", f"c{kc}")
    dma(0)
    dma(1)
    srd(e, 48, 28, WS_SIZE)
    srd(e, 72, 26, 0 if "noflag" in OPT else 256)
    e.wait_vm("c0")
    e.bar()
    stamp(e, 3)
    for kc in range(7):
        if kc + 2 < 8:
            dma(kc + 2)
        if kc == (6 if "late" in OPT else 5):
            cnt_spin(e, 0)
        e.wait_vm(f"c{kc+1}")
        fs(e, 4 + kc)
        e.bar()
        if kc == 3:
            cs(e, 4)
    e.bar()
    cs(e, 5)
    cnt_spin(e, 1)
    cs(e, 6)
    e.bar()
    cs(e, 7)
    return e.nbar


def down(e):
    e.label("DOWN")
    e.vm = []
    e.nbar = 0
    srd(e, 44, 20, 1792 * 1024)
    e("s_mul_i32 s32, s76, 224")
    e("s_mul_i32 s60, s3, 28")
    e("s_add_u32 s32, s32, s60")
    e("s_lshl_b32 s32, s32, 10")
    e(f"s_add_u32 s32, s32, {WS_HF}")
    e(f"s_add_u32 s33, s32, {112*1024}")
    e("s_lshl_b32 s36, s60, 14")
    e("s_lshl_b32 s61, s77, 7")
    e("s_add_u32 s36, s36, s61")
    e(f"s_mul_i32 s37, s3, {NBW * 2048}")
    e(f"s_add_u32 s37, s37, {WD_BASE}")
    e("s_setprio 3")
    dma_voff128(e, 4, 7, 8)
    tr_addr128(e, 9, 10, 7, 8)
    e("v_add_u32 v9, s37, v9")
    e("v_add_u32 v10, s37, v10")
    e("s_lshl_b32 s62, s76, 9")
    e("s_lshl_b32 s60, s3, 7")
    e("s_add_u32 s62, s62, s60")
    e(f"s_add_u32 s62, s62, {WS_FL}")
    DAC = 24
    WB = 88
    HB = 104
    WE = 136
    srd(e, 40, 12, 512 * 1024)
    e("s_lshl_b32 s38, s3, 17")
    e("s_add_u32 s38, s38, s61")
    e("s_lshl_b32 s39, s95, 1")
    e("s_add_u32 s39, s39, s94")
    e("s_cmp_ge_u32 s39, 7")
    e("s_cselect_b32 s60, 7, 0")
    e("s_sub_u32 s39, s39, s60")
    if "nodrot" in OPT:
        e("s_mov_b32 s39, 0")

    def group(reg_w, reg_h):
        if reg_w:
            e("s_lshl_b32 s67, s39, 16")
            e("s_add_u32 s67, s67, s36")
        if reg_h:
            e("s_lshl_b32 s60, s39, 12")
            e("s_add_u32 s68, s60, s32")
            e("s_add_u32 s69, s60, s33")
            e("s_add_u32 s39, s39, 1")
            e("s_cmp_eq_u32 s39, 7")
            e("s_cselect_b32 s39, 0, s39")
    def wload(ks):
        if "dnoload" in OPT and ks >= 4: return
        for u in range(2):
            e(f"s_add_u32 m0, s37, {(ks % NBW) * 2048 + u * 1024}")
            e(f"s_add_u32 s60, s67, {(ks & 3) * 16384 + u * 8192}")
            e.vmem("buffer_load_dwordx4 v4, s[44:47], s60 offen lds", f"w{ks}")
    def woload(j, par, tag):
        for u in range(2):
            e(f"s_add_u32 m0, s37, {j * 2048 + u * 1024}")
            e(f"s_add_u32 s60, s38, {(2 * j + par) * 16384 + u * 8192}")
            e.vmem("buffer_load_dwordx4 v4, s[40:43], s60 offen lds", tag)
    def hload(ks):
        if "dnoload" in OPT and ks >= 4: return
        f = HB + 8 * (ks & 3)
        for t in range(2):
            e.vmem(f"buffer_load_dwordx4 {vr(f+4*t,4)}, v2, s[48:51], s{68+t} offen offset:{(ks & 3) * 1024} sc1", f"h{ks}")
    def wread(f, slot):
        for m in range(2):
            for rho in range(2):
                e(f"ds_read_b64_tr_b16 {vr(f+4*m+2*rho,2)}, v{9+m} offset:{slot * 2048 + rho * 1024}")

    e("s_cmp_ge_u32 s56, 14")
    e("s_cbranch_scc1 H_SKIP")
    e("v_add_u32 v7, s37, v2")
    for n in range(8):
        e(f"ds_read_b128 {vr(HB+4*n,4)}, v7 offset:{n*1024}")
    e("s_lshl_b32 s64, s31, 2")
    e("s_and_b32 s60, s3, 2")
    e("s_add_u32 s64, s64, s60")
    e("s_mul_i32 s64, s64, 112")
    e("s_lshl_b32 s60, s56, 1")
    e("s_and_b32 s61, s3, 1")
    e("s_add_u32 s66, s60, s61")
    e("s_lshl_b32 s60, s66, 2")
    e("s_add_u32 s64, s64, s60")
    e("s_lshl_b32 s64, s64, 10")
    e(f"s_add_u32 s64, s64, {WS_HF}")
    e(f"s_add_u32 s65, s64, {112*1024}")
    e("s_mul_i32 s60, s66, 37")
    e("s_lshr_b32 s60, s60, 8")
    e("s_mul_i32 s61, s60, 25")
    e("s_add_u32 s66, s66, s61")
    e("s_lshl_b32 s66, s66, 2")
    e("s_lshl_b32 s60, s31, 10")
    e("s_add_u32 s66, s66, s60")
    e("s_and_b32 s60, s3, 2")
    e("s_lshl_b32 s60, s60, 8")
    e("s_add_u32 s66, s66, s60")
    e(f"s_add_u32 s66, s66, {WS_FL}")
    e("s_waitcnt lgkmcnt(0)")
    for n in range(8):
        u, t, k = n >> 2, (n >> 1) & 1, n & 1
        e(f"buffer_store_dwordx4 {vr(HB+4*n,4)}, v2, s[48:51], s{64+t} offen offset:{(2*u+k)*1024} sc1")
        HT = int(os.environ.get("HT", "63"))
        if HT < 63:
            e(f"s_waitcnt vmcnt({HT})")
    f2(e, 4)
    e("v_mov_b32 v12, 1")
    e("v_mov_b32 v11, 0")
    e("s_waitcnt vmcnt(0)")
    f2(e, 5)
    e("s_mov_b64 exec, 1")
    e("buffer_store_dword v12, v11, s[48:51], s66 offen sc1")
    e("s_mov_b64 exec, -1")
    e.label("H_SKIP")
    f2(e, 6); f2(e, 7)
    for j in range(4):
        woload(j, 0, "we")
    e("v_and_b32 v7, 31, v1")
    e("v_lshlrev_b32 v7, 2, v7")
    e("s_lshl_b32 s60, s76, 8")
    e(f"s_add_u32 s60, s60, {WS_G}")
    e("buffer_load_dword v14, v7, s[48:51], s60 offen sc1")
    e("buffer_load_dword v16, v7, s[48:51], s60 offen offset:128 sc1")
    e.wait_all()
    for j in range(4):
        wread(WE + 8 * j, j)
    e("v_sub_f32 v14, 1.0, v14")
    e("v_sub_f32 v16, 1.0, v16")
    e("v_mov_b32 v15, v14")
    e("v_mov_b32 v17, v16")
    e("s_waitcnt lgkmcnt(0)")
    group(True, False)
    for ks in range(NBW):
        wload(ks)

    def fl_ld():
        e("s_mov_b64 exec, 0x7f")
        e("buffer_load_dword v20, v3, s[48:51], s62 offen sc1")
        e("s_mov_b64 exec, -1")
    def fl_ck():
        e("s_mov_b64 exec, 0x7f")
        e("v_cmp_ne_u32 vcc, 1, v20")
        e("s_mov_b64 exec, -1")
    for _ in range(int(os.environ.get("DLY", "0"))):
        e("s_sleep 16")
    spin(e, fl_ld, fl_ck, 16)
    e("s_setprio %s" % os.environ.get("HP", "0"))
    cs(e, 8)
    group(False, True)
    for ks in range(4):
        hload(ks)
    wread(WB, 0)
    for ks in range(28):
        e("s_waitcnt lgkmcnt(0)")
        if ks % 4 == 0 and ks + 4 < 28:
            group(True, True)
        if ks + 4 < 28:
            wload(ks + 4)
        else:
            woload(ks & 3, 1, "wodd")
        if ks + 1 < 28:
            e.wait_vm(f"w{ks+1}")
            wread(WB + 8 * ((ks + 1) & 1), (ks + 1) & 3)
        e.wait_vm(f"h{ks}")
        f = WB + 8 * (ks & 1)
        h = HB + 8 * (ks & 3)
        for m in range(2):
            for t in ((0, 1), (1, 0))[m]:
                d = DAC + 32 * m + 16 * t
                c = "0" if ks == 0 else vr(d, 16)
                if "dnomfma" in OPT and ks > 0: continue
                e(f"v_mfma_f32_32x32x16_bf16 {vr(d,16)}, {vr(f+4*m,4)}, {vr(h+4*t,4)}, {c}")
        if ks + 4 < 28:
            hload(ks + 4)
    cs(e, 9)
    e("s_setprio 3")
    e("s_lshl_b32 s64, s76, 16")
    e("s_lshl_b32 s60, s3, 13")
    e("s_add_u32 s64, s64, s60")
    e(f"s_add_u32 s64, s64, {WS_OF}")
    e("s_add_u32 s65, s64, 4096")
    e("s_add_u32 s66, s64, 32768")
    e("s_add_u32 s67, s64, 36864")
    e("s_lshl_b32 s60, s3, 14")
    e("v_add_u32 v6, s60, v2")
    e("s_nop 7")
    for m in range(2):
        for t in range(2):
            for r in range(0, 16, 2):
                d = DAC + 32 * m + 16 * t + r
                e(f"v_pk_mul_f32 {vr(d,2)}, {vr(d,2)}, v[{14+2*t}:{15+2*t}]")

    def oe_ld():
        for j in range(4):
            for t in range(2):
                e(f"buffer_load_dwordx4 {vr(HB+8*j+4*t,4)}, v2, s[48:51], s{64+2*t+(j>>1)} offen offset:{(j&1)*2048} sc1")
    def oe_ck():
        e(f"v_max_u32 v11, v{HB}, v{HB+1}")
        for r in range(1, 16):
            e(f"v_max3_u32 v11, v11, v{HB+2*r}, v{HB+2*r+1}")
        e("v_cmp_eq_u32 vcc, -1, v11")
    spin(e, oe_ld, oe_ck, 12)
    e("s_setprio 0")
    for j in range(4):
        for m in range(2):
            for t in range(2):
                d = DAC + 32 * m + 16 * t
                e(f"v_mfma_f32_32x32x16_bf16 {vr(d,16)}, {vr(WE+8*j+4*m,4)}, {vr(HB+8*j+4*t,4)}, {vr(d,16)}")
    e("s_nop 15")
    if "st8" not in OPT: cs(e, 10)
    e.bar()
    for q in range(16):
        e(f"ds_write_b128 v6, {vr(DAC+4*q,4)} offset:{q*1024}")
    e("s_waitcnt lgkmcnt(0)")
    e.bar()
    stamp(e, 11); stamp(e, 12); stamp(e, 13, True)
    stamp_flush(e, 14)
    e("s_endpgm")
    return e.nbar


SP_XB = 65536
SP_WQ = 131072


def sp_xload(e, rows_sgpr, lds_sgpr, chunk_sgpr):
    e(f"s_lshl_b32 s60, s{chunk_sgpr}, 7")
    e(f"s_add_u32 s60, s60, s{rows_sgpr}")
    e(f"s_lshl_b32 s61, s{chunk_sgpr}, 13")
    e(f"s_add_u32 s61, s61, {lds_sgpr}")
    for n in range(8):
        e(f"s_add_u32 m0, s61, {n * 1024}")
        e("s_add_u32 s60, s60, 8192" if n else "s_nop 0")
        e(f"buffer_load_dwordx4 v{4 + (n & 1)}, s[32:35], s60 offen lds")


def sp_start(e):
    e.label("SP_START")
    e("s_lshl_b32 s60, s31, 1")
    e("s_add_u32 s60, s60, s56")
    e("s_sub_u32 s97, s60, 14")
    e("s_lshl_b32 s63, s97, 16")
    x_dma_voff(e)
    e("s_waitcnt lgkmcnt(0)")
    srd(e, 32, 4, 2048 * 1024)
    e("s_cmp_ge_u32 s30, 8")
    e("s_cbranch_scc1 SP_START_H")
    sp_xload(e, 63, 0, 30)
    e("s_branch COMPUTE")
    e.label("SP_START_H")
    e("s_cmp_lt_u32 s3, 2")
    e("s_cselect_b32 s36, s8, s10")
    e("s_cselect_b32 s37, s9, s11")
    e("s_mov_b32 s38, 16384")
    e("s_mov_b32 s39, 0x00020000")
    e("s_lshl_b32 s61, s3, 13")
    e("s_and_b32 s62, s61, 0x2000")
    for n in range(8):
        if n % 4 == 0:
            e(f"s_add_u32 m0, s61, {SP_XB + n * 1024}")
            e(f"s_add_u32 s60, s62, {n * 1024}")
        e(f"buffer_load_dwordx4 v2, s[36:39], s60 offen offset:{(n & 3) * 1024} lds")
    e("s_branch SP_HELPER")


def sp_helper(e):
    e.label("SP_HELPER")
    e.vm = []
    e.nbar = 0
    e("v_mov_b32 v16, 0")
    stamp(e, 2)
    srd(e, 48, 28, WS_SIZE)
    srd(e, 72, 26, 0 if "noflag" in OPT else 256)
    e.wait_all()
    e.bar()
    stamp(e, 3)
    srd(e, 36, 22, 1024)
    e(f"s_mov_b32 m0, {SP_XB + 32768}")
    e("v_lshrrev_b32 v7, 2, v1")
    e("buffer_load_dwordx4 v2, s[36:39], 0 offen lds")
    e("v_and_b32 v8, 3, v1")
    e("v_lshlrev_b32 v8, 4, v8")
    e("v_lshl_add_u32 v9, v7, 10, v8")
    srd(e, 40, 6, 512 * 1024)
    e("s_lshl_b32 s60, s3, 17")
    e("s_lshl_b32 s62, s56, 6")
    e("s_add_u32 s60, s60, s62")
    e("s_lshl_b32 s61, s3, 13")
    for n in range(8):
        e(f"s_add_u32 m0, s61, {SP_WQ + n * 1024}")
        e("s_add_u32 s60, s60, 16384" if n else "s_nop 0")
        e("buffer_load_dwordx4 v9, s[40:43], s60 offen lds")
    e("s_lshl_b32 s60, s97, 9")
    e("s_lshl_b32 s61, s3, 7")
    e("s_add_u32 s60, s60, s61")
    e(f"s_add_u32 s60, s60, {WS_FL}")
    e("s_mov_b64 exec, 0xff")
    e("buffer_store_dword v16, v3, s[48:51], s60 offen sc1")
    e("s_mov_b64 exec, -1")
    for r in range(4):
        e(f"v_mov_b32 v{12+r}, -1")
    e("s_xor_b32 s63, s97, 1")
    e("s_lshl_b32 s63, s63, 16")
    e.wait_all()
    e.bar()
    cs(e, 4)
    e("s_cmp_lg_u32 s3, 3")
    e("s_cbranch_scc1 SPH_A")
    cnt_arrive(e, 0)
    e.label("SPH_A")
    e("s_lshl_b32 s60, s97, 16")
    e("s_lshl_b32 s61, s3, 14")
    e("s_add_u32 s60, s60, s61")
    e(f"s_add_u32 s60, s60, {WS_OF}")
    for n in range(16):
        if n % 4 == 0:
            e(f"s_add_u32 s61, s60, {n * 1024}")
        e(f"buffer_store_dwordx4 v[12:15], v2, s[48:51], s61 offen offset:{(n & 3) * 1024} sc1")
    e.bar()
    for u in range(2):
        e("s_lshl_b32 s62, s3, 1")
        e(f"s_add_u32 s62, s62, {u}")
        sp_xload(e, 63, SP_XB, 62)
    e.wait_all()
    e.bar()
    cs(e, 5)
    e("s_cmp_lg_u32 s3, 3")
    e("s_cbranch_scc1 SPH_C")
    cnt_arrive(e, 1)
    e.label("SPH_C")
    e("s_cmp_lg_u32 s3, 3")
    e("s_cbranch_scc1 SPH_B")
    cnt_spin(e, 0)
    e.label("SPH_B")
    e.wait_all()
    e.bar()
    e.bar()
    kv_piece(e, (0, 1, 2, 3))
    kv_piece(e, (4, 5, 6, 7))
    e("s_cmp_lg_u32 s3, 3")
    e("s_cbranch_scc1 SPH_D")
    cnt_spin(e, 1)
    e.label("SPH_D")
    e.wait_all()
    cs(e, 6)
    e.bar()
    cs(e, 7)
    e("s_branch DOWN")
    return e.nbar


def sp_compute(e):
    e.label("SP_COMPUTE")
    e.vm = []
    e.nbar = 0
    A = 64
    srd(e, 48, 28, WS_SIZE)
    srd(e, 52, 24, 2048 * 1024)
    stamp(e, 2)

    def xaddr(base):
        e("v_and_b32 v14, 31, v1")
        e("v_lshrrev_b32 v15, 5, v1")
        e("v_bfe_u32 v16, v1, 1, 3")
        e("v_xor_b32 v16, v16, v15")
        e("s_and_b32 s60, s30, 1")
        e("s_lshl_b32 s60, s60, 12")
        e(f"s_add_u32 s60, s60, {base}")
        e("v_lshlrev_b32 v17, 7, v14")
        e("v_add_u32 v17, s60, v17")
        for s in range(4):
            e(f"v_xor_b32 v18, {2*s}, v16")
            e(f"v_lshl_add_u32 v{10+s}, v18, 4, v17")
        e("v_bfe_u32 v16, v1, 2, 2")
        e("v_lshl_add_u32 v17, v15, 3, v16")
        e("v_and_b32 v18, 3, v1")
        e("v_lshlrev_b32 v18, 3, v18")
        for r in range(16):
            e(f"v_mov_b32 v{A+r}, 0")

    def chain(kind):
        lab = e.newlabel("CH")
        rs = {"K": 32, "V": 32, "Q": 64, "G": 2}[kind]
        if kind in "KV":
            e("v_lshl_add_u32 v14, v17, 5, v18")
            e(f"v_add_u32 v14, {SP_XB + (16384 if kind == 'V' else 0)}, v14")
        elif kind == "Q":
            e("v_lshl_add_u32 v14, v17, 6, v18")
            e("v_bfe_u32 v19, v1, 4, 1")
            e("v_lshl_add_u32 v14, v19, 5, v14")
            e(f"v_add_u32 v14, {SP_WQ}, v14")
        else:
            e("v_lshlrev_b32 v14, 4, v15")
            e(f"v_add_u32 v14, {SP_XB + 32768}, v14")
        def rd(s):
            e(f"ds_read_b128 {vr(24+4*s,4)}, v{10+s}")
            if kind == "G":
                e(f"ds_read_b128 {vr(40+4*s,4)}, v14 offset:{s*32}")
            else:
                for rho in range(2):
                    e(f"ds_read_b64_tr_b16 {vr(40+4*s+2*rho,2)}, v14 offset:{(16*s+4*rho)*rs}")
            e(f"v_add_u32 v{10+s}, 0x2000, v{10+s}")
            if s == 3:
                e(f"v_add_u32 v14, {64*rs}, v14")
        nrd = 2 if kind == "G" else 3
        for s in range(4):
            rd(s)
        e("s_mov_b32 s60, 8")
        e.label(lab)
        for s in range(4):
            e(f"s_waitcnt lgkmcnt({3 * nrd})")
            a, b = vr(40+4*s, 4), vr(24+4*s, 4)
            if kind == "V":
                a, b = b, a
            e(f"v_mfma_f32_32x32x16_bf16 {vr(A,16)}, {a}, {b}, {vr(A,16)}")
            rd(s)
        e("s_sub_u32 s60, s60, 1")
        e("s_cmp_lg_u32 s60, 0")
        e(f"s_cbranch_scc1 {lab}")
        e("s_waitcnt lgkmcnt(0)")

    xaddr(0)
    e("s_lshl_b32 s98, s97, 1")
    e("s_and_b32 s60, s30, 1")
    e("s_add_u32 s98, s98, s60")
    e.wait_all()
    e.bar()
    stamp(e, 3)
    e("s_lshr_b32 s99, s30, 1")
    e("s_cmp_eq_u32 s99, 1")
    e("s_cbranch_scc1 SPC_V")
    e("s_cmp_eq_u32 s99, 2")
    e("s_cbranch_scc1 SPC_G")
    e("s_cmp_eq_u32 s99, 3")
    e("s_cbranch_scc1 SPC_Q")
    chain("K")
    e(f"s_mov_b32 s60, {fbits(0.25 * LOG2E)}")
    e("v_and_b32 v14, 0x33, v1")
    e("v_bfe_u32 v15, v1, 2, 1")
    e("v_lshl_add_u32 v14, v15, 3, v14")
    e("v_bfe_u32 v15, v1, 3, 1")
    e("v_lshl_add_u32 v14, v15, 2, v14")
    e("v_lshlrev_b32 v14, 4, v14")
    e("s_nop 4")
    for r in range(8):
        e(f"v_mul_f32 v{A+r}, s60, v{A+r}")
    e(f"v_mul_f32 v18, v{A}, v{A}")
    for r in range(1, 8):
        e(f"v_fmac_f32 v18, v{A+r}, v{A+r}")
    for r in range(4):
        e(f"v_cvt_pk_bf16_f32 v{A+8+r}, v{A+2*r}, v{A+2*r+1}")
    e("s_lshl_b32 s60, s98, 11")
    e(f"s_add_u32 s60, s60, {WS_KV}")
    e(f"buffer_store_dwordx4 {vr(A+8,4)}, v14, s[48:51], s60 offen sc1")
    allreduce(e, "v_add_f32", 18, 19, 5, 6)
    allreduce(e, "v_max_f32", 18, 19, 0, 5)
    e("s_lshl_b32 s60, s98, 2")
    e(f"s_add_u32 s60, s60, {WS_KN}")
    e("s_mov_b64 exec, 1")
    e("buffer_store_dword v18, v3, s[48:51], s60 offen sc1")
    e("s_mov_b64 exec, -1")
    e("s_branch SPC_KV_DONE")
    e.label("SPC_V")
    chain("V")
    e("s_nop 9")
    for r in range(8):
        e(f"v_cvt_pk_bf16_f32 v{A+r}, v{A+2*r}, v{A+2*r+1}")
    e("s_lshl_b32 s60, s98, 11")
    e(f"s_add_u32 s60, s60, {WS_KV + 1024}")
    e("s_mov_b32 exec_lo, 0xffff")
    e("s_mov_b32 exec_hi, 0xffff")
    e(f"buffer_store_dwordx4 {vr(A,4)}, v2, s[48:51], s60 offen sc1")
    e(f"buffer_store_dwordx4 {vr(A+4,4)}, v2, s[48:51], s60 offen offset:256 sc1")
    e("s_mov_b64 exec, -1")
    e.label("SPC_KV_DONE")
    e("s_waitcnt vmcnt(0)")
    e("s_barrier")
    e("s_barrier")
    e("s_barrier")
    e("s_barrier")
    e("s_branch SPC_JOIN")
    e.label("SPC_G")
    e("s_barrier")
    chain("G")
    e("s_barrier")
    e("s_nop 9")
    e(f"v_mul_f32 v18, {fbits(-LOG2E)}, v{A}")
    e("v_exp_f32 v18, v18")
    e("s_lshl_b32 s60, s98, 7")
    e("v_add_f32 v18, 1.0, v18")
    e("v_rcp_f32 v20, v18")
    e(f"s_add_u32 s60, s60, {WS_G}")
    e("s_mov_b32 exec_hi, 0")
    e("buffer_store_dword v20, v3, s[48:51], s60 offen sc1")
    e("s_mov_b64 exec, -1")
    xaddr(SP_XB)
    e("s_xor_b32 s98, s98, 2")
    e("s_waitcnt vmcnt(0)")
    e("s_barrier")
    chain("Q")
    e("s_branch SPC_QW")
    e.label("SPC_Q")
    e.bar()
    chain("Q")
    e.bar()
    e.bar()
    e.label("SPC_QW")
    e.bar()
    e("s_and_b32 s60, s98, 3")
    e("s_nop 2")
    e("s_lshl_b32 s60, s60, 12")
    e(f"s_add_u32 s60, s60, {WD_BASE}")
    e("v_add_u32 v14, s60, v2")
    e("v_xor_b32 v15, 0x4000, v14")
    e("s_nop 3")
    for r in range(8):
        e(f"v_cvt_pk_bf16_f32 v{A+r}, v{A+2*r}, v{A+2*r+1}")
    e(f"ds_write_b128 v14, {vr(A,4)}")
    e(f"ds_write_b128 v15, {vr(A+4,4)}")
    e("s_waitcnt lgkmcnt(0)")
    e.label("SPC_JOIN")
    cs(e, 4); cs(e, 5)
    e(f"s_mov_b32 s60, {WS_KN}")
    e("buffer_load_dword v10, v3, s[48:51], s60 offen sc1")
    e("s_lshl_b32 s62, s30, 12")
    e(f"s_add_u32 s62, s62, {WD_BASE}")
    e("v_add_u32 v14, s62, v2")
    e.bar()
    e(f"ds_read_b128 {vr(R_Q,4)}, v14")
    for l in att_init():
        e(l)
    e("s_waitcnt vmcnt(0)")
    allreduce(e, "v_max_f32", 10, 12, 0, 6)
    e("s_waitcnt lgkmcnt(0)")
    e("s_branch QJOIN")
    return e.nbar


R_O = 16; R_VF = [32, 40]; R_Q = 48; R_C = 52; R_KF = [68, 72, 76, 80]; R_S = [88, 104]


def att_init():
    L = ["v_and_b32 v12, %d, v1" % (31 if "one1" in OPT else 27),
         "v_cmp_eq_u32 vcc, 16, v12",
         "v_mov_b32 v12, 0x3f803f80",
         "v_mov_b32 v8, 0xdddd",
         f"v_cndmask_b32 v{R_VF[0]}, 0, v12, vcc"]
    L += [f"v_mov_b32 v{R_VF[0]+1}, v{R_VF[0]}"]
    L += [f"v_mov_b64 {vr(R_VF[0]+r,2)}, {vr(R_VF[0],2)}" for r in range(2, 16, 2)]
    L += [f"v_mov_b64 {vr(R_O+r,2)}, 0" for r in range(0, 16, 2)]
    L += ["v_mov_b32 v13, v2", "v_mov_b32 v11, 0"]
    return L


def compute(e):
    e.label("COMPUTE")
    e("s_lshr_b32 s60, s30, 2")
    e("s_lshl_b32 s96, s31, 2")
    e("s_and_b32 s61, s30, 3")
    e("s_add_u32 s96, s96, s61")
    e("s_lshl_b32 s96, s96, 4")
    e("s_add_u32 s96, s96, s56")
    e("s_lshl_b32 s96, s96, 1")
    e("s_add_u32 s96, s96, s60")
    e("s_lshl_b32 s96, s96, 10")
    e("s_mov_b32 s40, 0xffff")
    e("s_mov_b32 s41, 0xffff")
    e("s_cmp_ge_u32 s56, 14")
    e("s_cbranch_scc1 SP_COMPUTE")
    e.vm = []
    e.nbar = 0
    if "pf" in OPT:
        e("s_getpc_b64 s[44:45]")
        e.label("PC_REF")
        e(f"s_sub_u32 s44, s44, PC_REF-{NAME}_kernel")
        e("s_subb_u32 s45, s45, 0")
        e("s_and_b32 s60, s94, 3")
        e("s_lshl_b32 s60, s60, 3")
        e("s_add_u32 s60, s60, s30")
        e("s_lshl_b32 s60, s60, 10")
        e(f"s_min_u32 s60, s60, CODE_END-{NAME}_kernel-1024")
        e("v_add_u32 v24, s60, v2")
        e("global_load_dwordx4 v[24:27], v24, s[44:45]")
    XA = 160
    e("v_and_b32 v14, 15, v1")
    e("v_bfe_u32 v16, v1, 1, 3")
    e("v_xor_b32 v16, v16, v6")
    e("s_and_b32 s60, s30, 3")
    e("s_lshl_b32 s60, s60, 12")
    e("v_lshlrev_b32 v17, 7, v14")
    e("v_add_u32 v17, s60, v17")
    for s in range(2):
        e(f"v_xor_b32 v18, {4*s}, v16")
        e(f"v_lshl_add_u32 v{XA+s}, v18, 4, v17")
        e(f"v_xor_b32 v{XA+2+s}, 0x1000, v{XA+s}")
        e(f"v_add_u32 v{XA+4+s}, {X_BASE[2]}, v{XA+s}")
        e(f"v_add_u32 v{XA+6+s}, {X_BASE[2]}, v{XA+2+s}")
    e("s_lshr_b32 s60, s30, 2")
    e("s_lshl_b32 s92, s60, 1")
    e("s_and_b32 s61, s30, 1")
    e("s_add_u32 s92, s92, s61")
    e("v_bfe_u32 v16, v1, 2, 2")
    e("v_lshl_add_u32 v17, v6, 3, v16")
    e("v_and_b32 v19, 3, v1")
    e("v_and_b32 v18, 1, v6")
    e("v_xor_b32 v14, s60, v18")
    e("v_lshlrev_b32 v9, 6, v17")
    e("v_lshl_add_u32 v9, v14, 5, v9")
    e("v_and_b32 v14, 1, v1")
    e("v_lshl_add_u32 v9, v14, 4, v9")
    e("v_bfe_u32 v14, v1, 1, 1")
    e("v_lshl_add_u32 v9, v14, 3, v9")
    e("v_lshl_add_u32 v18, v18, 2, v16")
    e("s_lshl_b32 s61, s92, 1")
    e("v_xor_b32 v18, s61, v18")
    e("v_lshlrev_b32 v4, 8, v17")
    e("v_lshl_add_u32 v4, v18, 5, v4")
    e("v_lshl_add_u32 v4, v19, 3, v4")
    e("s_and_b32 s60, s30, 2")
    e("s_lshl_b32 s60, s60, 1")
    e("s_add_u32 s60, s60, s92")
    e("s_lshl_b32 s60, s60, 1")
    e("s_and_b32 s61, s30, 1")
    e("s_add_u32 s60, s60, s61")
    e("s_lshl_b32 s60, s60, 11")
    e(f"s_add_u32 s60, s60, {WD_BASE}")
    e("v_and_b32 v14, 15, v1")
    e("v_lshlrev_b32 v14, 4, v14")
    e("v_and_b32 v15, 1, v6")
    e("v_lshl_add_u32 v14, v15, 9, v14")
    e("v_lshrrev_b32 v15, 1, v6")
    e("v_lshl_add_u32 v14, v15, 3, v14")
    e("v_add_u32 v14, s60, v14")
    e("v_xor_b32 v15, 0x800, v14")
    e("v_xor_b32 v5, 32, v4")
    e(f"v_add_u32 v4, {W_BASE}, v4")
    e(f"v_add_u32 v5, {W_BASE}, v5")
    e("v_add_u32 v6, 0x10000, v4")
    e("v_add_u32 v7, 0x10000, v5")
    e("s_waitcnt lgkmcnt(0)")
    srd(e, 48, 28, WS_SIZE)
    srd(e, 52, 24, 2048 * 1024)
    e(f"s_mov_b32 s64, {fbits(-LOG2E)}")
    e(f"s_mov_b32 s65, {fbits(-LOG2E)}")
    e("s_mov_b32 s66, 1.0")
    e("s_mov_b32 s67, 1.0")
    e("s_waitcnt vmcnt(0)")
    stamp(e, 2)

    ACC = 88
    QACC = 152
    FR = [16, 52]

    def reads(kc, s, fb):
        st = stage(kc)
        f = FR[fb]
        L = []
        for rho in range(2):
            L.append(f"ds_read_b64_tr_b16 {vr(f + 16 + 2*rho, 2)}, v9 offset:{QS_BASE + st * 4096 + (32 * s + 4 * rho) * 64}")
        for t in range(4):
            a = XA + (4 if st == 2 else 0) + 2 * (t >> 1) + s
            L.append(f"ds_read_b128 {vr(f + 4*t, 4)}, v{a} offset:{(X_BASE[st] if st < 2 else 0) + (t & 1) * 2048}")
        for jj in range(4):
            m, j = jj >> 1, jj & 1
            for rho in range(2):
                off = st * 32768 + m * 16384 + (32 * s + 4 * rho) * 256
                a = 4 + j
                if off >= 65536:
                    off -= 65536
                    a += 2
                L.append(f"ds_read_b64_tr_b16 {vr(f + 20 + 4*jj + 2*rho, 2)}, v{a} offset:{off}")
        return L

    def mfmas(fb, first):
        f = FR[fb]
        L = []
        for t in range(2):
            d = QACC + 4 * t
            L.append(f"v_mfma_f32_16x16x32_bf16 {vr(d,4)}, {vr(f+16,4)}, {vr(f+4*t,4)}, " + ("0" if first else vr(d, 4)))
        for jj in range(4):
            for t in ((1, 0, 2, 3) if jj == 0 else (3, 2, 1, 0) if jj & 1 else (0, 1, 2, 3)):
                d = ACC + 16 * jj + 4 * t
                L.append(f"v_mfma_f32_16x16x32_bf16 {vr(d,4)}, {vr(f+20+4*jj,4)}, {vr(f+4*t,4)}, " + ("0" if first else vr(d, 4)))
        return L

    Q = R_Q; IDX = 8; C = R_C; O = R_O; S = R_S; KF = R_KF; VF = R_VF
    e.bar()
    stamp(e, 3)
    for l in reads(0, 0, 0):
        e(l)
    for kc in range(8):
        for s in range(2):
            e("s_waitcnt lgkmcnt(0)")
            per = 1
            if s == 0:
                rl = reads(kc, 1, 1)
                if kc == 7:
                    rl = rl + [f"s_mov_b32 s60, {WS_KN}", "buffer_load_dword v10, v3, s[48:51], s60 offen sc1"]
            elif kc < 7:
                e.bar()
                fs(e, 4 + kc)
                rl = reads(kc + 1, 0, 0)
            else:
                e.bar()
                rl = att_init()
                per = 2
            ml = mfmas(s, kc == 0 and s == 0)
            for i, m in enumerate(ml):
                e(m)
                for l in rl[per*i:per*i+per]:
                    e(l)
            for l in rl[per*len(ml):]:
                e(l)
        if kc == 3:
            cs(e, 4)
    cs(e, 5); f2(e, 3)
    e(f"v_cvt_pk_bf16_f32 v{Q}, v{QACC}, v{QACC+1}")
    e(f"v_cvt_pk_bf16_f32 v{Q+1}, v{QACC+2}, v{QACC+3}")
    e(f"v_cvt_pk_bf16_f32 v{Q+2}, v{QACC+4}, v{QACC+5}")
    e(f"v_cvt_pk_bf16_f32 v{Q+3}, v{QACC+6}, v{QACC+7}")
    KJ = int(os.environ.get("KJ", "1"))
    e("s_nop 1")
    e(f"v_permlane16_swap_b32 v{Q}, v{Q+2}")
    e(f"v_permlane16_swap_b32 v{Q+1}, v{Q+3}")
    red = Asm()
    allreduce(red, "v_max_f32", 10, 12, 0, 6)
    red = [l.strip() for l in red.lines]
    for j in range(2):
        G = ACC + 16 * j
        U = ACC + 32 + 16 * j
        for r in range(0, 16, 2):
            e(f"v_pk_mul_f32 {vr(G+r,2)}, {vr(G+r,2)}, s[64:65]")
        if j == KJ:
            f2(e, 4)
            e("s_waitcnt vmcnt(0)")
            f2(e, 5)
        for r in range(16):
            e(f"v_exp_f32 v{G+r}, v{G+r}")
            if j == KJ and r % 2 == 1:
                while red and red[0].startswith("s_nop"):
                    red.pop(0)
                if red:
                    e(red.pop(0))
                    if red and not red[0].startswith("s_nop"):
                        e(red.pop(0))
        for r in range(0, 16, 2):
            e(f"v_pk_add_f32 {vr(G+r,2)}, {vr(G+r,2)}, s[66:67]")
        for r in range(16):
            e(f"v_rcp_f32 v{G+r}, v{G+r}")
        for r in range(0, 16, 2):
            e(f"v_pk_mul_f32 {vr(G+r,2)}, {vr(G+r,2)}, {vr(U+r,2)}")
        for r in range(8):
            e(f"v_cvt_pk_bf16_f32 v{U+r}, v{G+2*r}, v{G+2*r+1}")
        for t in range(4):
            e(f"ds_write_b64 v{14 + (t >> 1)}, {vr(U+2*t,2)} offset:{j*1024 + (t & 1)*256}")
    assert not red, red
    nb_ffn = e.nbar
    e.label("QJOIN")
    e.nbar = 0
    cs(e, 6); f2(e, 6)
    for i in range(4):
        e(f"v_dot2c_f32_bf16 v11, v{Q+i}, v{Q+i}")
    e(f"v_mul_f32 v10, {fbits(1.04)}, v10")
    e("s_nop 1")
    allreduce(e, "v_add_f32", 11, 12, 5, 6)
    e("v_mul_f32 v11, v11, v10")
    e("v_sqrt_f32 v11, v11")
    e(f"s_mov_b32 s60, {fbits(SAFE_BOUND)}")
    e("v_cmp_nle_f32 vcc, v11, s60")
    e(f"v_sub_f32 v{C}, 0, v11")
    e(f"v_sub_f32 v{C+1}, 0, v11")
    for r in range(2, 16, 2):
        e(f"v_mov_b64 {vr(C+r,2)}, {vr(C,2)}")
    e("s_waitcnt lgkmcnt(0)")
    cs(e, 7); f2(e, 7)
    e.bar()
    e("s_cbranch_vccz ATT_GO")
    e("v_mov_b32 v11, 0xff800000")
    e("v_mov_b32 v12, v2")
    e("s_mov_b32 s60, 64")
    e.label("MAXLOOP")
    e(f"ds_read_b128 {vr(KF[0],4)}, v12")
    e("v_add_u32 v12, 0x800, v12")
    e("s_waitcnt lgkmcnt(0)")
    e(f"v_mfma_f32_32x32x16_bf16 {vr(S[0],16)}, {vr(KF[0],4)}, {vr(Q,4)}, 0")
    e("s_nop 15")
    for r in range(8):
        e(f"v_max3_f32 v11, v11, v{S[0]+2*r}, v{S[0]+2*r+1}")
    e("s_sub_u32 s60, s60, 1")
    e("s_cmp_lg_u32 s60, 0")
    e("s_cbranch_scc1 MAXLOOP")
    allreduce(e, "v_max_f32", 11, 12, 5, 6)
    for r in range(16):
        e(f"v_sub_f32 v{C+r}, 0, v11")
    e.label("ATT_GO")

    def laddr(t):
        return ("v13", t * 2048)
    def rdK(t, b):
        a, o = laddr(t)
        e(f"ds_read_b128 {vr(KF[b],4)}, {a} offset:{o}")
    def rdV(t, b):
        a, o = laddr(t)
        e("s_mov_b64 exec, s[40:41]")
        e(f"ds_read_b128 {vr(VF[b],4)}, {a} offset:{o+1024}")
        e(f"ds_read_b128 {vr(VF[b]+4,4)}, {a} offset:{o+1280}")
        e("s_mov_b64 exec, -1")
    def qk(t):
        e(f"v_mfma_f32_32x32x16_bf16 {vr(S[t & 1],16)}, {vr(KF[t & 3],4)}, {vr(Q,4)}, {vr(C,16)}")
    def sp(b, half):
        e(f"v_smfmac_f32_32x32x32_bf16 {vr(O,16)}, {vr(VF[b]+4*half,4)}, {vr(S[b]+8*half,8)}, v{IDX}")
    def ex(b, lo, hi):
        for r in range(lo, hi):
            e(f"v_exp_f32 v{S[b]+r}, v{S[b]+r}")

    rdK(0, 0)
    rdK(1, 1)
    rdV(0, 0)
    rdK(2, 2)
    rdK(3, 3)
    e("v_and_b32 v10, 31, v1")
    e("v_lshlrev_b32 v12, 2, v10")
    e("s_lshr_b32 s60, s96, 15")
    e("s_lshl_b32 s60, s60, 7")
    e(f"s_add_u32 s60, s60, {WS_G}")
    e("buffer_load_dword v163, v12, s[48:51], s60 offen sc1")
    cs(e, 8)
    e("s_waitcnt lgkmcnt(4)")
    qk(0)
    UN = int(os.environ.get("UN", "8"))
    e(f"s_mov_b32 s60, {64 // UN}")
    if "fake" in OPT:
        e("s_and_b32 s61, s2, 1")
        e("s_lshr_b32 s62, s30, 2")
        e("s_add_u32 s61, s61, s62")
        e("s_add_u32 s60, s60, 1")
        e("s_sub_u32 s60, s60, s61")
    PSW = int(os.environ.get("PSW", "1"))
    if PSW:
        e("s_setprio 1")
        e("s_mov_b32 s61, 99")
        e("s_cmp_ge_u32 s30, 4")
        e("s_cbranch_scc1 PRIO_SET")
        e("s_setprio 2")
        e(f"s_mov_b32 s61, {PSW}")
        e.label("PRIO_SET")
    e("s_nop 11")
    ex(0, 0, 2)
    e("s_branch ATT_ENTRY")
    e.raw(".p2align 6")
    e.label("ATT_LOOP")
    if PSW:
        e("s_cmp_lg_u32 s60, s61")
        e("s_cbranch_scc1 PRIO_KEEP")
        e("s_setprio 0")
        e.label("PRIO_KEEP")
    for t in range(UN):
        b = t & 1
        ex(b, 0, 2)
        sp(b ^ 1, 1)
        rdK(t + 3, (t + 3) & 3)
        if t == 0:
            e.label("ATT_ENTRY")
        ex(b, 2, 6)
        qk(t + 1)
        e("s_waitcnt lgkmcnt(1)")
        ex(b, 6, 11)
        sp(b, 0)
        rdV(t + 1, b ^ 1)
        if t == UN - 1:
            e(f"v_add_u32 v13, {UN * 2048}, v13")
            e("s_sub_u32 s60, s60, 1")
            e("s_cmp_lg_u32 s60, 0")
        ex(b, 11, 16)
    e("s_cbranch_scc1 ATT_LOOP")
    e("s_waitcnt lgkmcnt(0)")
    e("s_nop 1")
    sp(1, 1)
    OB = 96
    WOB = 80
    PB = 16
    e("s_lshl_b32 s34, s76, 1")
    e("s_and_b32 s61, s30, 1")
    e("s_add_u32 s34, s34, s61")
    e("s_lshl_b32 s63, s34, 15")
    e(f"s_add_u32 s34, s63, {WS_OF + 1024}")
    e("s_lshl_b32 s61, s77, 7")
    e("s_add_u32 s63, s63, s61")
    e("s_and_b32 s61, s30, 2")
    e("s_lshl_b32 s61, s61, 5")
    e("s_add_u32 s63, s63, s61")
    e(f"s_add_u32 s62, s96, {WS_OF}")
    e("s_waitcnt vmcnt(0)")
    e("s_nop 1")
    cs(e, 9)
    if "one1" in OPT:
        e(f"v_mov_b32 v12, v{O+8}")
        e("s_nop 1")
        e(f"v_permlane32_swap_b32 v{O+8}, v12")
        e("s_nop 1")
    e(f"v_rcp_f32 v11, v{O+8}")
    e("s_nop 0")
    e("v_mul_f32 v11, v11, v163")
    for r in range(8):
        e(f"v_mul_f32 v{O+r}, v{O+r}, v11")
    for r in range(4):
        e(f"v_cvt_pk_bf16_f32 v{164+r}, v{O+2*r}, v{O+2*r+1}")
    e("buffer_store_dwordx4 v[164:167], v2, s[48:51], s62 offen sc1")
    e("s_cmp_lt_u32 s30, 4")
    e("s_cbranch_scc1 FINISH")
    e("s_barrier")
    e("s_barrier")
    e("s_branch A_DONE")
    e.label("FINISH")

    def oload(g):
        for i in range(4):
            e(f"s_add_u32 s60, s34, {(g + 4 * i) * 2048}")
            e(f"buffer_load_dwordx4 {vr(OB+16*g+4*i,4)}, v2, s[48:51], s60 offen sc1")
    WO = 32
    tr_addr128(e, 161, 162, 11, 12)
    e("s_and_b32 s60, s30, 2")
    e("s_lshl_b32 s60, s60, 5")
    e("v_xor_b32 v161, s60, v161")
    e(f"v_add_u32 v161, {WD_BASE}, v161")
    e("v_lshrrev_b32 v11, 5, v1")
    e("v_lshlrev_b32 v10, 10, v10")
    e("v_lshl_add_u32 v10, v11, 4, v10")
    e("s_lshl_b32 s60, s30, 12")
    e("v_add_u32 v6, s60, v2")
    e("s_mov_b32 s35, 15")
    e("s_setprio 3")
    e.bar()
    pass
    for g in range(2):
        oload(g)
    e.bar()
    pass
    for p in range(4):
        for jq in range(4):
            e(f"ds_read_b128 {vr(PB+16*p+4*jq,4)}, v6 offset:{p*16384 + jq*1024}")
    def wread(f):
        k = (f >> 2) + 4 * (f & 3)
        for rho in range(2):
            e(f"ds_read_b64_tr_b16 {vr(WO+4*f+2*rho,2)}, v161 offset:{k*2048 + rho*1024}")
    for g in range(2, 4):
        oload(g)
    e("s_waitcnt lgkmcnt(0)")
    for f in range(12, 16):
        wread(f)
    for r in range(0, 16, 2):
        e(f"v_pk_add_f32 {vr(PB+r,2)}, {vr(PB+r,2)}, {vr(PB+16+r,2)}")
    for f in range(0, 4):
        wread(f)
    for r in range(0, 16, 2):
        e(f"v_pk_add_f32 {vr(PB+r,2)}, {vr(PB+r,2)}, {vr(PB+32+r,2)}")
    for f in range(4, 8):
        wread(f)
    for r in range(0, 16, 2):
        e(f"v_pk_add_f32 {vr(PB+r,2)}, {vr(PB+r,2)}, {vr(PB+48+r,2)}")
    for f in range(8, 12):
        wread(f)
    pass

    def ogroup(g, tag):
        o = OB + 16 * g
        e(f"v_max_u32 v11, v{o}, v{o+1}")
        for r in range(1, 8):
            e(f"v_max3_u32 v11, v11, v{o+2*r}, v{o+2*r+1}")
        e("v_cmp_eq_u32 vcc, -1, v11")
        e("s_cmp_eq_u32 s100, 0")
        e(f"s_cbranch_scc1 OGO{tag}")
        e("s_nop 2")
        e(f"s_cbranch_vccnz ONEXT{tag}")
        e.label(f"OGO{tag}")
        for i in range(4):
            e(f"v_mfma_f32_32x32x16_bf16 {vr(PB,16)}, {vr(WO+16*g+4*i,4)}, {vr(o+4*i,4)}, {vr(PB,16)}")
        e(f"s_bitset0_b32 s35, {g}")
        e.label(f"ONEXT{tag}")
    e("s_waitcnt lgkmcnt(0)")
    for g in range(4):
        e(f"s_waitcnt vmcnt({12 - 4 * g})")
        ogroup(g, f"A{g}")
    e("s_cmp_eq_u32 s35, 0")
    e("s_cbranch_scc1 ODONE")
    e.label("OLOOP")
    e("s_sub_u32 s100, s100, 1")
    for g in range(4):
        e(f"s_bitcmp0_b32 s35, {g}")
        e(f"s_cbranch_scc1 OSK{g}")
        oload(g)
        e.label(f"OSK{g}")
    e("s_waitcnt vmcnt(0)")
    for g in range(4):
        e(f"s_bitcmp0_b32 s35, {g}")
        e(f"s_cbranch_scc1 ONEXTB{g}")
        ogroup(g, f"B{g}")
    e("s_cmp_lg_u32 s35, 0")
    e("s_cbranch_scc1 OLOOP")
    e.label("ODONE")
    cs(e, 10)
    e("s_nop 11")
    for r in range(8):
        e(f"v_cvt_pk_bf16_f32 v{32+r}, v{PB+2*r}, v{PB+2*r+1}")
    e("s_nop 1")
    e("v_permlane32_swap_b32 v32, v34")
    e("v_permlane32_swap_b32 v33, v35")
    e("v_permlane32_swap_b32 v36, v38")
    e("v_permlane32_swap_b32 v37, v39")
    ost = os.environ.get("OST", "")
    e(f"buffer_store_dwordx4 v[32:35], v10, s[52:55], s63 offen {ost}")
    e(f"buffer_store_dwordx4 v[36:39], v10, s[52:55], s63 offen offset:32 {ost}")
    e.label("A_DONE")
    stamp(e, 11)
    if STAMP:
        e("s_waitcnt vmcnt(0)")
    stamp(e, 12); stamp(e, 13, True)
    stamp_flush(e, 14)
    e.label("K_END")
    e("s_endpgm")
    return nb_ffn, e.nbar


def kd(name, vgpr, sgpr=102):
    acc = (vgpr + 3) // 4 * 4
    return f""".p2align 6
.amdhsa_kernel {name}
  .amdhsa_next_free_vgpr {vgpr}
  .amdhsa_next_free_sgpr {sgpr}
  .amdhsa_accum_offset {acc}
  .amdhsa_group_segment_fixed_size 0
  .amdhsa_kernarg_size 104
  .amdhsa_user_sgpr_count 2
  .amdhsa_user_sgpr_kernarg_segment_ptr 1
  .amdhsa_system_sgpr_workgroup_id_x 1
.end_amdhsa_kernel
"""


def main(out):
    ref = open(f"cdna_kernels/{NAME}.s.ref").read().split("\n")
    hdr = [l for l in ref if l.startswith(";") and "@launch" not in l and "Override" not in l and "grid=ceil" not in l]
    e = Asm()
    prologue(e)
    sp_start(e)
    n1 = loader(e)
    n2 = service(e)
    n3 = down(e)
    nf, nc = compute(e)
    n5 = sp_helper(e)
    n6 = sp_compute(e)
    e.label("CODE_END")
    assert n1 == n2 and n1 + n3 == nf + nc and n5 + n3 == n6 + nc, (n1, n2, n3, nf, nc, n5, n6)
    s = "\n".join(hdr) + "\n"
    s += f"; @launch grid=(256,1,1) block=(768,1,1) lds={LDS_TOTAL}\n"
    s += """; Design notes (one launch, 256 workgroups x 12 waves, one per CU, generated by my own script):
"""
    s += '.amdgcn_target "amdgcn-amd-amdhsa--gfx950"\n.text\n'
    s += e.text()
    s += '.section .rodata,"a"\n'
    s += kd(NAME + "_kernel", 168)
    open(out, "w").write(s)


if __name__ == "__main__":
    main(sys.argv[1] if len(sys.argv) > 1 else f"cdna_kernels/{NAME}.s")
```
